```python
import torch

def _softmax(x, axis=-1):
    return torch.softmax(x, dim=axis)
def _gelu(x):
    return torch.nn.functional.gelu(x, approximate="tanh")
def _silu(x):
    return torch.nn.functional.silu(x)
def _sigmoid(x):
    return torch.sigmoid(x)
def _layernorm(x, axis=-1, eps=1e-5):
    m = x.mean(dim=axis, keepdim=True)
    v = x.var(dim=axis, keepdim=True, unbiased=False)
    return (x - m) / torch.sqrt(v + eps)
def _scatter_add(tgt, idx, src, axis=0):
    return tgt.clone().index_add_(axis, idx, src)
def _segment_sum(src, seg, n):
    out = torch.zeros((n,) + src.shape[1:], dtype=src.dtype)
    return out.index_add_(0, seg, src)
def _pad(x, pw):
    flat = tuple(v for pair in reversed(pw) for v in pair)
    return torch.nn.functional.pad(x, flat)

kernel_name = 'sequential_preLN__spectral_fnet__dense_activation_squared_relu__prompt'

def setup_inputs():

    _w = (lambda a: (lambda t: t.to(torch.bfloat16) if t.is_floating_point() else t)(torch.as_tensor(a)))
    def _A_setup():
        B, S, D = 1, 2048, 640
        ns = torch.arange(S)[:, None] * torch.arange(S)[None, :]
        nd = torch.arange(D)[:, None] * torch.arange(D)[None, :]
        Ws_re = torch.cos(-2.0 * torch.pi * ns / S).to(float)
        Ws_im = torch.sin(-2.0 * torch.pi * ns / S).to(float)
        Wd_re = torch.cos(-2.0 * torch.pi * nd / D).to(float)
        Wd_im = torch.sin(-2.0 * torch.pi * nd / D).to(float)
        return {
            "x": _w((lambda *s: torch.randn(*s, dtype=torch.bfloat16) * 0.05)(B, S, D)),
            "dft_seq_re": _w(Ws_re),
            "dft_seq_im": _w(Ws_im),
            "dft_hid_re": _w(Wd_re),
            "dft_hid_im": _w(Wd_im),
        }
    _A_in = _A_setup()

    def _B_setup():
        B, S, D, F = 1, 2048, 640, 1536
        return {
            "x": _w((lambda *s: torch.randn(*s, dtype=torch.bfloat16) * 0.05)(B, S, D)),
            "w1": _w((lambda *s: torch.randn(*s, dtype=torch.bfloat16) * 0.2)(D, F)),
            "b1": _w((lambda *s: torch.randn(*s, dtype=torch.bfloat16) * 0.2)(F)),
            "w2": _w((lambda *s: torch.randn(*s, dtype=torch.bfloat16) * 0.2)(F, D)),
            "b2": _w((lambda *s: torch.randn(*s, dtype=torch.bfloat16) * 0.2)(D)),
        }
    _B_in = _B_setup()

    return {
        "A_x": _A_in["x"],
        "A_dft_seq_re": _A_in["dft_seq_re"],
        "A_dft_seq_im": _A_in["dft_seq_im"],
        "A_dft_hid_re": _A_in["dft_hid_re"],
        "A_dft_hid_im": _A_in["dft_hid_im"],
        "B_x": _B_in["x"],
        "B_w1": _B_in["w1"],
        "B_b1": _B_in["b1"],
        "B_w2": _B_in["w2"],
        "B_b2": _B_in["b2"],
    }

def reference(A_x, A_dft_seq_re, A_dft_seq_im, A_dft_hid_re, A_dft_hid_im, B_x, B_w1, B_b1, B_w2, B_b2):
    def _A_ref(x, dft_seq_re, dft_seq_im, dft_hid_re, dft_hid_im):
        a = torch.einsum("bsd,ed->bse", x, dft_hid_re)
        b = torch.einsum("bsd,ed->bse", x, dft_hid_im)
        y = torch.einsum("ts,bse->bte", dft_seq_re, a) - torch.einsum("ts,bse->bte", dft_seq_im, b)
        return y

    def _B_ref(x, w1, b1, w2, b2):
        h = torch.einsum("bsd,df->bsf", x, w1) + b1
        zero = torch.zeros_like(h)
        r = torch.where(h > zero, h, zero)
        h = r * r
        out = torch.einsum("bsf,fd->bsd", h, w2) + b2
        return out

    x = A_x
    h = x + _A_ref(_layernorm(x, axis=-1), A_dft_seq_re, A_dft_seq_im, A_dft_hid_re, A_dft_hid_im)
    h2 = h + _B_ref(_layernorm(h, axis=-1), B_w1, B_b1, B_w2, B_b2)
    return h2
```

```python
import re

REG_RE = re.compile(r'(?<![\w.])(-?\|?)(?:abs\()?([vas])(?:(\d+)|\[(\d+):(\d+)\])')

def regs_of(tok):
    tok = tok.strip()
    out = []
    m = re.match(r'^-?\|?(?:abs\()?([vas])(?:(\d+)|\[(\d+):(\d+)\])\)?\|?$', tok)
    if m:
        k = m.group(1)
        if m.group(2) is not None:
            out.append((k, int(m.group(2))))
        else:
            for i in range(int(m.group(3)), int(m.group(4)) + 1):
                out.append((k, i))
    elif tok == 'vcc':
        out += [('s', 106), ('s', 107)]
    elif tok == 'vcc_lo':
        out += [('s', 106)]
    elif tok == 'vcc_hi':
        out += [('s', 107)]
    elif tok == 'exec':
        out += [('s', 126), ('s', 127)]
    elif tok == 'm0':
        out += [('s', 124)]
    return out

TRANS = ('v_exp_f32', 'v_log_f32', 'v_rcp_f32', 'v_rsq_f32', 'v_sqrt_f32', 'v_sin_f32', 'v_cos_f32', 'v_rcp_iflag_f32')

class Ins:
    __slots__ = ('text', 'op', 'cls', 'wr', 'rd', 'passes', 'srcc', 'ws', 'ab', 'dpp', 'wide_store_data', 'sgpr_rd_const')
    def __init__(self, text):
        self.text = text
        t = text.split(';')[0].strip()
        parts = t.split(None, 1)
        op = parts[0]
        self.op = op
        rest = parts[1] if len(parts) > 1 else ''
        ops = []
        depth = 0; cur = ''
        for ch in rest:
            if ch in '[(': depth += 1
            if ch in '])': depth -= 1
            if ch == ',' and depth == 0:
                ops.append(cur.strip()); cur = ''
            else:
                cur += ch
        if cur.strip(): ops.append(cur.strip())
        mods = ''
        if ops:
            sp = ops[-1].split(None, 1)
            ops[-1] = sp[0]
            mods = sp[1] if len(sp) > 1 else ''
        R = [regs_of(o) for o in ops]
        self.wr = []; self.rd = []; self.passes = 0; self.srcc = []; self.ab = []
        self.ws = 1; self.dpp = ('_dpp' in op) or ('row_' in mods) or ('quad_perm' in mods)
        self.wide_store_data = []
        if op.startswith('v_mfma'):
            self.cls = 'mfma'
            self.wr = R[0]; self.ab = R[1] + R[2]; self.srcc = R[3]; self.rd = self.ab + self.srcc
            self.passes = 8 if '32x32' in op else 4
        elif op.startswith('v_'):
            self.cls = 'valu'
            if op.startswith('v_cmp'):
                self.wr = R[0]; self.rd = sum(R[1:], [])
                if op.startswith('v_cmpx'): self.wr = self.wr + [('s', 126), ('s', 127)]
            elif 'permlane' in op and 'swap' in op:
                self.wr = R[0] + R[1]; self.rd = R[0] + R[1]
            elif op.startswith(('v_add_co', 'v_sub_co', 'v_subrev_co', 'v_addc_co', 'v_subb_co', 'v_mad_u64', 'v_div_scale')):
                self.wr = R[0] + R[1]; self.rd = sum(R[2:], [])
            elif op == 'v_nop':
                pass
            else:
                self.wr = R[0]; self.rd = sum(R[1:], [])
                if op.startswith(('v_fmac', 'v_dot2c', 'v_pk_fmac', 'v_writelane')) or self.dpp or 'sdwa' in op:
                    self.rd = self.rd + R[0]
        elif op.startswith(('buffer_load', 'global_load', 'flat_load')):
            self.cls = 'vmem'
            if ' lds' in (' ' + mods) or op.startswith('global_load_lds'):
                self.rd = sum(R, []) + [('s', 124)]
                self.cls = 'vmem_lds'
            else:
                self.wr = R[0]; self.rd = sum(R[1:], [])
                if 'd16' in op: self.rd = self.rd + R[0]
        elif op.startswith(('buffer_store', 'buffer_atomic')):
            self.cls = 'vmem'; self.rd = sum(R, [])
            if 'x4' in op or 'x3' in op: self.wide_store_data = R[0]
        elif op.startswith(('global_store', 'global_atomic', 'flat_store')):
            self.cls = 'vmem'; self.rd = sum(R, [])
            if 'x4' in op or 'x3' in op: self.wide_store_data = R[1]
        elif op.startswith('buffer_'):
            self.cls = 'vmem'
        elif op.startswith('ds_'):
            self.cls = 'ds'
            if op.startswith(('ds_read', 'ds_bpermute', 'ds_permute', 'ds_swizzle')):
                self.wr = R[0]; self.rd = sum(R[1:], [])
            else:
                self.rd = sum(R, [])
        elif op == 's_nop':
            self.cls = 'salu'; self.ws = int(ops[0], 0) + 1
        elif op.startswith('s_'):
            self.cls = 'salu'
            if op.startswith(('s_cmp', 's_cbranch', 's_branch', 's_waitcnt', 's_barrier', 's_endpgm', 's_setprio', 's_sleep', 's_bitcmp')):
                self.rd = sum(R, [])
            else:
                self.wr = R[0] if R else []
                self.rd = sum(R[1:], [])
                if 'saveexec' in op: self.wr = self.wr + [('s', 126), ('s', 127)]
        else:
            raise ValueError('unknown instr: ' + text)

def need(prev, cur):
    n = 0
    pw = set(prev.wr); cr = set(cur.rd); cw = set(cur.wr)
    vec = lambda s: {r for r in s if r[0] in 'va'}
    sg = lambda s: {r for r in s if r[0] == 's'}
    if prev.cls == 'valu':
        pv = vec(pw); ps = sg(pw)
        if cur.cls == 'mfma':
            if pv & cr: n = max(n, 2)
            if ('s', 126) in ps: n = max(n, 4)
        if cur.cls == 'valu':
            if cur.dpp and (pv & cr): n = max(n, 2)
            if cur.dpp and ('s', 126) in ps: n = max(n, 5)
            if 'permlane' in cur.op and (pv & cr): n = max(n, 2)
            if 'permlane' in cur.op and ('s', 126) in ps: n = max(n, 4)
            if cur.op.startswith(('v_readlane', 'v_readfirstlane')) and (pv & cr): n = max(n, 1)
            if cur.op.startswith(('v_readlane', 'v_readfirstlane', 'v_writelane')) and ('s', 126) in ps: n = max(n, 4)
            if ps & cr:
                n = max(n, 4 if cur.op.startswith(('v_readlane', 'v_writelane', 'v_div_fmas')) else 2)
            if cur.op.startswith('v_cndmask') and 'vcc' in cur.text and (('s', 106) in ps): n = max(n, 2)
            if prev.op.replace('_e32', '').replace('_e64', '') in TRANS and (pv & cr) : n = max(n, 1)
            if ('sdwa' in prev.op or 'op_sel' in prev.text) and (pv & (cr | cw)): n = max(n, 1)
            if prev.op.startswith('v_dot') and (pv & (cr | cw)):
                if not (cur.op == prev.op): n = max(n, 3)
                else:
                    n = max(n, 0)
        if cur.cls in ('vmem', 'vmem_lds'):
            if ps & cr: n = max(n, 5)
            if prev.op.startswith('v_dot') and (pv & cr): n = max(n, 3)
        if cur.cls == 'ds' and prev.op.startswith('v_dot') and (pv & cr): n = max(n, 3)
        if cur.cls == 'salu' and (ps & cr): n = max(n, 1)
    if prev.cls == 'mfma':
        P = prev.passes
        tabD = {4: 8, 8: 12}[P]
        if cur.cls == 'mfma':
            if pw & set(cur.ab): n = max(n, tabD)
            if pw & set(cur.srcc):
                if list(prev.wr) == list(cur.srcc) and prev.op == cur.op: pass
                else: n = max(n, {4: 6, 8: 10}[P])
            elif pw & cw:
                n = max(n, tabD)
        else:
            if pw & (cr | cw): n = max(n, tabD)
            if cur.cls == 'valu' and set(prev.srcc) & cw: n = max(n, {4: 3, 8: 7}[P])
    if prev.wide_store_data and (set(prev.wide_store_data) & cw):
        n = max(n, 2)
    if prev.cls == 'salu' and ('s', 124) in pw and cur.cls == 'vmem_lds': n = max(n, 1)
    return n

class Asm:
    def __init__(self):
        self.lines = []
        self.hist = []
        self.nops = 0
        self.count = 0
    def raw(self, s):
        self.lines.append(s)
    def label(self, name):
        self.lines.append(name + ':')
    def comment(self, s):
        self.lines.append('    ; ' + s)
    def reset_hist(self):
        self.hist = []
    def __call__(self, text):
        ins = Ins(text)
        dist = 0; req = 0
        for p in reversed(self.hist):
            r = need(p, ins) - dist
            if r > req: req = r
            dist += p.ws
            if dist > 20: break
        while req > 0:
            k = min(req, 16)
            nop = Ins('s_nop %d' % (k - 1))
            self.lines.append('    s_nop %d' % (k - 1))
            self.hist.append(nop); self.nops += 1; self.count += 1
            req -= k
        self.lines.append('    ' + text)
        self.hist.append(ins)
        self.count += 1
        if len(self.hist) > 40: self.hist = self.hist[-40:]
    def text(self):
        return '\n'.join(self.lines) + '\n'

def vr(base, n=1, k='v'):
    return f'{k}{base}' if n == 1 else f'{k}[{base}:{base+n-1}]'
def ar(base, n=1): return vr(base, n, 'a')
def sr(base, n=1): return vr(base, n, 's')

def kernel_desc(name, vgpr, sgpr, accum):
    return f'''.amdhsa_kernel {name}
  .amdhsa_next_free_vgpr {vgpr}
  .amdhsa_next_free_sgpr {sgpr}
  .amdhsa_accum_offset {accum}
  .amdhsa_group_segment_fixed_size 0
  .amdhsa_kernarg_size 104
  .amdhsa_user_sgpr_count 2
  .amdhsa_user_sgpr_kernarg_segment_ptr 1
  .amdhsa_system_sgpr_workgroup_id_x 1
.end_amdhsa_kernel
'''

class Cnt:
    def __init__(self, a, name, maxv):
        self.a = a; self.name = name; self.maxv = maxv; self.q = []
    def issue(self, tag, n=1):
        self.q.extend([tag] * n)
    def wait(self, tag):
        idx = [i for i, t in enumerate(self.q) if t == tag]
        if not idx: return
        last = idx[-1]
        n = len(self.q) - 1 - last
        n = min(n, self.maxv)
        self.a(f's_waitcnt {self.name}({n})')
        self.q = self.q[len(self.q) - n:] if n else []
    def wait_all(self):
        self.a(f's_waitcnt {self.name}(0)')
        self.q = []
import struct
def fbits(x): return '0x%08x' % struct.unpack('<I', struct.pack('<f', x))[0]
```

```python
from asmlib import *
from layout import *

XP = 1344
G_OFF = 64 * XP
G_E1 = 4112
LDS_A = G_OFF + 8 * G_E1

def stamp(a, idx, on):
    if on: a(f's_memrealtime s[{60+2*idx}:{61+2*idx}]')

def write_stamps(a, n, kidx, s_w):
    a('s_waitcnt vmcnt(0) lgkmcnt(0)')
    a(f's_memrealtime s[{60+2*(n-1)}:{61+2*(n-1)}]')
    a('s_waitcnt lgkmcnt(0)')
    a(f's_lshl_b32 s40, s2, 2'); a(f's_add_u32 s40, s40, s{s_w}'); a('s_lshl_b32 s40, s40, 5'); a(f's_add_u32 s40, s40, {STAMP_OFF + kidx*0x10000}')
    for i in range(8):
        a(f'v_mov_b32 v{16+i}, s{60+2*min(i,n-1)}')
    a('v_mov_b32 v24, 0')
    a('s_mov_b64 exec, 1')
    a('buffer_store_dwordx4 v[16:19], v24, s[12:15], s40 offen')
    a('buffer_store_dwordx4 v[20:23], v24, s[12:15], s40 offen offset:16')

def gen_kA(a, name, stamps=False):
    a.raw(f'.globl {name}\n.p2align 8\n.type {name},@function\n{name}:')
    a.reset_hist()
    a('s_cmp_ge_u32 s2, 256')
    a(f's_cbranch_scc1 {name}_end')
    stamp(a, 0, stamps)
    a('s_load_dwordx2 s[4:5], s[0:1], 0')
    a('s_load_dwordx2 s[6:7], s[0:1], 96')
    a('s_load_dwordx2 s[16:17], s[0:1], 48')
    a('s_load_dwordx2 s[18:19], s[0:1], 64')
    a('v_lshrrev_b32 v1, 6, v0')
    a('v_and_b32 v2, 63, v0')
    a('v_readfirstlane_b32 s22, v1')
    a('s_and_b32 s24, s2, 7')
    a('s_lshr_b32 s25, s2, 3')
    a('s_cmp_lt_u32 s25, 20')
    a(f's_cbranch_scc1 {name}_fft_norm')
    a('s_cmp_ge_u32 s25, 25')
    a(f's_cbranch_scc1 {name}_pack_hi')
    a('s_cmp_eq_u32 s24, 0')
    a(f's_cbranch_scc0 {name}_pack_lo')
    a('s_mov_b32 s20, 32')
    a('s_sub_u32 s21, s25, 20')
    a(f's_branch {name}_fft')
    a.label(f'{name}_fft_norm')
    a('s_mul_i32 s26, s25, 52')
    a('s_lshr_b32 s26, s26, 8')
    a('s_mul_i32 s27, s26, 5')
    a('s_sub_u32 s21, s25, s27')
    a('s_lshl_b32 s20, s24, 2')
    a('s_add_u32 s20, s20, s26')
    a.label(f'{name}_fft')
    a.reset_hist()
    vm = Cnt(a, 'vmcnt', 63); lg = Cnt(a, 'lgkmcnt', 15)
    a('v_lshrrev_b32 v3, 2, v2')
    a('v_and_b32 v4, 3, v2')
    a('v_and_b32 v5, 7, v3')
    a('v_lshl_add_u32 v5, v1, 3, v5')
    a('v_lshlrev_b32 v5, 6, v5')
    a('v_add_u32 v5, s20, v5')
    a('v_sub_u32 v6, 0x800, v5')
    a('v_and_b32 v6, 0x7ff, v6')
    a('v_cmp_gt_u32 vcc, 8, v3')
    a('v_cndmask_b32 v5, v6, v5, vcc')
    a('v_mul_u32_u24 v5, 1280, v5')
    a('v_lshl_add_u32 v5, v4, 4, v5')
    a('v_lshl_add_u32 v6, v1, 4, v3')
    a(f'v_mul_u32_u24 v6, {XP}, v6')
    a('v_lshl_add_u32 v6, v4, 4, v6')
    a('s_waitcnt lgkmcnt(0)')
    a('s_mov_b32 s8, s4'); a('s_mov_b32 s9, s5'); a(f's_mov_b32 s10, {S*D*2}'); a('s_mov_b32 s11, 0x20000')
    a('s_mov_b32 s12, s6'); a('s_mov_b32 s13, s7'); a(f's_mov_b32 s14, {WS_USED + (0x100000 if stamps else 0)}'); a('s_mov_b32 s15, 0x20000')
    X = 100
    for jj in range(20):
        a(f'buffer_load_dwordx4 {vr(X+4*jj,4)}, v5, s[8:11], 0 offen offset:{64*jj}')
        vm.issue(('x', jj))
    a('v_and_b32 v7, 15, v2')
    a('v_lshrrev_b32 v8, 4, v2')
    a('v_lshlrev_b32 v9, 2, v8')
    a('v_cvt_f32_u32 v9, v9')
    BA = 20; BA2 = 24; CSUM = 26; BB = 28; BM = 44; BCc = 60; BCs = 64; T = 70
    a('s_lshl_b32 s26, s21, 3')
    a('s_add_u32 s26, s26, 1')
    a('v_and_b32 v10, 7, v7')
    a('v_add_u32 v10, s26, v10')
    a('v_cvt_f32_u32 v10, v10')
    a(f'v_mul_f32 v10, {fbits(1/40)}, v10')
    a('v_lshrrev_b32 v11, 3, v7')
    a('v_cvt_f32_u32 v11, v11')
    a(f'v_mul_f32 v11, {fbits(0.25)}, v11')
    a('v_fma_f32 v11, v10, v9, v11')
    cj = [0,1,2,3,16,17,18,19,32,33,34,35]
    for j, c in enumerate(cj):
        a(f'v_fmamk_f32 v{T+j}, v10, {fbits(float(c))}, v11')
    for j in range(12):
        a(f'v_cos_f32 v{T+j}, v{T+j}')
    for j in range(6):
        a(f'v_cvt_pk_bf16_f32 v{BA+j}, v{T+2*j}, v{T+2*j+1}')
    a('v_cmp_gt_u32 vcc, 2, v8')
    a(f'v_cndmask_b32 v{BA2}, 0, v{BA2}, vcc')
    a(f'v_cndmask_b32 v{BA2+1}, 0, v{BA2+1}, vcc')
    ONES = 84
    for j in range(4): a(f'v_mov_b32 v{ONES+j}, 0x3f803f80')
    a(f'v_mfma_f32_16x16x32_bf16 v[88:91], {vr(ONES,4)}, {vr(BA,4)}, 0')
    a(f'v_mfma_f32_16x16x16_bf16 v[88:91], {vr(ONES,2)}, {vr(BA2,2)}, v[88:91]')
    a('s_and_b32 s27, s22, 1')
    a('s_lshl_b32 s28, s27, 2')
    a('s_add_u32 s28, s28, s26')
    a('v_lshrrev_b32 v10, 1, v7')
    a('v_mul_u32_u24 v10, 40, v10')
    a('v_add_u32 v10, s28, v10')
    a('v_and_b32 v11, 1, v7')
    a('v_cvt_f32_u32 v12, v11')
    a(f'v_mul_f32 v12, {fbits(0.25)}, v12')
    a('v_mov_b32 v13, 0x80008000')
    a('v_mul_lo_u32 v13, v13, v11')
    a(f'v_mov_b32 v{CSUM}, v88')
    for q in range(4):
        a(f'v_add_u32 v14, {q}, v10')
        a('v_cvt_f32_u32 v14, v14')
        a(f'v_mul_f32 v14, {fbits(1/640)}, v14')
        a('v_fma_f32 v15, v14, v9, v12')
        for r in range(4):
            if r == 0: a(f'v_mov_b32 v{T}, v15')
            else: a(f'v_fmamk_f32 v{T+r}, v14, {fbits(float(r))}, v15')
        for r in range(4):
            a(f'v_sin_f32 v{T+4+r}, v{T+r}')
        for r in range(4):
            a(f'v_cos_f32 v{T+r}, v{T+r}')
        for j in range(4):
            a(f'v_cvt_pk_f16_f32 v{BB+4*q+j}, v{T+2*j}, v{T+2*j+1}')
        for j in range(4):
            a(f'v_xor_b32 v{BM+4*q+j}, v13, v{BB+4*q+j}')
    a('s_lshr_b32 s29, s22, 1')
    a('s_lshl_b32 s30, s29, 4')
    a('v_add_u32 v10, s30, v7')
    a('v_cvt_f32_u32 v10, v10')
    a(f'v_mul_f32 v10, {fbits(1/32)}, v10')
    a('s_cmp_eq_u32 s20, 32')
    a(f's_cselect_b32 s31, {fbits(0.5)}, 0')
    a('v_add_f32 v11, s31, v9')
    a('v_mul_f32 v11, v10, v11')
    for j, c in enumerate(cj[:8]):
        a(f'v_fmamk_f32 v{T+j}, v10, {fbits(float(c))}, v11')
    for j in range(8):
        a(f'v_sin_f32 v{T+8+j}, v{T+j}')
    for j in range(8):
        a(f'v_cos_f32 v{T+j}, v{T+j}')
    for j in range(4):
        a(f'v_cvt_pk_f16_f32 v{BCc+j}, v{T+2*j}, v{T+2*j+1}')
        a(f'v_cvt_pk_f16_f32 v{BCs+j}, v{T+8+2*j}, v{T+8+2*j+1}')
    a(f's_mul_i32 s32, s22, {16*XP}')
    a('v_lshlrev_b32 v10, 3, v2')
    a('v_add_u32 v10, s32, v10')
    a('v_and_b32 v11, 31, v2')
    a('v_lshlrev_b32 v11, 3, v11')
    a('v_add_u32 v11, s32, v11')
    a('v_and_b32 v12, 7, v7')
    a(f'v_mul_u32_u24 v12, {G_E1}, v12')
    a('v_lshl_add_u32 v12, v8, 8, v12')
    a('v_lshrrev_b32 v13, 3, v7')
    a('v_lshl_add_u32 v12, v13, 3, v12')
    a('s_lshl_b32 s33, s29, 10'); a('s_lshl_b32 s34, s27, 7'); a('s_add_u32 s33, s33, s34'); a(f's_add_u32 s33, s33, {G_OFF}')
    a('v_add_u32 v12, s33, v12')
    a(f's_mul_i32 s34, s27, {4*G_E1}'); a(f's_add_u32 s34, s34, {G_OFF}')
    a('v_lshlrev_b32 v13, 4, v2')
    a('v_add_u32 v13, s34, v13')
    a('v_mul_u32_u24 v14, 144, v7')
    a('v_lshl_add_u32 v14, v8, 5, v14')
    a('v_add_u32 v14, s32, v14')
    a('v_lshrrev_b32 v16, 5, v2')
    a('v_mul_u32_u24 v15, 144, v16')
    a('v_and_b32 v17, 31, v2')
    a('v_lshl_add_u32 v15, v17, 2, v15')
    a('v_add_u32 v15, s32, v15')
    a(f'v_mul_u32_u24 v16, {U_T1}, v16')
    a('v_lshrrev_b32 v17, 2, v17')
    a('v_mul_u32_u24 v17, 40, v17')
    a('v_add_u32 v17, v17, v4')
    a('v_lshl_add_u32 v16, v17, 4, v16')
    a('s_and_b32 s35, s20, 31')
    a('s_lshr_b32 s36, s35, 2'); a('s_mul_i32 s36, s36, 5120')
    a('s_and_b32 s37, s35, 3'); a('s_lshl_b32 s37, s37, 2'); a('s_add_u32 s36, s36, s37')
    a('s_lshr_b32 s37, s20, 4'); a('s_and_b32 s37, s37, 2'); a('s_add_u32 s36, s36, s37')
    a('s_sub_u32 s37, s28, 1'); a('s_lshl_b32 s37, s37, 4'); a('s_add_u32 s36, s36, s37')
    a(f's_mul_i32 s37, s30, {U_T1}'); a('s_add_u32 s36, s36, s37')
    if U_OFF: a(f's_add_u32 s36, s36, {U_OFF}')
    SA = 92
    for j in range(4): a(f'v_mov_b32 v{SA+j}, 0')
    a('v_mov_b32 v84, 0x3f803f80')
    stamp(a, 1, stamps)
    for jj in range(20):
        vm.wait(('x', jj))
        a(f'ds_write_b128 v6, {vr(X+4*jj,4)} offset:{64*jj}')
        lg.issue('xw')
        for r in range(4):
            a(f'v_dot2c_f32_bf16 v{SA+(r&1)}, v{X+4*jj+r}, v84')
            a(f'v_dot2c_f32_bf16 v{SA+2+(r&1)}, v{X+4*jj+r}, v{X+4*jj+r}')
    stamp(a, 2, stamps)
    FR = 180
    NR = 12
    D1 = 100
    def tr(rho):
        b = FR + (rho % NR) * 6
        a(f'ds_read_b64_tr_b16 {vr(b,2)}, v10 offset:{rho*XP}')
        a(f'ds_read_b64_tr_b16 {vr(b+2,2)}, v10 offset:{rho*XP+512}')
        a(f'ds_read_b64_tr_b16 {vr(b+4,2)}, v11 offset:{rho*XP+1024}')
        lg.issue(('tr', rho), 3)
    for rho in range(4): tr(rho)
    a(f'v_add_f32 v{SA}, v{SA}, v{SA+1}')
    a(f'v_add_f32 v{SA+2}, v{SA+2}, v{SA+3}')
    for perm in ('[1,0,3,2]', '[2,3,0,1]'):
        a(f'v_add_f32_dpp v{SA}, v{SA}, v{SA} quad_perm:{perm} row_mask:0xf bank_mask:0xf')
        a(f'v_add_f32_dpp v{SA+2}, v{SA+2}, v{SA+2} quad_perm:{perm} row_mask:0xf bank_mask:0xf')
    a(f'v_mul_f32 v{SA}, {fbits(1/640)}, v{SA}')
    a(f'v_mul_f32 v{SA+2}, {fbits(1/640)}, v{SA+2}')
    a(f'v_fma_f32 v{SA+2}, -v{SA}, v{SA}, v{SA+2}')
    a(f'v_max_f32 v{SA+2}, 0, v{SA+2}')
    a(f'v_add_f32 v{SA+2}, {fbits(1e-5)}, v{SA+2}')
    a(f'v_rsq_f32 v{SA+2}, v{SA+2}')
    a(f'v_mul_f32 v{SA}, v{SA}, v{SA+2}')
    lg.wait('xw')
    def mm(rho):
        b = FR + (rho % NR) * 6
        lg.wait(('tr', rho))
        a(f'v_mfma_f32_16x16x32_bf16 {vr(D1+4*rho,4)}, {vr(b,4)}, {vr(BA,4)}, 0')
        a(f'v_mfma_f32_16x16x16_bf16 {vr(D1+4*rho,4)}, {vr(b+4,2)}, {vr(BA2,2)}, {vr(D1+4*rho,4)}')
    def fin(rho):
        d = D1 + 4 * rho
        sp = 44 + 2 * (rho & 1)
        tb = 96 + 2 * (rho & 1)
        a(f'v_readlane_b32 s{sp}, v{SA+2}, {4*rho}')
        a(f'v_readlane_b32 s{sp+1}, v{SA}, {4*rho}')
        return d, sp, tb
    def fin2(rho, d, sp, tb):
        a(f'v_mul_f32 v{tb}, s{sp+1}, v{CSUM}')
        a(f'v_pk_fma_f32 {vr(d,2)}, {vr(d,2)}, {sr(sp,2)}, {vr(tb,2)} op_sel_hi:[1,0,0] neg_lo:[0,0,1] neg_hi:[0,0,1]')
        a(f'v_pk_fma_f32 {vr(d+2,2)}, {vr(d+2,2)}, {sr(sp,2)}, {vr(tb,2)} op_sel_hi:[1,0,0] neg_lo:[0,0,1] neg_hi:[0,0,1]')
        a(f'v_cvt_pk_f16_f32 v{d}, v{d}, v{d+1}')
        a(f'v_cvt_pk_f16_f32 v{d+1}, v{d+2}, v{d+3}')
        off = rho * 16 if rho < 8 else 2048 + (rho - 8) * 16
        a(f'ds_write_b64 v12, {vr(d,2)} offset:{off}')
        lg.issue('gw')
    mm(0); mm(1)
    for rho in range(16):
        if rho + 4 < 16: tr(rho + 4)
        st = fin(rho)
        if rho + 2 < 16: mm(rho + 2)
        fin2(rho, *st)
    lg.wait_all()
    stamp(a, 3, stamps)
    a('s_barrier')
    AF = 100
    for q in range(4):
        for rt in range(4):
            a(f'ds_read_b128 {vr(AF+(q*4+rt)*4,4)}, v13 offset:{q*G_E1+rt*1024}')
            lg.issue(('af', q))
    D2 = 180
    for q in range(4):
        lg.wait(('af', q))
        for h in range(2):
            a(f'v_mfma_f32_16x16x32_f16 {vr(D2+q*8+h*4,4)}, {vr(AF+(q*4+h)*4,4)}, {vr(BB+4*q,4)}, 0')
        for h in range(2):
            a(f'v_mfma_f32_16x16x32_f16 {vr(D2+q*8+h*4,4)}, {vr(AF+(q*4+2+h)*4,4)}, {vr(BM+4*q,4)}, {vr(D2+q*8+h*4,4)}')
    ZF = 212
    D3 = 100
    for q in range(4):
        for j in range(4):
            a(f'v_cvt_pk_f16_f32 v{ZF+4*q+j}, v{D2+q*8+2*j}, v{D2+q*8+2*j+1}')
    for q in range(4):
        a(f'v_mfma_f32_16x16x32_f16 {vr(D3+q*8,4)}, {vr(ZF+4*q,4)}, {vr(BCc,4)}, 0')
        a(f'v_mfma_f32_16x16x32_f16 {vr(D3+q*8+4,4)}, {vr(ZF+4*q,4)}, {vr(BCs,4)}, 0')
    Q = 140
    for q in range(4):
        c = D3 + q * 8; s_ = c + 4
        for e in range(2):
            a(f'v_add_f32 v{c+2*e}, v{c+2*e}, v{s_+2*e+1}')
            a(f'v_sub_f32 v{c+2*e+1}, v{c+2*e+1}, v{s_+2*e}')
            a(f'v_cvt_pk_f16_f32 v{Q+4*e+q}, v{c+2*e}, v{c+2*e+1}')
    a(f'ds_write_b128 v14, {vr(Q,4)}')
    a(f'ds_write_b128 v14, {vr(Q+4,4)} offset:16')
    O = 150
    for i in range(8):
        a(f'ds_read_b32 v{O+i}, v15 offset:{2*i*144}')
        lg.issue(('o', i))
    stamp(a, 4, stamps)
    a('s_cmp_eq_u32 s35, 0')
    a(f's_cbranch_scc1 {name}_short')
    for i in range(8):
        a(f's_waitcnt lgkmcnt({7-i})')
        a(f'buffer_store_dword v{O+i}, v16, s[12:15], s36 offen')
        if i < 7: a(f's_add_u32 s36, s36, {2*U_T1}')
    a(f's_branch {name}_fin')
    a.label(f'{name}_short')
    for i in range(8):
        a(f's_waitcnt lgkmcnt({7-i})')
        a(f'buffer_store_short v{O+i}, v16, s[12:15], s36 offen')
        if i < 7: a(f's_add_u32 s36, s36, {2*U_T1}')
    a(f's_branch {name}_fin')

    a.label(f'{name}_pack_lo')
    a.reset_hist()
    a('s_sub_u32 s26, s25, 20'); a('s_mul_i32 s26, s26, 7'); a('s_add_u32 s26, s26, s24'); a('s_sub_u32 s26, s26, 1')
    a(f's_branch {name}_pack')
    a.label(f'{name}_pack_hi')
    a('s_sub_u32 s26, s2, 165')
    a.label(f'{name}_pack')
    a('s_waitcnt lgkmcnt(0)')
    a('s_mov_b32 s12, s6'); a('s_mov_b32 s13, s7'); a(f's_mov_b32 s14, {WS_USED + (0x100000 if stamps else 0)}'); a('s_mov_b32 s15, 0x20000')
    a('s_cmp_ge_u32 s26, 80')
    a(f's_cbranch_scc1 {name}_end')
    a('v_and_b32 v7, 15, v2')
    a('v_lshrrev_b32 v8, 4, v2')
    a('v_lshrrev_b32 v9, 2, v7')
    a('v_and_b32 v4, 3, v2')
    a('v_lshlrev_b32 v3, 4, v2')
    a('s_cmp_ge_u32 s26, 48')
    a(f's_cbranch_scc1 {name}_pack_w2')
    a('s_mov_b32 s8, s16'); a('s_mov_b32 s9, s17'); a(f's_mov_b32 s10, {D*F*2}'); a('s_mov_b32 s11, 0x20000')
    a('v_lshrrev_b32 v5, 2, v2')
    a('v_mul_u32_u24 v5, 3072, v5')
    a('v_lshl_add_u32 v5, v4, 4, v5')
    a(f's_mul_i32 s27, s22, {160*3072}'); a('s_lshl_b32 s28, s26, 6'); a('s_add_u32 s27, s27, s28')
    a('s_mul_i32 s29, s22, 10240')
    a('s_mov_b32 m0, s29')
    for i in range(10):
        a('buffer_load_dwordx4 v5, s[8:11], s27 offen lds')
        if i < 9:
            a(f's_add_u32 s27, s27, {16*3072}')
            a('s_add_u32 m0, m0, 1024')
    a('v_lshl_add_u32 v6, v8, 3, v9')
    a('v_lshlrev_b32 v6, 6, v6')
    a('v_lshl_add_u32 v6, v4, 3, v6')
    a('v_add_u32 v6, s29, v6')
    for j in range(4): a(f'v_mov_b32 v{12+j}, 0x3f803f80')
    for tl in range(2):
        d = 30 + tl
        a('s_lshl_b32 s32, s26, 1'); a(f's_add_u32 s32, s32, {tl}')
        a('s_mul_i32 s33, s32, 43'); a('s_lshr_b32 s33, s33, 9')
        a('s_mul_i32 s34, s33, 12'); a('s_sub_u32 s34, s32, s34')
        a('s_lshr_b32 s35, s34, 1'); a('s_sub_u32 s36, s34, 8')
        a('s_cmp_lt_u32 s34, 8')
        a('s_cselect_b32 s35, s35, s36')
        a(f's_cselect_b32 s36, {tl}, 2')
        a('s_lshl_b32 s33, s33, 2'); a('s_add_u32 s33, s33, s35'); a('s_mul_i32 s33, s33, 20')
        a('s_mul_i32 s35, s22, 5'); a('s_add_u32 s33, s33, s35')
        a('s_mul_i32 s33, s33, 3'); a('s_add_u32 s33, s33, s36'); a('s_lshl_b32 s33, s33, 10')
        a(f's_add_u32 s{d}, s33, {W1P_OFF}')
    FRG = 20
    for ks in range(5):
        a(f's_waitcnt vmcnt({8-2*ks})')
        for tl in range(2):
            b = FRG + (ks*2+tl)*4
            a(f'ds_read_b64_tr_b16 {vr(b,2)}, v6 offset:{ks*2048+tl*32}')
            a(f'ds_read_b64_tr_b16 {vr(b+2,2)}, v6 offset:{ks*2048+tl*32+256}')
    for ks in range(5):
        a(f's_waitcnt lgkmcnt({min(15,16-4*ks)})')
        for tl in range(2):
            b = FRG + (ks*2+tl)*4
            a(f'buffer_store_dwordx4 {vr(b,4)}, v3, s[12:15], s{30+tl} offen')
            if ks < 4: a(f's_add_u32 s{30+tl}, s{30+tl}, 3072')
            c = '0' if ks == 0 else vr(60+4*tl,4)
            a(f'v_mfma_f32_16x16x32_bf16 {vr(60+4*tl,4)}, {vr(b,4)}, v[12:15], {c}')
    a('v_lshlrev_b32 v10, 4, v8')
    a('v_cmp_eq_u32 vcc, 0, v7')
    a('v_mov_b32 v11, 0x7fffffff')
    a('v_cndmask_b32 v10, v11, v10, vcc')
    a('s_mul_i32 s32, s22, 6144'); a('s_lshl_b32 s33, s26, 7'); a('s_add_u32 s32, s32, s33'); a(f's_add_u32 s32, s32, {CS_OFF}')
    a('buffer_store_dwordx4 v[60:63], v10, s[12:15], s32 offen')
    a('buffer_store_dwordx4 v[64:67], v10, s[12:15], s32 offen offset:64')
    a(f's_branch {name}_fin')
    a.label(f'{name}_pack_w2')
    a.reset_hist()
    a('s_mov_b32 s8, s18'); a('s_mov_b32 s9, s19'); a(f's_mov_b32 s10, {D*F*2}'); a('s_mov_b32 s11, 0x20000')
    for i in range(5):
        a(f'v_add_u32 v10, {64*i}, v2')
        a('v_mul_u32_u24 v11, 205, v10'); a('v_lshrrev_b32 v11, 11, v11')
        a('v_mul_u32_u24 v12, 10, v11'); a('v_sub_u32 v12, v10, v12')
        a('v_mul_u32_u24 v11, 1280, v11')
        a(f'v_lshl_add_u32 v{14+i}, v12, 4, v11')
    a('s_sub_u32 s27, s26, 48'); a('s_mul_i32 s27, s27, 12'); a('s_mul_i32 s28, s22, 3'); a('s_add_u32 s27, s27, s28')
    a('s_mul_i32 s29, s22, 15360')
    a('s_mov_b32 m0, s29')
    for blk in range(3):
        a(f's_add_u32 s32, s27, {blk}')
        a('s_lshr_b32 s33, s32, 3'); a('s_and_b32 s34, s32, 7')
        a(f's_mul_i32 s35, s33, {32*1280}'); a('s_mul_i32 s36, s34, 160'); a('s_add_u32 s35, s35, s36')
        a('s_mul_i32 s36, s34, 48'); a('s_add_u32 s36, s36, s33'); a('s_mul_i32 s36, s36, 5120'); a(f's_add_u32 s{40+blk}, s36, {W2P_OFF}')
        for i in range(5):
            a(f'buffer_load_dwordx4 v{14+i}, s[8:11], s35 offen lds')
            if not (blk == 2 and i == 4): a('s_add_u32 m0, m0, 1024')
    a('v_lshl_add_u32 v5, v8, 2, v9')
    a('v_mul_u32_u24 v5, 160, v5')
    a('v_add_u32 v5, s29, v5')
    a('v_lshl_add_u32 v6, v4, 3, v5')
    a('v_lshl_add_u32 v5, v4, 4, v5')
    a('v_add_u32 v13, 0x1000, v3')
    for blk in range(3):
        a(f's_waitcnt vmcnt({10-5*blk + 5*blk})' if False else f's_waitcnt vmcnt({[10,10,10][blk]})')
        for i in range(5):
            b = 20 + (blk*5+i)*4
            if i < 4:
                o = blk*5120 + 8*(i&1) + 64*(i//2); va = 5
            else:
                o = blk*5120 + 128; va = 6
            a(f'ds_read_b64_tr_b16 {vr(b,2)}, v{va} offset:{o}')
            a(f'ds_read_b64_tr_b16 {vr(b+2,2)}, v{va} offset:{o+16*160}')
        for i in range(5):
            b = 20 + (blk*5+i)*4
            a(f's_waitcnt lgkmcnt({8-2*i})')
            if i < 4: a(f'buffer_store_dwordx4 {vr(b,4)}, v3, s[12:15], s{40+blk} offen offset:{1024*i}')
            else: a(f'buffer_store_dwordx4 {vr(b,4)}, v13, s[12:15], s{40+blk} offen')
    a.label(f'{name}_fin')
    if stamps:
        a.reset_hist()
        a('s_nop 7')
        write_stamps(a, 6, 0, 22)
    a.label(f'{name}_end')
    a('s_endpgm')
    return dict(vgpr=256, sgpr=80, accum=256, lds=LDS_A)

if __name__ == '__main__':
    a = Asm()
    a.raw(f'; @launch kernel=ka_kernel grid=(256,1,1) block=(256,1,1) lds={LDS_A}')
    a.raw('.amdgcn_target "amdgcn-amd-amdhsa--gfx950"\n.text')
    info = gen_kA(a, 'ka_kernel', stamps=True)
    a.raw('.section .rodata,"a"\n.p2align 6')
    a.raw(kernel_desc('ka_kernel', info['vgpr'], info['sgpr'], info['accum']))
    open('ka.s', 'w').write(a.text())
    print('instrs', a.count, 'nops', a.nops)
```

```python
from asmlib import *
from layout import *
from kA import stamp, write_stamps

ST_OFF = 81920
LDS_C = ST_OFF + 4096

def emit_rho_t1(a, s_rho, s_t1, s_tmp):
    a(f's_lshr_b32 s{s_t1}, s{s_rho}, 1')
    a(f's_sub_u32 s{s_tmp}, 32, s{s_t1}')
    a(f's_cmp_eq_u32 s{s_rho}, 1')
    a(f's_cselect_b32 s{s_tmp}, 16, s{s_tmp}')
    a(f's_bitcmp1_b32 s{s_rho}, 0')
    a(f's_cselect_b32 s{s_t1}, s{s_tmp}, s{s_t1}')

def emit_map(a, mapping, s_rho, s_j):
    a('s_and_b32 s20, s2, 7')
    a('s_lshr_b32 s21, s2, 3')
    if mapping == 'A':
        a(f's_lshl_b32 s{s_rho}, s20, 2'); a(f's_lshr_b32 s{s_j}, s21, 3'); a(f's_add_u32 s{s_rho}, s{s_rho}, s{s_j}')
        a(f's_and_b32 s{s_j}, s21, 7')
    elif mapping == 'B':
        a(f's_lshr_b32 s{s_rho}, s20, 1'); a(f's_lshl_b32 s{s_rho}, s{s_rho}, 3'); a(f's_lshr_b32 s{s_j}, s21, 2'); a(f's_add_u32 s{s_rho}, s{s_rho}, s{s_j}')
        a(f's_and_b32 s{s_j}, s20, 1'); a(f's_lshl_b32 s{s_j}, s{s_j}, 2'); a('s_and_b32 s21, s21, 3'); a(f's_add_u32 s{s_j}, s{s_j}, s21')

def gen_kC(a, name, mapping='B', stamps=False):
    a.raw(f'.globl {name}\n.p2align 8\n.type {name},@function\n{name}:')
    a.reset_hist()
    a('s_cmp_ge_u32 s2, 256')
    a(f's_cbranch_scc1 {name}_end')
    stamp(a, 0, stamps)
    a('s_load_dwordx2 s[4:5], s[0:1], 0')
    a('s_load_dwordx2 s[6:7], s[0:1], 96')
    a('s_load_dwordx2 s[16:17], s[0:1], 56')
    a('v_lshrrev_b32 v1, 6, v0')
    a('v_and_b32 v2, 63, v0')
    a('v_readfirstlane_b32 s26, v1')
    emit_map(a, mapping, 22, 23)
    emit_rho_t1(a, 22, 24, 25)
    a('s_sub_u32 s25, 32, s24'); a('s_and_b32 s25, s25, 31')
    a('v_and_b32 v3, 15, v2')
    a('v_lshrrev_b32 v4, 4, v2')
    a('v_lshlrev_b32 v5, 4, v2')
    a('v_lshrrev_b32 v6, 2, v2')
    a('v_lshrrev_b32 v7, 3, v2')
    a('v_xor_b32 v7, v7, v2')
    a('v_and_b32 v7, 3, v7')
    a('v_mul_u32_u24 v6, 0xa000, v6')
    a('v_lshl_add_u32 v6, v7, 4, v6')
    a('v_lshrrev_b32 v7, 1, v3')
    a('v_xor_b32 v7, v7, v4')
    a('v_and_b32 v7, 3, v7')
    a('v_lshl_add_u32 v7, v3, 2, v7')
    a('v_lshlrev_b32 v7, 4, v7')
    a('v_add_u32 v8, 0xa000, v7')
    a('s_mul_i32 s27, s26, 20480')
    a('v_add_u32 v9, s27, v7')
    a('v_lshrrev_b32 v10, 2, v3')
    a('v_lshlrev_b32 v10, 3, v10')
    a('v_and_b32 v11, 3, v3')
    a('v_add_u32 v10, v10, v11')
    a('v_sub_u32 v11, 27, v10')
    a('s_cmp_lt_u32 s26, 2')
    a('s_cselect_b64 vcc, -1, 0')
    a('s_cselect_b32 s28, 64, -64')
    a('s_cselect_b32 s30, s24, s25')
    a('s_cselect_b32 s38, 0, 0x80000000')
    a('s_cselect_b32 s39, 0, 1')
    a('s_mul_i32 s29, s28, 7')
    a(f's_or_b32 s38, s38, {fbits(1/2048)}')
    a('s_cmp_eq_u32 s24, 0'); a('s_cselect_b32 s39, 0, s39')
    a('v_cndmask_b32 v10, v11, v10, vcc')
    a('v_mul_u32_u24 v11, 5120, v4')
    a('v_lshl_add_u32 v10, v10, 4, v11')
    a('v_add_u32 v11, 0x5000, v10')
    a(f's_mul_i32 s31, s30, {U_T1}')
    a('s_mul_i32 s32, s26, 2560')
    a(f's_add_u32 s33, s32, {U_OFF - 16}')
    a(f's_sub_u32 s34, {U_OFF + (639-27)*16}, s32')
    a('s_cmp_lt_u32 s26, 2')
    a('s_cselect_b32 s33, s33, s34')
    a('s_add_u32 s31, s31, s33')
    a('v_and_b32 v12, 0xcf, v0')
    a('v_cmp_eq_u32 vcc, 0, v12')
    a('v_mov_b32 v14, 0x7ff00000')
    a('v_cndmask_b32 v12, v10, v14, vcc')
    a('v_cndmask_b32 v13, v11, v14, vcc')
    a('s_mul_i32 s32, s24, 1280'); a('s_mul_i32 s33, s26, 320'); a('s_add_u32 s32, s32, s33')
    for tt in range(1, 4): a(f's_add_u32 s{32+tt}, s32, {tt*512*1280}')
    a('s_lshl_b32 s36, s23, 2'); a('s_add_u32 s36, s36, s26')
    a(f's_mul_i32 s37, s36, {60*1024}'); a(f's_add_u32 s37, s37, {W1P_OFF}')
    a('s_waitcnt lgkmcnt(0)')
    a('s_mov_b32 s8, s4'); a('s_mov_b32 s9, s5'); a(f's_mov_b32 s10, {S*D*2}'); a('s_mov_b32 s11, 0x20000')
    a('s_mov_b32 s12, s6'); a('s_mov_b32 s13, s7'); a(f's_mov_b32 s14, {WS_USED + (0x100000 if stamps else 0)}'); a('s_mov_b32 s15, 0x20000')
    a(f's_mov_b32 s18, {F*2}'); a('s_mov_b32 s19, 0x20000')
    vm = Cnt(a, 'vmcnt', 63); lg = Cnt(a, 'lgkmcnt', 15)
    Q = []
    def q_x(kk, tt):
        def f():
            a(f's_add_u32 m0, s27, {(kk*4+tt)*1024 - 64*kk}')
            a(f'buffer_load_dwordx4 v6, s[8:11], s{32+tt} offen offset:{64*kk} lds')
            vm.issue(('x', kk))
        return f
    def UA(kk, i, ks2): return ((kk*2+i)*2+ks2)*4
    def q_u(kk, i, ks2):
        def f():
            vo = (12 if (kk == 0 and i == 0) else 10) + ks2
            a(f'buffer_load_dwordx4 {ar(UA(kk,i,ks2),4)}, v{vo}, s[12:15], s31 offen')
            vm.issue(('u', kk))
            if ks2 == 1 and not (kk == 4 and i == 1): a(f's_add_u32 s31, s31, s{28 if i == 0 else 29}')
        return f
    def WA(fr): return 80 + fr*4 if fr < 44 else (fr-44)*4
    def q_w(fr):
        def f():
            a(f'buffer_load_dwordx4 {ar(WA(fr),4)}, v5, s[12:15], s37 offen offset:{1024*(fr%4)}')
            vm.issue(('w', fr//3))
            if fr % 4 == 3: a('s_add_u32 s37, s37, 4096')
        return f
    for kk in range(5):
        for tt in range(4): Q.append(q_x(kk, tt))
        for i in range(2):
            for ks2 in range(2): Q.append(q_u(kk, i, ks2))
    for fr in range(44): Q.append(q_w(fr))
    late = [q_w(fr) for fr in range(44, 60)]
    def pump(n=1):
        for _ in range(n):
            if Q: Q.pop(0)()
    class Tick:
        def __init__(s, every): s.every = every; s.c = 0
        def __call__(s, text, wt=1):
            a(text); s.c += wt
            while s.c >= s.every:
                s.c -= s.every; pump()
    pump(4)
    M = 32
    T = 224
    t = Tick(10)
    t('v_lshlrev_b32 v14, 5, v3'); t('v_add_u32 v14, s24, v14')
    t('v_lshlrev_b32 v15, 2, v4'); t('v_cvt_f32_u32 v15, v15')
    t('v_xor_b32 v16, s39, v3'); t('v_lshlrev_b32 v16, 31, v16'); t('v_or_b32 v16, 0x38003800, v16')
    t('v_cmp_eq_u32 vcc, 0, v4')
    cj = [0,1,2,3,16,17,18,19]
    for tt in range(4):
        t(f'v_add_u32 v17, {512*tt}, v14')
        t('v_cvt_f32_u32 v17, v17')
        t('v_mul_f32 v17, s38, v17')
        t(f'v_mul_f32 v{T}, v17, v15')
        for j in range(1, 8): t(f'v_fmamk_f32 v{T+j}, v17, {fbits(float(cj[j]))}, v{T}')
        for j in range(8): t(f'v_sin_f32 v{T+8+j}, v{T+j}', 2)
        for j in range(8): t(f'v_cos_f32 v{T+j}, v{T+j}', 2)
        for j in range(8): t(f'v_cvt_pk_f16_f32 v{M+tt*8+j}, v{T+j}, v{T+8+j}')
        t(f'v_cndmask_b32 v{M+tt*8}, v{M+tt*8}, v16, vcc')
    stamp(a, 1, stamps)
    Y = 64
    def YG(kk, tt): return Y + (kk*4+tt)*8
    def xread(kk):
        vm.wait(('x', kk))
        for tt in range(4):
            a(f'ds_read_b128 {vr(YG(kk,tt)+4,4)}, v9 offset:{(kk*4+tt)*1024}')
            lg.issue(('xr', kk, tt))
    def unpack(kk):
        for tt in range(4):
            b = YG(kk, tt)
            lg.wait(('xr', kk, tt))
            for j in range(4):
                t(f'v_lshlrev_b32 v{b+2*j}, 16, v{b+4+j}')
                t(f'v_and_b32 v{b+2*j+1}, 0xffff0000, v{b+4+j}')
    def mm2(kk):
        vm.wait(('u', kk))
        for ks2 in range(2):
            for tt in range(4):
                for i in range(2):
                    d = vr(YG(kk,tt)+4*i, 4)
                    t(f'v_mfma_f32_16x16x32_f16 {d}, {ar(UA(kk,i,ks2),4)}, {vr(M+tt*8+ks2*4,4)}, {d}', 3)
    def packh(kk):
        for tt in range(4):
            b = YG(kk, tt)
            for j in range(4):
                t(f'v_cvt_pk_bf16_f32 v{b+j}, v{b+2*j}, v{b+2*j+1}')
            t(f'ds_write_b128 v9, {vr(b,4)} offset:{(kk*4+tt)*1024}', 2)
            lg.issue('hw')
    def ensure(tag):
        while tag not in vm.q and Q: pump()
        while vm.q.count(tag) < 4 and Q and tag in vm.q: pump()
    issued_done = set()
    def need_tag(tag):
        while cnt_issued.get(tag, 0) < 4: pump()
    cnt_issued = {}
    _orig = vm.issue
    def issue2(tag, n=1):
        cnt_issued[tag] = cnt_issued.get(tag, 0) + n
        _orig(tag, n)
    for tg in vm.q: cnt_issued[tg] = cnt_issued.get(tg, 0) + 1
    vm.issue = issue2
    need_tag(('x', 0)); xread(0)
    for kk in range(5):
        unpack(kk)
        if kk + 1 < 5:
            need_tag(('x', kk+1)); xread(kk+1)
        need_tag(('u', kk)); mm2(kk)
        if kk > 0: packh(kk-1)
    packh(4)
    Q.extend(late)
    lg.wait_all()
    stamp(a, 2, stamps)
    a('s_barrier')
    stamp(a, 3, stamps)
    BF = 32
    def bread(ks):
        for tt in range(4):
            blk = ks*4+tt
            va, off = (7, blk*1024) if blk < 40 else (8, (blk-40)*1024)
            a(f'ds_read_b128 {vr(BF+(ks&1)*16+tt*4,4)}, v{va} offset:{off}')
            lg.issue(('b', ks))
    def AC(i, tt): return YG((i*4+tt)//4, (i*4+tt)%4) + 4
    bread(0)
    HS = 224
    a('s_cmp_ge_u32 s36, 20')
    a(f's_cbranch_scc1 {name}_nohs')
    a('s_lshl_b32 s40, s36, 12')
    a('v_add_u32 v17, s40, v7')
    for tt in range(4): a(f'ds_read_b128 {vr(HS+4*tt,4)}, v17 offset:{1024*tt}')
    a('s_mul_i32 s41, s22, 20'); a('s_lshl_b32 s41, s41, 12'); a('s_add_u32 s41, s41, s40'); a(f's_add_u32 s41, s41, {H_OFF}')
    a('s_waitcnt lgkmcnt(0)')
    for tt in range(4): a(f'buffer_store_dwordx4 {vr(HS+4*tt,4)}, v5, s[12:15], s41 offen offset:{1024*tt}')
    a.label(f'{name}_nohs')
    SA = 18
    side = []
    for j in range(8): side.append(f'v_mov_b32 v{SA+j}, 0')
    side.append('v_mov_b32 v26, 0x3f803f80')
    for kk in range(5):
        for j in range(4):
            for tt in range(4):
                r = YG(kk, tt) + j
                side.append(f'v_dot2c_f32_bf16 v{SA+tt}, v{r}, v26')
                side.append(f'v_dot2c_f32_bf16 v{SA+4+tt}, v{r}, v{r}')
    B1 = 240
    def CSR(p, i): return YG(3 + (p*3+i)//4, (p*3+i)%4) + 4 if p*3+i < 8 else 224 + (p*3+i-8)*4
    a('s_mul_i32 s42, s23, 12'); a('s_lshl_b32 s43, s26, 1'); a('s_add_u32 s43, s43, s42')
    a('s_add_u32 s44, s42, 8'); a('s_add_u32 s44, s44, s26')
    a('s_lshl_b32 s45, s43, 5'); a('s_lshl_b32 s46, s44, 5')
    a('s_lshl_b32 s47, s43, 6'); a(f's_add_u32 s47, s47, {CS_OFF}')
    a('s_lshl_b32 s48, s44, 6'); a(f's_add_u32 s48, s48, {CS_OFF}')
    a('v_lshlrev_b32 v27, 3, v4')
    a('v_lshlrev_b32 v28, 4, v4')
    def q_b1(i):
        def f():
            so, off = (45, 32*i) if i < 2 else (46, 0)
            a(f'buffer_load_dwordx2 {vr(B1+2*i,2)}, v27, s[16:19], s{so} offen offset:{off}')
            vm.issue('bc')
        return f
    def q_cs(p, i):
        def f():
            so, off = (47, 64*i) if i < 2 else (48, 0)
            a(f'buffer_load_dwordx4 {vr(CSR(p,i),4)}, v28, s[12:15], s{so} offen offset:{off}')
            vm.issue('bc')
            if i == 2 and p < 3:
                a('s_add_u32 s47, s47, 6144'); a('s_add_u32 s48, s48, 6144')
        return f
    for i in range(3): Q.append(q_b1(i))
    for p in range(4):
        for i in range(3): Q.append(q_cs(p, i))
    def sidework(n):
        for _ in range(n):
            if side:
                x = side.pop(0)
                if callable(x): x()
                else: a(x)
    phase2_added = False
    for ks in range(20):
        if ks + 1 < 20: bread(ks + 1)
        while cnt_issued.get(('w', ks), 0) < 3: pump()
        vm.wait(('w', ks))
        lg.wait(('b', ks))
        c = 0
        for i in range(3):
            for tt in range(4):
                d = vr(AC(i,tt), 4)
                a(f'v_mfma_f32_16x16x32_bf16 {d}, {ar(WA(ks*3+i),4)}, {vr(BF+(ks&1)*16+tt*4,4)}, {"0" if ks == 0 else d}')
                sidework(1)
                c += 1
                if c % 4 == 0: pump()
        if ks == 14:
            assert not side, len(side)
            a(f'v_permlane32_swap_b32 v{SA}, v{SA+1}'); a(f'v_permlane32_swap_b32 v{SA+2}, v{SA+3}')
            a(f'v_permlane32_swap_b32 v{SA+4}, v{SA+5}'); a(f'v_permlane32_swap_b32 v{SA+6}, v{SA+7}')
            a(f'v_add_f32 v{SA}, v{SA}, v{SA+1}'); a(f'v_add_f32 v{SA+2}, v{SA+2}, v{SA+3}')
            a(f'v_add_f32 v{SA+4}, v{SA+4}, v{SA+5}'); a(f'v_add_f32 v{SA+6}, v{SA+6}, v{SA+7}')
            a(f'v_permlane16_swap_b32 v{SA}, v{SA+2}'); a(f'v_permlane16_swap_b32 v{SA+4}, v{SA+6}')
            a(f'v_add_f32 v{SA}, v{SA}, v{SA+2}'); a(f'v_add_f32 v{SA+1}, v{SA+4}, v{SA+6}')
            a('v_lshlrev_b32 v29, 3, v2')
            a(f'v_add_u32 v29, {ST_OFF}, v29')
            a('s_lshl_b32 s40, s26, 9')
            a('v_add_u32 v30, s40, v29')
            a(f'ds_write_b64 v30, {vr(SA,2)}')
            lg.issue('stw')
        if ks == 15:
            lg.wait('stw')
            a('s_barrier')
            for w in range(4):
                a(f'ds_read_b64 {vr(SA+2*w,2)}, v29 offset:{512*w}')
                lg.issue('str')
        if ks == 16:
            lg.wait('str')
            a(f'v_pk_add_f32 {vr(SA,2)}, {vr(SA,2)}, {vr(SA+2,2)}')
            a(f'v_pk_add_f32 {vr(SA+4,2)}, {vr(SA+4,2)}, {vr(SA+6,2)}')
            a(f'v_pk_add_f32 {vr(SA,2)}, {vr(SA,2)}, {vr(SA+4,2)}')
            a(f'v_mul_f32 v{SA}, {fbits(1/640)}, v{SA}')
            a(f'v_mul_f32 v{SA+1}, {fbits(1/640)}, v{SA+1}')
            a(f'v_fma_f32 v{SA+1}, -v{SA}, v{SA}, v{SA+1}')
            a(f'v_max_f32 v{SA+1}, 0, v{SA+1}')
            a(f'v_add_f32 v{SA+1}, {fbits(1e-5)}, v{SA+1}')
            a(f'v_rsq_f32 v{SA+1}, v{SA+1}')
            a(f'v_mul_f32 v{SA}, v{SA}, v{SA+1}')
            a(f'ds_write_b64 v30, {vr(SA,2)} offset:2048')
            lg.issue('stw2')
            a('v_lshlrev_b32 v31, 3, v3')
            a('v_add_u32 v31, s40, v31')
            a(f'v_add_u32 v31, {ST_OFF}, v31')
            gm = [0, 2, 1, 3]
            for tt in range(4):
                a(f'ds_read_b64 {vr(SA+2*tt,2)}, v31 offset:{2048+gm[tt]*128}')
                lg.issue('str2')
            while Q: pump()
            vm.wait('bc')
            for i in range(3):
                for h in range(2):
                    side.append(f'v_pk_add_f32 {vr(CSR(0,i)+2*h,2)}, {vr(CSR(0,i)+2*h,2)}, {vr(CSR(1,i)+2*h,2)}')
                    side.append(f'v_pk_add_f32 {vr(CSR(2,i)+2*h,2)}, {vr(CSR(2,i)+2*h,2)}, {vr(CSR(3,i)+2*h,2)}')
                for h in range(2):
                    side.append(f'v_pk_add_f32 {vr(CSR(0,i)+2*h,2)}, {vr(CSR(0,i)+2*h,2)}, {vr(CSR(2,i)+2*h,2)}')
            for i in range(3):
                for h in range(2):
                    side.append(f'v_lshlrev_b32 v{CSR(1,i)+2*h}, 16, v{B1+2*i+h}')
                    side.append(f'v_and_b32 v{CSR(1,i)+2*h+1}, 0xffff0000, v{B1+2*i+h}')
    sidework(100)
    lg.wait('str2')
    stamp(a, 4, stamps)
    a('s_mul_i32 s41, s22, 48'); a('s_mul_i32 s42, s23, 6'); a('s_add_u32 s41, s41, s42')
    a('s_add_u32 s42, s41, s26'); a('s_lshl_b32 s42, s42, 12'); a(f's_add_u32 s42, s42, {R_OFF}')
    a('s_lshr_b32 s43, s26, 1'); a('s_add_u32 s43, s43, s41'); a('s_add_u32 s43, s43, 4'); a('s_lshl_b32 s43, s43, 12')
    a('s_and_b32 s44, s26, 1'); a('s_lshl_b32 s44, s44, 3'); a('s_add_u32 s43, s43, s44'); a(f's_add_u32 s43, s43, {R_OFF}')
    for tt in range(4):
        o = YG(0, tt)
        o2 = YG(1, tt)
        tm = YG(2, tt)
        for i in range(3):
            ac = AC(i, tt)
            for h in range(2):
                a(f'v_pk_fma_f32 {vr(tm+2*h,2)}, {vr(CSR(0,i)+2*h,2)}, {vr(SA+2*tt,2)}, {vr(CSR(1,i)+2*h,2)} op_sel_hi:[1,0,1] neg_lo:[0,1,0] neg_hi:[0,1,0]')
            for h in range(2):
                a(f'v_pk_fma_f32 {vr(ac+2*h,2)}, {vr(ac+2*h,2)}, {vr(SA+2*tt,2)}, {vr(tm+2*h,2)} op_sel:[0,1,0] op_sel_hi:[1,1,1]')
            for r in range(4): a(f'v_max_f32 v{ac+r}, 0, v{ac+r}')
            for h in range(2): a(f'v_pk_mul_f32 {vr(ac+2*h,2)}, {vr(ac+2*h,2)}, {vr(ac+2*h,2)}')
            dst = o + 2*i if i < 2 else o2
            for h in range(2): a(f'v_cvt_pk_bf16_f32 v{dst+h}, v{ac+2*h}, v{ac+2*h+1}')
        a(f'buffer_store_dwordx4 {vr(o,4)}, v5, s[12:15], s42 offen offset:{1024*tt}')
        a(f'buffer_store_dwordx2 {vr(o2,2)}, v5, s[12:15], s43 offen offset:{1024*tt}')
    if stamps:
        write_stamps(a, 6, 1, 26)
    a.label(f'{name}_end')
    a('s_endpgm')
    return dict(vgpr=512, sgpr=80, accum=256, lds=LDS_C)

if __name__ == '__main__':
    a = Asm()
    a.raw(f'; @launch kernel=kc_kernel grid=(256,1,1) block=(256,1,1) lds={LDS_C}')
    a.raw('.amdgcn_target "amdgcn-amd-amdhsa--gfx950"\n.text')
    info = gen_kC(a, 'kc_kernel', stamps=True)
    a.raw('.section .rodata,"a"\n.p2align 6')
    a.raw(kernel_desc('kc_kernel', info['vgpr'], info['sgpr'], info['accum']))
    open('kc.s', 'w').write(a.text())
    print('instrs', a.count, 'nops', a.nops)
```

```python
from asmlib import *
from layout import *
from kA import stamp, write_stamps
from kC import emit_rho_t1, emit_map
LDS_D = 61440

def gen_kD(a, name, mapping='B', stamps=False, pre=3):
    a.raw(f'.globl {name}\n.p2align 8\n.type {name},@function\n{name}:')
    a.reset_hist()
    a('s_cmp_ge_u32 s2, 256')
    a(f's_cbranch_scc1 {name}_end')
    stamp(a, 0, stamps)
    a('s_load_dwordx2 s[4:5], s[0:1], 96')
    a('s_load_dwordx4 s[8:11], s[0:1], 72')
    emit_map(a, mapping, 22, 23)
    emit_rho_t1(a, 22, 24, 25)
    a('v_lshrrev_b32 v1, 6, v0')
    a('v_and_b32 v2, 63, v0')
    a('v_readfirstlane_b32 s26, v1')
    a('v_lshlrev_b32 v3, 4, v2')
    for u in range(4):
        a(f'v_add_u32 v{4+u}, {u}, v1')
        a(f'v_and_b32 v{4+u}, 3, v{4+u}')
        a(f'v_lshl_add_u32 v{4+u}, v{4+u}, 10, v3')
    a('v_add_u32 v8, 0x1000, v3')
    a('s_mul_i32 s27, s26, 12')
    a('s_mul_i32 s28, s22, 48'); a('s_add_u32 s28, s28, s27'); a('s_lshl_b32 s28, s28, 12'); a(f's_add_u32 s28, s28, {R_OFF}')
    a('s_mul_i32 s29, s23, 48'); a('s_add_u32 s29, s29, s27'); a('s_mul_i32 s29, s29, 5120'); a(f's_add_u32 s29, s29, {W2P_OFF}')
    a('s_waitcnt lgkmcnt(0)')
    a('s_mov_b32 s12, s4'); a('s_mov_b32 s13, s5'); a(f's_mov_b32 s14, {WS_USED + (0x100000 if stamps else 0)}'); a('s_mov_b32 s15, 0x20000')
    a('s_mov_b32 s16, s8'); a('s_mov_b32 s17, s9'); a(f's_mov_b32 s18, {D*2}'); a('s_mov_b32 s19, 0x20000')
    a('s_mov_b32 s32, s10'); a('s_mov_b32 s33, s11'); a(f's_mov_b32 s34, {S*D*2}'); a('s_mov_b32 s35, 0x20000')
    vm = Cnt(a, 'vmcnt', 63); lg = Cnt(a, 'lgkmcnt', 15)
    ACC = 32
    HB = 112
    nslots = 7
    def acc(u, i): return ACC + (u * 5 + i) * 4
    def slot(k): return (k % nslots) * 36
    Q = []
    cnt = {}
    def issue(tag): vm.issue(tag); cnt[tag] = cnt.get(tag, 0) + 1
    def mk(text, tag, post=None):
        def f():
            a(text); issue(tag)
            if post:
                for p in post: a(p)
        return f
    NK = 12
    for k in range(NK):
        b = slot(k)
        for i in range(4):
            Q.append(mk(f'buffer_load_dwordx4 {ar(b + 16 + 4*i, 4)}, v3, s[12:15], s29 offen offset:{1024*i}', k))
        Q.append(mk(f'buffer_load_dwordx4 {ar(b + 32, 4)}, v8, s[12:15], s29 offen', k, ['s_add_u32 s29, s29, 5120']))
        for u in range(4):
            Q.append(mk(f'buffer_load_dwordx4 {ar(b + 4*u, 4)}, v{4+u}, s[12:15], s28 offen', k, ['s_add_u32 s28, s28, 4096'] if u == 3 else None))
    def pump(n=1):
        for _ in range(n):
            if Q: Q.pop(0)()
    pump(9)
    a('v_and_b32 v9, 15, v2')
    a('v_lshrrev_b32 v10, 4, v2')
    a('v_lshl_add_u32 v11, v1, 4, v9')
    a('v_lshlrev_b32 v11, 5, v11')
    a('v_add_u32 v11, s24, v11')
    a('v_mul_u32_u24 v11, 1280, v11')
    a('s_mul_i32 s30, s23, 160')
    a('v_lshlrev_b32 v12, 4, v10'); a('v_add_u32 v12, s30, v12')
    a('v_lshlrev_b32 v13, 3, v10'); a('v_add_u32 v13, s30, v13')
    a('v_add_u32 v14, v11, v12'); a('v_add_u32 v15, v11, v13')
    pump(3)
    a('s_mul_i32 s31, s23, 10')
    a('v_add_u32 v16, s31, v10')
    a('v_lshrrev_b32 v17, 1, v10'); a('v_add_u32 v17, s31, v17'); a('v_add_u32 v17, 8, v17')
    for r in (16, 17):
        a(f'v_lshrrev_b32 v18, 2, v{r}'); a(f'v_and_b32 v{r}, 3, v{r}')
        a(f'v_lshlrev_b32 v{r}, 8, v{r}'); a(f'v_lshl_add_u32 v{r}, v18, 12, v{r}'); a(f'v_lshl_add_u32 v{r}, v9, 4, v{r}')
    a('v_and_b32 v18, 1, v10'); a('v_lshl_add_u32 v17, v18, 3, v17')
    pump(3)
    a('s_mul_i32 s31, s22, 80'); a('s_add_u32 s31, s31, s26'); a('s_lshl_b32 s31, s31, 10'); a(f's_add_u32 s31, s31, {H_OFF}')
    a('s_add_u32 s36, s31, 4096')
    for u in range(4):
        a(f'v_sub_u32 v{20+u}, v{4+u}, v3')
        a(f'v_mul_u32_u24 v{20+u}, 15, v{20+u}')
        a(f'v_add_u32 v{20+u}, v{20+u}, v3')
    pump(9*pre - 15)
    Q.append(mk(f'buffer_load_dwordx4 {vr(HB,4)}, v16, s[12:15], s31 offen', 'hb'))
    Q.append(mk(f'buffer_load_dwordx4 {vr(HB+4,4)}, v16, s[12:15], s36 offen', 'hb'))
    Q.append(mk(f'buffer_load_dwordx2 {vr(HB+8,2)}, v17, s[12:15], s31 offen', 'hb'))
    Q.append(mk(f'buffer_load_dwordx4 {vr(HB+10,4)}, v12, s[16:19], 0 offen', 'hb'))
    Q.append(mk(f'buffer_load_dwordx4 {vr(HB+14,4)}, v12, s[16:19], 0 offen offset:64', 'hb'))
    Q.append(mk(f'buffer_load_dwordx2 {vr(HB+18,2)}, v13, s[16:19], 0 offen offset:128', 'hb'))
    for k in range(NK):
        while cnt.get(k, 0) < 9: pump()
        vm.wait(k)
        if k == 0: stamp(a, 1, stamps)
        b = slot(k)
        c = 0
        order = [1, 2, 3, 0]
        for u in order:
            for i in range(5):
                cc = '0' if k == 0 else vr(acc(u, i), 4)
                a(f'v_mfma_f32_16x16x32_bf16 {vr(acc(u,i),4)}, {ar(b+16+4*i,4)}, {ar(b+4*u,4)}, {cc}')
                c += 1
                if c % 2 == 0 and c <= 18: pump()
    stamp(a, 2, stamps)
    while Q: pump()
    for u in range(1, 4):
        for i in range(5):
            a(f'ds_write_b128 v{20+u}, {vr(acc(u,i),4)} offset:{((u-1)*5+i)*1024}')
    vm.wait('hb')
    HF = 132
    for q in range(10):
        a(f'v_lshlrev_b32 v{HF+2*q}, 16, v{HB+q}')
        a(f'v_and_b32 v{HF+2*q+1}, 0xffff0000, v{HB+q}')
        a(f'v_lshlrev_b32 v152, 16, v{HB+10+q}')
        a(f'v_and_b32 v153, 0xffff0000, v{HB+10+q}')
        a(f'v_pk_add_f32 {vr(HF+2*q,2)}, {vr(HF+2*q,2)}, v[152:153]')
        a(f'v_pk_add_f32 {vr(ACC+2*q,2)}, {vr(ACC+2*q,2)}, {vr(HF+2*q,2)}')
    a('s_waitcnt lgkmcnt(0)')
    a('s_barrier')
    stamp(a, 3, stamps)
    for s_ in range(3):
        for i in range(5):
            a(f'ds_read_b128 {vr(acc(1+s_,i),4)}, v20 offset:{(s_*5+i)*1024}')
    for s_ in range(3):
        a(f's_waitcnt lgkmcnt({10-5*s_})')
        for q in range(10):
            a(f'v_pk_add_f32 {vr(ACC+2*q,2)}, {vr(ACC+2*q,2)}, {vr(acc(1+s_,0)+2*q,2)}')
    for q in range(10):
        a(f'v_cvt_pk_bf16_f32 v{HB+q}, v{ACC+2*q}, v{ACC+2*q+1}')
    stamp(a, 4, stamps)
    a(f'buffer_store_dwordx4 {vr(HB,4)}, v14, s[32:35], 0 offen')
    a(f'buffer_store_dwordx4 {vr(HB+4,4)}, v14, s[32:35], 0 offen offset:64')
    a(f'buffer_store_dwordx2 {vr(HB+8,2)}, v15, s[32:35], 0 offen offset:128')
    if stamps:
        write_stamps(a, 6, 2, 26)
    a.label(f'{name}_end')
    a('s_endpgm')
    return dict(vgpr=256 + nslots * 36, sgpr=80, accum=256, lds=LDS_D)
```

```python
S, D, F = 2048, 640, 1536
U_OFF   = 0x100
U_T1    = 8 * 320 * 16
U_SIZE  = 32 * U_T1
W1P_OFF = 0x141000
W1P_SIZE = 96 * 20 * 1024
W2P_OFF = W1P_OFF + W1P_SIZE
W2P_SIZE = 40 * 48 * 1024
CS_OFF  = W2P_OFF + W2P_SIZE
CS_SIZE = 2 * 1536 * 4
FLAG_OFF = CS_OFF + 0x4000
H_OFF   = CS_OFF + 0x8000
H_SIZE  = S * D * 2
R_OFF   = H_OFF + H_SIZE
R_SIZE  = 32 * 48 * 4 * 1024
SG_OFF  = R_OFF + R_SIZE
WS_USED = SG_OFF + 32 * 8 * 512
STAMP_OFF = WS_USED
assert U_OFF + U_SIZE <= W1P_OFF
def rho_to_t1(rho):
    if rho % 2 == 0: return rho // 2
    return 16 if rho == 1 else 32 - rho // 2
if __name__ == '__main__':
    for k, v in list(globals().items()):
        if k.isupper(): print(k, hex(v))
```

```python
import sys, argparse
from asmlib import *
from layout import *
from kA import gen_kA, LDS_A
from kC import gen_kC, LDS_C
from kD import gen_kD, LDS_D
HDR = open('sequential_preLN__spectral_fnet__dense_activation_squared_relu__prompt.s.ref').read().split('; Override launch')[0]
def build(out, stamps=False, **kw):
    a = Asm()
    a.raw(HDR.rstrip())
    a.raw(f'; @launch kernel=fnet_a_kernel grid=(256,1,1) block=(256,1,1) lds={LDS_A}')
    a.raw(f'; @launch kernel=fnet_c_kernel grid=(256,1,1) block=(256,1,1) lds={LDS_C}')
    a.raw(f'; @launch kernel=fnet_d_kernel grid=(256,1,1) block=(256,1,1) lds={LDS_D}')
    a.raw('.amdgcn_target "amdgcn-amd-amdhsa--gfx950"\n.text')
    infos = {}
    infos['fnet_a_kernel'] = gen_kA(a, 'fnet_a_kernel', stamps=stamps)
    infos['fnet_c_kernel'] = gen_kC(a, 'fnet_c_kernel', stamps=stamps, mapping=kw.get('mapC', 'B'))
    infos['fnet_d_kernel'] = gen_kD(a, 'fnet_d_kernel', stamps=stamps, mapping=kw.get('mapD', 'B'))
    a.raw('.section .rodata,"a"')
    for n, i in infos.items():
        a.raw('.p2align 6\n' + kernel_desc(n, i['vgpr'], i['sgpr'], i['accum']))
    open(out, 'w').write(a.text())
    print(out, 'instrs', a.count, 'nops', a.nops)
if __name__ == '__main__':
    build('sequential_preLN__spectral_fnet__dense_activation_squared_relu__prompt.s')
    build('full_st.s', stamps=True)
    import kA
    kA.DBG_MODE[0] = True
    build('full_dbg.s', stamps=True)
```

```python
from asmlib import *
from layout import *

XP = 1344
G_OFF = 64 * XP
G_E1 = 4112
LDS_A = G_OFF + 8 * G_E1

def stamp(a, idx, on):
    if on: a(f's_memrealtime s[{60+2*idx}:{61+2*idx}]')

DBG_MODE = [False]
def write_stamps(a, n, kidx, s_w):
    a('s_waitcnt vmcnt(0) lgkmcnt(0)')
    a(f's_memrealtime s[{60+2*(n-1)}:{61+2*(n-1)}]')
    if DBG_MODE[0]:
        a('s_load_dwordx2 s[44:45], s[0:1], 88')
        a('s_waitcnt lgkmcnt(0)')
        a(f's_add_u32 s44, s44, {512*(2-kidx)}'); a('s_addc_u32 s45, s45, 0')
        a('s_mov_b32 s46, 256'); a('s_mov_b32 s47, 0x20000')
        a(f's_lshl_b32 s40, s{s_w}, 8'); a('s_add_u32 s40, s40, s2')
        a('s_cmp_eq_u32 s40, 37')
        a(f's_cselect_b32 s40, {20*kidx}, 0x10000')
        for i, k in enumerate((0, 1, 3, 4, 5)):
            a(f'v_mov_b32 v{16+i}, s{60+2*k}')
        a('v_mov_b32 v24, 0')
        a('s_mov_b64 exec, 1')
        a('buffer_store_dwordx4 v[16:19], v24, s[44:47], s40 offen')
        a('buffer_store_dword v20, v24, s[44:47], s40 offen offset:16')
        return
    a('s_waitcnt lgkmcnt(0)')
    a(f's_lshl_b32 s40, s2, 4'); a(f's_add_u32 s40, s40, s{s_w}'); a('s_lshl_b32 s40, s40, 5'); a(f's_add_u32 s40, s40, {STAMP_OFF + kidx*0x20000}')
    for i in range(8):
        a(f'v_mov_b32 v{16+i}, s{60+2*min(i,n-1)}')
    a('v_mov_b32 v24, 0')
    a('s_mov_b64 exec, 1')
    a('buffer_store_dwordx4 v[16:19], v24, s[12:15], s40 offen')
    a('buffer_store_dwordx4 v[20:23], v24, s[12:15], s40 offen offset:16')

def gen_kA(a, name, stamps=False):
    a.raw(f'.globl {name}\n.p2align 8\n.type {name},@function\n{name}:')
    a.reset_hist()
    a('s_cmp_ge_u32 s2, 256')
    a(f's_cbranch_scc1 {name}_end')
    stamp(a, 0, stamps)
    a('s_load_dwordx2 s[4:5], s[0:1], 0')
    a('s_load_dwordx2 s[6:7], s[0:1], 96')
    a('s_load_dwordx2 s[16:17], s[0:1], 48')
    a('s_load_dwordx2 s[18:19], s[0:1], 64')
    a('v_lshrrev_b32 v1, 6, v0')
    a('v_and_b32 v2, 63, v0')
    a('v_readfirstlane_b32 s22, v1')
    a('s_and_b32 s24, s2, 7')
    a('s_lshr_b32 s25, s2, 3')
    a('s_cmp_lt_u32 s25, 20')
    a(f's_cbranch_scc1 {name}_fft_norm')
    a('s_cmp_ge_u32 s25, 25')
    a(f's_cbranch_scc1 {name}_pack_hi')
    a('s_cmp_eq_u32 s24, 0')
    a(f's_cbranch_scc0 {name}_pack_lo')
    a('s_mov_b32 s20, 32')
    a('s_sub_u32 s21, s25, 20')
    a(f's_branch {name}_fft')
    a.label(f'{name}_fft_norm')
    a('s_mul_i32 s26, s25, 52')
    a('s_lshr_b32 s26, s26, 8')
    a('s_mul_i32 s27, s26, 5')
    a('s_sub_u32 s21, s25, s27')
    a('s_lshl_b32 s20, s24, 2')
    a('s_add_u32 s20, s20, s26')
    a.label(f'{name}_fft')
    a.reset_hist()
    vm = Cnt(a, 'vmcnt', 63); lg = Cnt(a, 'lgkmcnt', 15)
    a('v_lshrrev_b32 v3, 2, v2')
    a('v_and_b32 v4, 3, v2')
    a('v_and_b32 v5, 7, v3')
    a('v_lshl_add_u32 v5, v1, 3, v5')
    a('v_lshlrev_b32 v5, 6, v5')
    a('v_add_u32 v5, s20, v5')
    a('v_sub_u32 v6, 0x800, v5')
    a('v_and_b32 v6, 0x7ff, v6')
    a('v_cmp_gt_u32 vcc, 8, v3')
    a('v_cndmask_b32 v5, v6, v5, vcc')
    a('v_mul_u32_u24 v5, 1280, v5')
    a('v_lshl_add_u32 v5, v4, 4, v5')
    a('v_lshl_add_u32 v6, v1, 4, v3')
    a(f'v_mul_u32_u24 v6, {XP}, v6')
    a('v_lshl_add_u32 v6, v4, 4, v6')
    a('s_waitcnt lgkmcnt(0)')
    a('s_mov_b32 s8, s4'); a('s_mov_b32 s9, s5'); a(f's_mov_b32 s10, {S*D*2}'); a('s_mov_b32 s11, 0x20000')
    a('s_mov_b32 s12, s6'); a('s_mov_b32 s13, s7'); a(f's_mov_b32 s14, {WS_USED + (0x100000 if stamps else 0)}'); a('s_mov_b32 s15, 0x20000')
    X = 100
    for jj in range(20):
        a(f'buffer_load_dwordx4 {vr(X+4*jj,4)}, v5, s[8:11], 0 offen offset:{64*jj}')
        vm.issue(('x', jj))
    a('v_and_b32 v7, 15, v2')
    a('v_lshrrev_b32 v8, 4, v2')
    a('v_lshlrev_b32 v9, 2, v8')
    a('v_cvt_f32_u32 v9, v9')
    BA = 20; BA2 = 24; CSUM = 26; BB = 28; BM = 44; BCc = 60; BCs = 64; T = 70
    a('s_lshl_b32 s26, s21, 3')
    a('s_add_u32 s26, s26, 1')
    a('v_and_b32 v10, 7, v7')
    a('v_add_u32 v10, s26, v10')
    a('v_cvt_f32_u32 v10, v10')
    a(f'v_mul_f32 v10, {fbits(1/40)}, v10')
    a('v_lshrrev_b32 v11, 3, v7')
    a('v_cvt_f32_u32 v11, v11')
    a(f'v_mul_f32 v11, {fbits(0.25)}, v11')
    a('v_fma_f32 v11, v10, v9, v11')
    cj = [0,1,2,3,16,17,18,19,32,33,34,35]
    for j, c in enumerate(cj):
        a(f'v_fmamk_f32 v{T+j}, v10, {fbits(float(c))}, v11')
    for j in range(12):
        a(f'v_cos_f32 v{T+j}, v{T+j}')
    for j in range(6):
        a(f'v_cvt_pk_bf16_f32 v{BA+j}, v{T+2*j}, v{T+2*j+1}')
    a('v_cmp_gt_u32 vcc, 2, v8')
    a(f'v_cndmask_b32 v{BA2}, 0, v{BA2}, vcc')
    a(f'v_cndmask_b32 v{BA2+1}, 0, v{BA2+1}, vcc')
    ONES = 84
    for j in range(4): a(f'v_mov_b32 v{ONES+j}, 0x3f803f80')
    a(f'v_mfma_f32_16x16x32_bf16 v[88:91], {vr(ONES,4)}, {vr(BA,4)}, 0')
    a(f'v_mfma_f32_16x16x16_bf16 v[88:91], {vr(ONES,2)}, {vr(BA2,2)}, v[88:91]')
    a('s_and_b32 s27, s22, 1')
    a('s_lshl_b32 s28, s27, 2')
    a('s_add_u32 s28, s28, s26')
    a('v_lshrrev_b32 v10, 1, v7')
    a('v_mul_u32_u24 v10, 40, v10')
    a('v_add_u32 v10, s28, v10')
    a('v_and_b32 v11, 1, v7')
    a('v_cvt_f32_u32 v12, v11')
    a(f'v_mul_f32 v12, {fbits(0.25)}, v12')
    a('v_mov_b32 v13, 0x80008000')
    a('v_mul_lo_u32 v13, v13, v11')
    a(f'v_mov_b32 v{CSUM}, v88')
    for q in range(4):
        a(f'v_add_u32 v14, {q}, v10')
        a('v_cvt_f32_u32 v14, v14')
        a(f'v_mul_f32 v14, {fbits(1/640)}, v14')
        a('v_fma_f32 v15, v14, v9, v12')
        for r in range(4):
            if r == 0: a(f'v_mov_b32 v{T}, v15')
            else: a(f'v_fmamk_f32 v{T+r}, v14, {fbits(float(r))}, v15')
        for r in range(4):
            a(f'v_sin_f32 v{T+4+r}, v{T+r}')
        for r in range(4):
            a(f'v_cos_f32 v{T+r}, v{T+r}')
        for j in range(4):
            a(f'v_cvt_pk_f16_f32 v{BB+4*q+j}, v{T+2*j}, v{T+2*j+1}')
        for j in range(4):
            a(f'v_xor_b32 v{BM+4*q+j}, v13, v{BB+4*q+j}')
    a('s_lshr_b32 s29, s22, 1')
    a('s_lshl_b32 s30, s29, 4')
    a('v_add_u32 v10, s30, v7')
    a('v_cvt_f32_u32 v10, v10')
    a(f'v_mul_f32 v10, {fbits(1/32)}, v10')
    a('s_cmp_eq_u32 s20, 32')
    a(f's_cselect_b32 s31, {fbits(0.5)}, 0')
    a('v_add_f32 v11, s31, v9')
    a('v_mul_f32 v11, v10, v11')
    for j, c in enumerate(cj[:8]):
        a(f'v_fmamk_f32 v{T+j}, v10, {fbits(float(c))}, v11')
    for j in range(8):
        a(f'v_sin_f32 v{T+8+j}, v{T+j}')
    for j in range(8):
        a(f'v_cos_f32 v{T+j}, v{T+j}')
    for j in range(4):
        a(f'v_cvt_pk_f16_f32 v{BCc+j}, v{T+2*j}, v{T+2*j+1}')
        a(f'v_cvt_pk_f16_f32 v{BCs+j}, v{T+8+2*j}, v{T+8+2*j+1}')
    a(f's_mul_i32 s32, s22, {16*XP}')
    a('v_lshlrev_b32 v10, 3, v2')
    a('v_add_u32 v10, s32, v10')
    a('v_and_b32 v11, 31, v2')
    a('v_lshlrev_b32 v11, 3, v11')
    a('v_add_u32 v11, s32, v11')
    a('v_and_b32 v12, 7, v7')
    a(f'v_mul_u32_u24 v12, {G_E1}, v12')
    a('v_lshl_add_u32 v12, v8, 8, v12')
    a('v_lshrrev_b32 v13, 3, v7')
    a('v_lshl_add_u32 v12, v13, 3, v12')
    a('s_lshl_b32 s33, s29, 10'); a('s_lshl_b32 s34, s27, 7'); a('s_add_u32 s33, s33, s34'); a(f's_add_u32 s33, s33, {G_OFF}')
    a('v_add_u32 v12, s33, v12')
    a(f's_mul_i32 s34, s27, {4*G_E1}'); a(f's_add_u32 s34, s34, {G_OFF}')
    a('v_lshlrev_b32 v13, 4, v2')
    a('v_add_u32 v13, s34, v13')
    a('v_mul_u32_u24 v14, 144, v7')
    a('v_lshl_add_u32 v14, v8, 5, v14')
    a('v_add_u32 v14, s32, v14')
    a('v_lshrrev_b32 v16, 5, v2')
    a('v_mul_u32_u24 v15, 144, v16')
    a('v_and_b32 v17, 31, v2')
    a('v_lshl_add_u32 v15, v17, 2, v15')
    a('v_add_u32 v15, s32, v15')
    a(f'v_mul_u32_u24 v16, {U_T1}, v16')
    a('v_lshrrev_b32 v17, 2, v17')
    a('v_mul_u32_u24 v17, 40, v17')
    a('v_add_u32 v17, v17, v4')
    a('v_lshl_add_u32 v16, v17, 4, v16')
    a('s_and_b32 s35, s20, 31')
    a('s_lshr_b32 s36, s35, 2'); a('s_mul_i32 s36, s36, 5120')
    a('s_and_b32 s37, s35, 3'); a('s_lshl_b32 s37, s37, 2'); a('s_add_u32 s36, s36, s37')
    a('s_lshr_b32 s37, s20, 4'); a('s_and_b32 s37, s37, 2'); a('s_add_u32 s36, s36, s37')
    a('s_sub_u32 s37, s28, 1'); a('s_lshl_b32 s37, s37, 4'); a('s_add_u32 s36, s36, s37')
    a(f's_mul_i32 s37, s30, {U_T1}'); a('s_add_u32 s36, s36, s37')
    if U_OFF: a(f's_add_u32 s36, s36, {U_OFF}')
    SA = 92
    for j in range(4): a(f'v_mov_b32 v{SA+j}, 0')
    a('v_mov_b32 v84, 0x3f803f80')
    stamp(a, 1, stamps)
    for jj in range(20):
        vm.wait(('x', jj))
        a(f'ds_write_b128 v6, {vr(X+4*jj,4)} offset:{64*jj}')
        lg.issue('xw')
        for r in range(4):
            a(f'v_dot2c_f32_bf16 v{SA+(r&1)}, v{X+4*jj+r}, v84')
            a(f'v_dot2c_f32_bf16 v{SA+2+(r&1)}, v{X+4*jj+r}, v{X+4*jj+r}')
    stamp(a, 2, stamps)
    FR = 180
    NR = 12
    D1 = 100
    def tr(rho):
        b = FR + (rho % NR) * 6
        a(f'ds_read_b64_tr_b16 {vr(b,2)}, v10 offset:{rho*XP}')
        a(f'ds_read_b64_tr_b16 {vr(b+2,2)}, v10 offset:{rho*XP+512}')
        a(f'ds_read_b64_tr_b16 {vr(b+4,2)}, v11 offset:{rho*XP+1024}')
        lg.issue(('tr', rho), 3)
    for rho in range(4): tr(rho)
    a(f'v_add_f32 v{SA}, v{SA}, v{SA+1}')
    a(f'v_add_f32 v{SA+2}, v{SA+2}, v{SA+3}')
    for perm in ('[1,0,3,2]', '[2,3,0,1]'):
        a(f'v_add_f32_dpp v{SA}, v{SA}, v{SA} quad_perm:{perm} row_mask:0xf bank_mask:0xf')
        a(f'v_add_f32_dpp v{SA+2}, v{SA+2}, v{SA+2} quad_perm:{perm} row_mask:0xf bank_mask:0xf')
    a(f'v_mul_f32 v{SA}, {fbits(1/640)}, v{SA}')
    a(f'v_mul_f32 v{SA+2}, {fbits(1/640)}, v{SA+2}')
    a(f'v_fma_f32 v{SA+2}, -v{SA}, v{SA}, v{SA+2}')
    a(f'v_max_f32 v{SA+2}, 0, v{SA+2}')
    a(f'v_add_f32 v{SA+2}, {fbits(1e-5)}, v{SA+2}')
    a(f'v_rsq_f32 v{SA+2}, v{SA+2}')
    a(f'v_mul_f32 v{SA}, v{SA}, v{SA+2}')
    lg.wait('xw')
    def mm(rho):
        b = FR + (rho % NR) * 6
        lg.wait(('tr', rho))
        a(f'v_mfma_f32_16x16x32_bf16 {vr(D1+4*rho,4)}, {vr(b,4)}, {vr(BA,4)}, 0')
        a(f'v_mfma_f32_16x16x16_bf16 {vr(D1+4*rho,4)}, {vr(b+4,2)}, {vr(BA2,2)}, {vr(D1+4*rho,4)}')
    def fin(rho):
        d = D1 + 4 * rho
        sp = 44 + 2 * (rho & 1)
        tb = 96 + 2 * (rho & 1)
        a(f'v_readlane_b32 s{sp}, v{SA+2}, {4*rho}')
        a(f'v_readlane_b32 s{sp+1}, v{SA}, {4*rho}')
        return d, sp, tb
    def fin2(rho, d, sp, tb):
        a(f'v_mul_f32 v{tb}, s{sp+1}, v{CSUM}')
        a(f'v_pk_fma_f32 {vr(d,2)}, {vr(d,2)}, {sr(sp,2)}, {vr(tb,2)} op_sel_hi:[1,0,0] neg_lo:[0,0,1] neg_hi:[0,0,1]')
        a(f'v_pk_fma_f32 {vr(d+2,2)}, {vr(d+2,2)}, {sr(sp,2)}, {vr(tb,2)} op_sel_hi:[1,0,0] neg_lo:[0,0,1] neg_hi:[0,0,1]')
        a(f'v_cvt_pk_f16_f32 v{d}, v{d}, v{d+1}')
        a(f'v_cvt_pk_f16_f32 v{d+1}, v{d+2}, v{d+3}')
        off = rho * 16 if rho < 8 else 2048 + (rho - 8) * 16
        a(f'ds_write_b64 v12, {vr(d,2)} offset:{off}')
        lg.issue('gw')
    mm(0); mm(1)
    for rho in range(16):
        if rho + 4 < 16: tr(rho + 4)
        st = fin(rho)
        if rho + 2 < 16: mm(rho + 2)
        fin2(rho, *st)
    lg.wait_all()
    stamp(a, 3, stamps)
    a('s_barrier')
    AF = 100
    for q in range(4):
        for rt in range(4):
            a(f'ds_read_b128 {vr(AF+(q*4+rt)*4,4)}, v13 offset:{q*G_E1+rt*1024}')
            lg.issue(('af', q))
    D2 = 180
    for q in range(4):
        lg.wait(('af', q))
        for h in range(2):
            a(f'v_mfma_f32_16x16x32_f16 {vr(D2+q*8+h*4,4)}, {vr(AF+(q*4+h)*4,4)}, {vr(BB+4*q,4)}, 0')
        for h in range(2):
            a(f'v_mfma_f32_16x16x32_f16 {vr(D2+q*8+h*4,4)}, {vr(AF+(q*4+2+h)*4,4)}, {vr(BM+4*q,4)}, {vr(D2+q*8+h*4,4)}')
    ZF = 212
    D3 = 100
    for q in range(4):
        for j in range(4):
            a(f'v_cvt_pk_f16_f32 v{ZF+4*q+j}, v{D2+q*8+2*j}, v{D2+q*8+2*j+1}')
    for q in range(4):
        a(f'v_mfma_f32_16x16x32_f16 {vr(D3+q*8,4)}, {vr(ZF+4*q,4)}, {vr(BCc,4)}, 0')
        a(f'v_mfma_f32_16x16x32_f16 {vr(D3+q*8+4,4)}, {vr(ZF+4*q,4)}, {vr(BCs,4)}, 0')
    Q = 140
    for q in range(4):
        c = D3 + q * 8; s_ = c + 4
        for e in range(2):
            a(f'v_add_f32 v{c+2*e}, v{c+2*e}, v{s_+2*e+1}')
            a(f'v_sub_f32 v{c+2*e+1}, v{c+2*e+1}, v{s_+2*e}')
            a(f'v_cvt_pk_f16_f32 v{Q+4*e+q}, v{c+2*e}, v{c+2*e+1}')
    a(f'ds_write_b128 v14, {vr(Q,4)}')
    a(f'ds_write_b128 v14, {vr(Q+4,4)} offset:16')
    O = 150
    for i in range(8):
        a(f'ds_read_b32 v{O+i}, v15 offset:{2*i*144}')
        lg.issue(('o', i))
    stamp(a, 4, stamps)
    a('s_cmp_eq_u32 s35, 0')
    a(f's_cbranch_scc1 {name}_short')
    for i in range(8):
        a(f's_waitcnt lgkmcnt({7-i})')
        a(f'buffer_store_dword v{O+i}, v16, s[12:15], s36 offen')
        if i < 7: a(f's_add_u32 s36, s36, {2*U_T1}')
    a(f's_branch {name}_fin')
    a.label(f'{name}_short')
    for i in range(8):
        a(f's_waitcnt lgkmcnt({7-i})')
        a(f'buffer_store_short v{O+i}, v16, s[12:15], s36 offen')
        if i < 7: a(f's_add_u32 s36, s36, {2*U_T1}')
    a(f's_branch {name}_fin')

    a.label(f'{name}_pack_lo')
    a.reset_hist()
    a('s_sub_u32 s26, s25, 20'); a('s_mul_i32 s26, s26, 7'); a('s_add_u32 s26, s26, s24'); a('s_sub_u32 s26, s26, 1')
    a(f's_branch {name}_pack')
    a.label(f'{name}_pack_hi')
    a('s_sub_u32 s26, s2, 165')
    a.label(f'{name}_pack')
    a('s_waitcnt lgkmcnt(0)')
    a('s_mov_b32 s12, s6'); a('s_mov_b32 s13, s7'); a(f's_mov_b32 s14, {WS_USED + (0x100000 if stamps else 0)}'); a('s_mov_b32 s15, 0x20000')
    a('s_cmp_ge_u32 s26, 80')
    a(f's_cbranch_scc1 {name}_end')
    a('v_and_b32 v7, 15, v2')
    a('v_lshrrev_b32 v8, 4, v2')
    a('v_lshrrev_b32 v9, 2, v7')
    a('v_and_b32 v4, 3, v2')
    a('v_lshlrev_b32 v3, 4, v2')
    a('s_cmp_ge_u32 s26, 48')
    a(f's_cbranch_scc1 {name}_pack_w2')
    a('s_mov_b32 s8, s16'); a('s_mov_b32 s9, s17'); a(f's_mov_b32 s10, {D*F*2}'); a('s_mov_b32 s11, 0x20000')
    a('v_lshrrev_b32 v5, 2, v2')
    a('v_mul_u32_u24 v5, 3072, v5')
    a('v_lshl_add_u32 v5, v4, 4, v5')
    a(f's_mul_i32 s27, s22, {160*3072}'); a('s_lshl_b32 s28, s26, 6'); a('s_add_u32 s27, s27, s28')
    a('s_mul_i32 s29, s22, 10240')
    a('s_mov_b32 m0, s29')
    for i in range(10):
        a('buffer_load_dwordx4 v5, s[8:11], s27 offen lds')
        if i < 9:
            a(f's_add_u32 s27, s27, {16*3072}')
            a('s_add_u32 m0, m0, 1024')
    a('v_lshl_add_u32 v6, v8, 3, v9')
    a('v_lshlrev_b32 v6, 6, v6')
    a('v_lshl_add_u32 v6, v4, 3, v6')
    a('v_add_u32 v6, s29, v6')
    for j in range(4): a(f'v_mov_b32 v{12+j}, 0x3f803f80')
    for tl in range(2):
        d = 30 + tl
        a('s_lshl_b32 s32, s26, 1'); a(f's_add_u32 s32, s32, {tl}')
        a('s_mul_i32 s33, s32, 43'); a('s_lshr_b32 s33, s33, 9')
        a('s_mul_i32 s34, s33, 12'); a('s_sub_u32 s34, s32, s34')
        a('s_lshr_b32 s35, s34, 1'); a('s_sub_u32 s36, s34, 8')
        a('s_cmp_lt_u32 s34, 8')
        a('s_cselect_b32 s35, s35, s36')
        a(f's_cselect_b32 s36, {tl}, 2')
        a('s_lshl_b32 s33, s33, 2'); a('s_add_u32 s33, s33, s35'); a('s_mul_i32 s33, s33, 20')
        a('s_mul_i32 s35, s22, 5'); a('s_add_u32 s33, s33, s35')
        a('s_mul_i32 s33, s33, 3'); a('s_add_u32 s33, s33, s36'); a('s_lshl_b32 s33, s33, 10')
        a(f's_add_u32 s{d}, s33, {W1P_OFF}')
    FRG = 20
    for ks in range(5):
        a(f's_waitcnt vmcnt({8-2*ks})')
        for tl in range(2):
            b = FRG + (ks*2+tl)*4
            a(f'ds_read_b64_tr_b16 {vr(b,2)}, v6 offset:{ks*2048+tl*32}')
            a(f'ds_read_b64_tr_b16 {vr(b+2,2)}, v6 offset:{ks*2048+tl*32+256}')
    for ks in range(5):
        a(f's_waitcnt lgkmcnt({min(15,16-4*ks)})')
        for tl in range(2):
            b = FRG + (ks*2+tl)*4
            a(f'buffer_store_dwordx4 {vr(b,4)}, v3, s[12:15], s{30+tl} offen')
            if ks < 4: a(f's_add_u32 s{30+tl}, s{30+tl}, 3072')
            c = '0' if ks == 0 else vr(60+4*tl,4)
            a(f'v_mfma_f32_16x16x32_bf16 {vr(60+4*tl,4)}, {vr(b,4)}, v[12:15], {c}')
    a('v_lshlrev_b32 v10, 4, v8')
    a('v_cmp_eq_u32 vcc, 0, v7')
    a('v_mov_b32 v11, 0x7fffffff')
    a('v_cndmask_b32 v10, v11, v10, vcc')
    a('s_mul_i32 s32, s22, 6144'); a('s_lshl_b32 s33, s26, 7'); a('s_add_u32 s32, s32, s33'); a(f's_add_u32 s32, s32, {CS_OFF}')
    a('buffer_store_dwordx4 v[60:63], v10, s[12:15], s32 offen')
    a('buffer_store_dwordx4 v[64:67], v10, s[12:15], s32 offen offset:64')
    a(f's_branch {name}_fin')
    a.label(f'{name}_pack_w2')
    a.reset_hist()
    a('s_mov_b32 s8, s18'); a('s_mov_b32 s9, s19'); a(f's_mov_b32 s10, {D*F*2}'); a('s_mov_b32 s11, 0x20000')
    for i in range(5):
        a(f'v_add_u32 v10, {64*i}, v2')
        a('v_mul_u32_u24 v11, 205, v10'); a('v_lshrrev_b32 v11, 11, v11')
        a('v_mul_u32_u24 v12, 10, v11'); a('v_sub_u32 v12, v10, v12')
        a('v_mul_u32_u24 v11, 1280, v11')
        a(f'v_lshl_add_u32 v{14+i}, v12, 4, v11')
    a('s_sub_u32 s27, s26, 48'); a('s_mul_i32 s27, s27, 12'); a('s_mul_i32 s28, s22, 3'); a('s_add_u32 s27, s27, s28')
    a('s_mul_i32 s29, s22, 15360')
    a('s_mov_b32 m0, s29')
    for blk in range(3):
        a(f's_add_u32 s32, s27, {blk}')
        a('s_lshr_b32 s33, s32, 3'); a('s_and_b32 s34, s32, 7')
        a(f's_mul_i32 s35, s33, {32*1280}'); a('s_mul_i32 s36, s34, 160'); a('s_add_u32 s35, s35, s36')
        a('s_mul_i32 s36, s34, 48'); a('s_add_u32 s36, s36, s33'); a('s_mul_i32 s36, s36, 5120'); a(f's_add_u32 s{40+blk}, s36, {W2P_OFF}')
        for i in range(5):
            a(f'buffer_load_dwordx4 v{14+i}, s[8:11], s35 offen lds')
            if not (blk == 2 and i == 4): a('s_add_u32 m0, m0, 1024')
    a('v_lshl_add_u32 v5, v8, 2, v9')
    a('v_mul_u32_u24 v5, 160, v5')
    a('v_add_u32 v5, s29, v5')
    a('v_lshl_add_u32 v6, v4, 3, v5')
    a('v_lshl_add_u32 v5, v4, 4, v5')
    a('v_add_u32 v13, 0x1000, v3')
    for blk in range(3):
        a(f's_waitcnt vmcnt({10-5*blk + 5*blk})' if False else f's_waitcnt vmcnt({[10,10,10][blk]})')
        for i in range(5):
            b = 20 + (blk*5+i)*4
            if i < 4:
                o = blk*5120 + 8*(i&1) + 64*(i//2); va = 5
            else:
                o = blk*5120 + 128; va = 6
            a(f'ds_read_b64_tr_b16 {vr(b,2)}, v{va} offset:{o}')
            a(f'ds_read_b64_tr_b16 {vr(b+2,2)}, v{va} offset:{o+16*160}')
        for i in range(5):
            b = 20 + (blk*5+i)*4
            a(f's_waitcnt lgkmcnt({8-2*i})')
            if i < 4: a(f'buffer_store_dwordx4 {vr(b,4)}, v3, s[12:15], s{40+blk} offen offset:{1024*i}')
            else: a(f'buffer_store_dwordx4 {vr(b,4)}, v13, s[12:15], s{40+blk} offen')
    a.label(f'{name}_fin')
    if stamps:
        a.reset_hist()
        a('s_nop 7')
        write_stamps(a, 6, 0, 22)
    a.label(f'{name}_end')
    a('s_endpgm')
    return dict(vgpr=256, sgpr=80, accum=256, lds=LDS_A)

if __name__ == '__main__':
    a = Asm()
    a.raw(f'; @launch kernel=ka_kernel grid=(256,1,1) block=(256,1,1) lds={LDS_A}')
    a.raw('.amdgcn_target "amdgcn-amd-amdhsa--gfx950"\n.text')
    info = gen_kA(a, 'ka_kernel', stamps=True)
    a.raw('.section .rodata,"a"\n.p2align 6')
    a.raw(kernel_desc('ka_kernel', info['vgpr'], info['sgpr'], info['accum']))
    open('ka.s', 'w').write(a.text())
    print('instrs', a.count, 'nops', a.nops)
```

```python
import sys
from common import *
from kA2 import gen_kA
from kCD3 import gen_kCD
HDR = open('sequential_preLN__spectral_fnet__dense_activation_squared_relu__prompt.s.ref').read().split('; Override launch')[0]
def build(out, stamps=False, akw={}, ckw={}):
    a = Asm()
    infos = {}
    infos['fnet_a_kernel'] = gen_kA(a, 'fnet_a_kernel', stamps=stamps, **akw)
    infos['fnet_cd_kernel'] = gen_kCD(a, 'fnet_cd_kernel', stamps=stamps, **ckw)
    head = [HDR.rstrip()]
    for n, i in infos.items():
        head.append(f'; @launch kernel={n} grid=(256,1,1) block=({i["threads"]},1,1) lds={i["lds"]}')
    head.append('.amdgcn_target "amdgcn-amd-amdhsa--gfx950"\n.text')
    a.lines = head + a.lines
    a.raw('.section .rodata,"a"')
    for n, i in infos.items():
        a.raw('.p2align 6\n' + kernel_desc(n, i['vgpr'], i['sgpr'], i['accum']))
    open(out, 'w').write(a.text())
    print(out, 'instrs', a.count, 'nops', a.nops)
if __name__ == '__main__':
    build('v5.s', ckw=dict(verbose=True), akw=dict(stflag='sc1'))
    build('v5_st.s', stamps=True, akw=dict(stflag='sc1'))
```

```python
from asmlib import *
from layout import *
DBG_MODE = [False]
def stamp(a, idx, on):
    if on: a(f's_memrealtime s[{60+2*idx}:{61+2*idx}]')
def write_stamps(a, n, kidx, s_w):
    a('s_waitcnt vmcnt(0) lgkmcnt(0)')
    a(f's_memrealtime s[{60+2*(n-1)}:{61+2*(n-1)}]')
    a('s_waitcnt lgkmcnt(0)')
    a(f's_lshl_b32 s40, s2, 4'); a(f's_add_u32 s40, s40, s{s_w}'); a('s_lshl_b32 s40, s40, 5'); a(f's_add_u32 s40, s40, {STAMP_OFF + kidx*0x20000}')
    for i in range(8):
        a(f'v_mov_b32 v{16+i}, s{60+2*min(i,n-1)}')
    a('v_mov_b32 v24, 0')
    a('s_mov_b64 exec, 1')
    a('buffer_store_dwordx4 v[16:19], v24, s[12:15], s40 offen')
    a('buffer_store_dwordx4 v[20:23], v24, s[12:15], s40 offen offset:16')
def emit_rho_t1(a, s_rho, s_t1, s_tmp):
    a(f's_lshr_b32 s{s_t1}, s{s_rho}, 1')
    a(f's_sub_u32 s{s_tmp}, 32, s{s_t1}')
    a(f's_cmp_eq_u32 s{s_rho}, 1')
    a(f's_cselect_b32 s{s_tmp}, 16, s{s_tmp}')
    a(f's_bitcmp1_b32 s{s_rho}, 0')
    a(f's_cselect_b32 s{s_t1}, s{s_tmp}, s{s_t1}')
def emit_map(a, mapping, s_rho, s_j):
    a('s_and_b32 s20, s2, 7')
    a('s_lshr_b32 s21, s2, 3')
    if mapping == 'A':
        a(f's_lshl_b32 s{s_rho}, s20, 2'); a(f's_lshr_b32 s{s_j}, s21, 3'); a(f's_add_u32 s{s_rho}, s{s_rho}, s{s_j}')
        a(f's_and_b32 s{s_j}, s21, 7')
    elif mapping == 'B':
        a(f's_lshr_b32 s{s_rho}, s20, 1'); a(f's_lshl_b32 s{s_rho}, s{s_rho}, 3'); a(f's_lshr_b32 s{s_j}, s21, 2'); a(f's_add_u32 s{s_rho}, s{s_rho}, s{s_j}')
        a(f's_and_b32 s{s_j}, s20, 1'); a(f's_lshl_b32 s{s_j}, s{s_j}, 2'); a('s_and_b32 s21, s21, 3'); a(f's_add_u32 s{s_j}, s{s_j}, s21')
def srd(a, d, lo, hi, size):
    if lo != d: a(f's_mov_b32 s{d}, s{lo}')
    if hi != d + 1: a(f's_mov_b32 s{d+1}, s{hi}')
    a(f's_mov_b32 s{d+2}, {size}'); a(f's_mov_b32 s{d+3}, 0x20000')
def ws_size(stamps): return WS_USED + (0x100000 if stamps else 0)
```

```python
from common import *

XP = 1280
G_OFF = 64 * XP
G_E1 = 4112
T_OFF = 0
TP = 260
LDS_A = G_OFF + 8 * G_E1
NW_A = 16

def gen_kA(a, name, stamps=False, stflag='', uflag='', pack_w2=True):
    a.raw(f'.globl {name}\n.p2align 8\n.type {name},@function\n{name}:')
    a.reset_hist()
    a('s_cmp_ge_u32 s2, 256')
    a(f's_cbranch_scc1 {name}_end')
    stamp(a, 0, stamps)
    a('s_load_dwordx2 s[8:9], s[0:1], 0')
    a('s_load_dwordx2 s[12:13], s[0:1], 96')
    a('s_load_dwordx2 s[16:17], s[0:1], 48')
    a('s_load_dwordx2 s[18:19], s[0:1], 64')
    a('v_lshrrev_b32 v1, 6, v0')
    a('v_and_b32 v2, 63, v0')
    a('v_readfirstlane_b32 s22, v1')
    a('v_and_b32 v7, 15, v2')
    a('v_lshrrev_b32 v8, 4, v2')
    a('s_and_b32 s24, s2, 7')
    a('s_lshr_b32 s25, s2, 3')
    a('s_cmp_lt_u32 s25, 20')
    a(f's_cbranch_scc1 {name}_fft_norm')
    a('s_cmp_ge_u32 s25, 25')
    a(f's_cbranch_scc1 {name}_pack_hi')
    a('s_cmp_eq_u32 s24, 0')
    a(f's_cbranch_scc0 {name}_pack_lo')
    a('s_mov_b32 s20, 32')
    a('s_sub_u32 s21, s25, 20')
    a('s_mov_b32 s23, 2')
    a(f's_branch {name}_fft')
    a.label(f'{name}_fft_norm')
    a('s_mul_i32 s26, s25, 52')
    a('s_lshr_b32 s26, s26, 8')
    a('s_mul_i32 s27, s26, 5')
    a('s_sub_u32 s21, s25, s27')
    a('s_lshl_b32 s27, s24, 2')
    a('s_add_u32 s27, s27, s26')
    emit_rho_t1(a, 27, 20, 28)
    a('s_lshl_b32 s23, s26, 2')
    a.label(f'{name}_fft')
    a.reset_hist()
    vm = Cnt(a, 'vmcnt', 63); lg = Cnt(a, 'lgkmcnt', 15)
    a('v_lshl_add_u32 v3, v1, 2, v8')
    a('v_and_b32 v5, 31, v3')
    a('v_lshlrev_b32 v5, 6, v5')
    a('v_add_u32 v5, s20, v5')
    a('v_sub_u32 v6, 0x800, v5')
    a('v_and_b32 v6, 0x7ff, v6')
    a('v_cmp_gt_u32 vcc, 32, v3')
    a('v_lshlrev_b32 v4, 4, v7')
    a('v_cndmask_b32 v5, v6, v5, vcc')
    a('v_mul_u32_u24 v5, 1280, v5')
    a('v_add_u32 v5, v5, v4')
    a(f'v_mul_u32_u24 v6, {XP}, v3')
    a('v_add_u32 v6, v6, v4')
    a('s_waitcnt lgkmcnt(0)')
    srd(a, 8, 8, 9, S*D*2)
    X = 64
    for jj in range(5):
        a(f'buffer_load_dwordx4 {vr(X+4*jj,4)}, v5, s[8:11], 0 offen offset:{256*jj}')
        vm.issue(('x', jj))
    srd(a, 12, 12, 13, ws_size(stamps))
    a('v_lshlrev_b32 v9, 2, v8')
    a('v_cvt_f32_u32 v9, v9')
    BA = 20; BA2 = 24; CSUM = 26; BB = 28; BM = 32; BCc = 36; BCs = 40; T = 44
    a('s_lshl_b32 s26, s21, 3')
    a('s_add_u32 s26, s26, 1')
    a('v_and_b32 v10, 7, v7')
    a('v_add_u32 v10, s26, v10')
    a('v_cvt_f32_u32 v10, v10')
    a(f'v_mul_f32 v10, {fbits(1/40)}, v10')
    a('v_lshrrev_b32 v11, 3, v7')
    a('v_cvt_f32_u32 v11, v11')
    a(f'v_mul_f32 v11, {fbits(0.25)}, v11')
    a('v_fma_f32 v11, v10, v9, v11')
    cj = [0,1,2,3,16,17,18,19,32,33,34,35]
    for j, c in enumerate(cj):
        a(f'v_fmamk_f32 v{T+j}, v10, {fbits(float(c))}, v11')
    for j in range(12):
        a(f'v_cos_f32 v{T+j}, v{T+j}')
    for j in range(6):
        a(f'v_cvt_pk_bf16_f32 v{BA+j}, v{T+2*j}, v{T+2*j+1}')
    a('v_cmp_gt_u32 vcc, 2, v8')
    ONES = 60
    for j in range(4): a(f'v_mov_b32 v{ONES+j}, 0x3f803f80')
    a(f'v_cndmask_b32 v{BA2}, 0, v{BA2}, vcc')
    a(f'v_cndmask_b32 v{BA2+1}, 0, v{BA2+1}, vcc')
    a(f'v_mfma_f32_16x16x32_bf16 v[84:87], {vr(ONES,4)}, {vr(BA,4)}, 0')
    a(f'v_mfma_f32_16x16x16_bf16 v[88:91], {vr(ONES,2)}, {vr(BA2,2)}, 0')
    a('s_and_b32 s27, s22, 7')
    a('s_add_u32 s28, s27, s26')
    a('v_lshrrev_b32 v10, 1, v7')
    a('v_mul_u32_u24 v10, 40, v10')
    a('v_add_u32 v10, s28, v10')
    a('v_and_b32 v11, 1, v7')
    a('v_cvt_f32_u32 v12, v11')
    a(f'v_mul_f32 v12, {fbits(0.25)}, v12')
    a('v_mov_b32 v13, 0x80008000')
    a('v_mul_lo_u32 v13, v13, v11')
    a('v_cvt_f32_u32 v14, v10')
    a(f'v_mul_f32 v14, {fbits(1/640)}, v14')
    a(f'v_fma_f32 v{T}, v14, v9, v12')
    for r in range(1, 4): a(f'v_fmamk_f32 v{T+r}, v14, {fbits(float(r))}, v{T}')
    a(f'v_add_f32 v{CSUM}, v84, v88')
    for r in range(4): a(f'v_sin_f32 v{T+4+r}, v{T+r}')
    for r in range(4): a(f'v_cos_f32 v{T+r}, v{T+r}')
    for j in range(4): a(f'v_cvt_pk_f16_f32 v{BB+j}, v{T+2*j}, v{T+2*j+1}')
    for j in range(4): a(f'v_xor_b32 v{BM+j}, v13, v{BB+j}')
    a('s_lshr_b32 s29, s22, 3')
    a('s_lshl_b32 s30, s29, 4')
    a('v_add_u32 v15, s30, v7')
    a('v_cvt_f32_u32 v10, v15')
    a(f'v_mul_f32 v10, {fbits(1/32)}, v10')
    a('s_cmp_eq_u32 s20, 32')
    a(f's_cselect_b32 s31, {fbits(0.5)}, 0')
    a('v_add_f32 v11, s31, v9')
    a('v_mul_f32 v11, v10, v11')
    for j, c in enumerate(cj[:8]):
        a(f'v_fmamk_f32 v{T+j}, v10, {fbits(float(c))}, v11')
    for j in range(8): a(f'v_sin_f32 v{T+8+j}, v{T+j}')
    for j in range(8): a(f'v_cos_f32 v{T+j}, v{T+j}')
    for j in range(4):
        a(f'v_cvt_pk_f16_f32 v{BCc+j}, v{T+2*j}, v{T+2*j+1}')
        a(f'v_cvt_pk_f16_f32 v{BCs+j}, v{T+8+2*j}, v{T+8+2*j+1}')
    a(f's_mul_i32 s32, s22, {4*XP}')
    a('v_lshlrev_b32 v10, 3, v2')
    a('v_add_u32 v10, s32, v10')
    a('v_and_b32 v11, 31, v2')
    a('v_lshlrev_b32 v11, 3, v11')
    a('v_add_u32 v11, s32, v11')
    a('v_and_b32 v12, 7, v7')
    a(f'v_mul_u32_u24 v12, {G_E1}, v12')
    a('v_lshl_add_u32 v12, v8, 8, v12')
    a('v_lshrrev_b32 v13, 3, v7')
    a('v_lshl_add_u32 v12, v13, 3, v12')
    a('s_lshr_b32 s33, s22, 2'); a('s_lshl_b32 s33, s33, 10'); a('s_and_b32 s34, s22, 3'); a('s_lshl_b32 s34, s34, 6'); a('s_add_u32 s33, s33, s34'); a(f's_add_u32 s33, s33, {G_OFF}')
    a('v_add_u32 v12, s33, v12')
    a(f's_mul_i32 s34, s27, {G_E1}'); a(f's_add_u32 s34, s34, {G_OFF}')
    a('v_lshlrev_b32 v13, 4, v2')
    a('v_add_u32 v13, s34, v13')
    a(f'v_mul_u32_u24 v14, {TP}, v15')
    a('v_lshl_add_u32 v14, v8, 6, v14')
    a('s_lshl_b32 s34, s27, 2')
    a('v_add_u32 v14, s34, v14')
    a(f's_mul_i32 s34, s22, {2*TP}')
    a('v_lshlrev_b32 v15, 2, v2')
    a('v_add_u32 v15, s34, v15')
    a('v_lshrrev_b32 v16, 3, v2')
    a('v_mul_u32_u24 v16, 40, v16')
    a('v_and_b32 v17, 7, v2')
    a('v_add_lshl_u32 v16, v16, v17, 4')
    a(f's_mul_i32 s36, s22, {2*U_T1}')
    a('s_mul_i32 s37, s24, 5120'); a('s_add_u32 s36, s36, s37')
    a('s_lshl_b32 s37, s21, 7'); a('s_add_u32 s36, s36, s37')
    a('s_add_u32 s36, s36, s23'); a(f's_add_u32 s36, s36, {U_OFF}')
    a(f's_add_u32 s37, s36, {U_T1}')
    a('s_and_b32 s35, s20, 31')
    SA = 56
    for j in range(4): a(f'v_mov_b32 v{SA+j}, 0')
    stamp(a, 1, stamps)
    for jj in range(5):
        vm.wait(('x', jj))
        a(f'ds_write_b128 v6, {vr(X+4*jj,4)} offset:{256*jj}')
        lg.issue('xw')
        if jj == 4:
            FR = 96
            for rho in range(4):
                b = FR + rho * 6
                a(f'ds_read_b64_tr_b16 {vr(b,2)}, v10 offset:{rho*XP}')
                a(f'ds_read_b64_tr_b16 {vr(b+2,2)}, v10 offset:{rho*XP+512}')
                a(f'ds_read_b64_tr_b16 {vr(b+4,2)}, v11 offset:{rho*XP+1024}')
                lg.issue(('tr', rho), 3)
        for r in range(4):
            a(f'v_dot2c_f32_bf16 v{SA+(r&1)}, v{X+4*jj+r}, v{ONES}')
            a(f'v_dot2c_f32_bf16 v{SA+2+(r&1)}, v{X+4*jj+r}, v{X+4*jj+r}')
    stamp(a, 2, stamps)
    a(f'v_add_f32 v{SA}, v{SA}, v{SA+1}')
    a(f'v_add_f32 v{SA+2}, v{SA+2}, v{SA+3}')
    D1 = 44
    D1r = [84, 88, 92, 44]
    for rho in range(4):
        lg.wait(('tr', rho))
        a(f'v_mfma_f32_16x16x32_bf16 {vr(D1r[rho],4)}, {vr(FR+rho*6,4)}, {vr(BA,4)}, 0')
        rot = [8, 4, 2, 1][rho]
        a(f'v_add_f32_dpp v{SA}, v{SA}, v{SA} row_ror:{rot} row_mask:0xf bank_mask:0xf')
        a(f'v_add_f32_dpp v{SA+2}, v{SA+2}, v{SA+2} row_ror:{rot} row_mask:0xf bank_mask:0xf')
    sts = [f'v_mul_f32 v{SA}, {fbits(1/640)}, v{SA}',
           f'v_mul_f32 v{SA+2}, {fbits(1/640)}, v{SA+2}',
           f'v_fma_f32 v{SA+2}, -v{SA}, v{SA}, v{SA+2}',
           f'v_max_f32 v{SA+2}, 0, v{SA+2}',
           f'v_add_f32 v{SA+2}, {fbits(1e-5)}, v{SA+2}',
           f'v_rsq_f32 v{SA+2}, v{SA+2}',
           's_nop 0',
           f'v_mul_f32 v{SA}, v{SA}, v{SA+2}']
    for rho in range(4):
        a(f'v_mfma_f32_16x16x16_bf16 {vr(D1r[rho],4)}, {vr(FR+rho*6+4,2)}, {vr(BA2,2)}, {vr(D1r[rho],4)}')
        a(sts[2*rho]); a(sts[2*rho+1])
    for rho in range(4):
        a(f'v_readlane_b32 s{44+2*rho}, v{SA+2}, {16*rho}')
        a(f'v_readlane_b32 s{45+2*rho}, v{SA}, {16*rho}')
    for rho in range(4):
        a(f'v_mul_f32 v{48+2*rho}, s{45+2*rho}, v{CSUM}')
    for rho in range(4):
        d = D1r[rho]; sp = 44 + 2*rho; tb = 48 + 2*rho
        a(f'v_pk_fma_f32 {vr(d,2)}, {vr(d,2)}, {sr(sp,2)}, {vr(tb,2)} op_sel_hi:[1,0,0] neg_lo:[0,0,1] neg_hi:[0,0,1]')
        a(f'v_pk_fma_f32 {vr(d+2,2)}, {vr(d+2,2)}, {sr(sp,2)}, {vr(tb,2)} op_sel_hi:[1,0,0] neg_lo:[0,0,1] neg_hi:[0,0,1]')
    for rho in range(4):
        d = D1r[rho]
        a(f'v_cvt_pk_f16_f32 v{d}, v{d}, v{d+1}')
        a(f'v_cvt_pk_f16_f32 v{d+1}, v{d+2}, v{d+3}')
        a(f'ds_write_b64 v12, {vr(d,2)} offset:{16*rho}')
    lg.wait_all()
    stamp(a, 3, stamps)
    a('s_barrier')
    AF = 64
    for rt in (0, 2, 1, 3):
        a(f'ds_read_b128 {vr(AF+rt*4,4)}, v13 offset:{rt*1024}')
    D2 = 96
    for h in range(2):
        a(f's_waitcnt lgkmcnt({3-2*h})')
        a(f'v_mfma_f32_16x16x32_f16 {vr(D2+h*4,4)}, {vr(AF+h*4,4)}, {vr(BB,4)}, 0')
        a(f's_waitcnt lgkmcnt({2-2*h})')
        a(f'v_mfma_f32_16x16x32_f16 {vr(D2+h*4,4)}, {vr(AF+(2+h)*4,4)}, {vr(BM,4)}, {vr(D2+h*4,4)}')
    ZF = 104
    for j in range(4): a(f'v_cvt_pk_f16_f32 v{ZF+j}, v{D2+2*j}, v{D2+2*j+1}')
    D3 = 108
    a(f'v_mfma_f32_16x16x32_f16 {vr(D3,4)}, {vr(ZF,4)}, {vr(BCc,4)}, 0')
    a(f'v_mfma_f32_16x16x32_f16 {vr(D3+4,4)}, {vr(ZF,4)}, {vr(BCs,4)}, 0')
    c = D3; s_ = D3 + 4
    for e in range(2):
        a(f'v_add_f32 v{c+2*e}, v{c+2*e}, v{s_+2*e+1}')
        a(f'v_sub_f32 v{c+2*e+1}, v{c+2*e+1}, v{s_+2*e}')
    for e in range(2):
        a(f'v_cvt_pk_f16_f32 v{116+e}, v{c+2*e}, v{c+2*e+1}')
    a('ds_write2_b32 v14, v116, v117 offset0:0 offset1:8')
    a('s_waitcnt lgkmcnt(0)')
    a('s_barrier')
    a(f'ds_read_b32 v118, v15')
    a(f'ds_read_b32 v119, v15 offset:{TP}')
    stamp(a, 4, stamps)
    a('s_cmp_eq_u32 s35, 0')
    a(f's_cbranch_scc1 {name}_short')
    a('s_waitcnt lgkmcnt(0)')
    a(f'buffer_store_dword v118, v16, s[12:15], s36 offen {uflag}')
    a(f'buffer_store_dword v119, v16, s[12:15], s37 offen {uflag}')
    a(f's_branch {name}_fin')
    a.label(f'{name}_short')
    a('s_waitcnt lgkmcnt(0)')
    a(f'buffer_store_short v118, v16, s[12:15], s36 offen {uflag}')
    a(f'buffer_store_short v119, v16, s[12:15], s37 offen {uflag}')
    a(f's_branch {name}_fin')

    a.label(f'{name}_pack_lo')
    a.reset_hist()
    a('s_sub_u32 s26, s25, 20'); a('s_mul_i32 s26, s26, 7'); a('s_add_u32 s26, s26, s24'); a('s_sub_u32 s26, s26, 1')
    a(f's_branch {name}_pack')
    a.label(f'{name}_pack_hi')
    a('s_sub_u32 s26, s2, 165')
    a.label(f'{name}_pack')
    a('s_cmp_eq_u32 s26, 80')
    a(f's_cbranch_scc1 {name}_zero')
    a(f's_cmp_ge_u32 s26, {80 if pack_w2 else 48}')
    a(f's_cbranch_scc1 {name}_end')
    a('v_lshrrev_b32 v9, 2, v7')
    a('v_and_b32 v4, 3, v2')
    a('v_lshlrev_b32 v3, 4, v2')
    a('v_lshl_add_u32 v9, v8, 2, v9')
    a('s_waitcnt lgkmcnt(0)')
    srd(a, 12, 12, 13, ws_size(stamps))
    if pack_w2:
        a('s_cmp_ge_u32 s26, 48')
        a(f's_cbranch_scc1 {name}_pack_w2')
    a('s_cmp_ge_u32 s22, 10')
    a(f's_cbranch_scc1 {name}_end')
    srd(a, 8, 16, 17, D*F*2)
    a('v_lshrrev_b32 v5, 3, v2')
    a('v_mul_u32_u24 v5, 3072, v5')
    a('v_and_b32 v6, 7, v2')
    a('v_lshl_add_u32 v5, v6, 4, v5')
    a('s_lshr_b32 s27, s26, 1'); a('s_and_b32 s28, s26, 1')
    a('s_mul_i32 s29, s28, 10'); a('s_add_u32 s29, s29, s22')
    a(f's_mul_i32 s30, s29, {32*3072}'); a('s_lshl_b32 s31, s27, 7'); a('s_add_u32 s30, s30, s31')
    a('s_lshl_b32 s31, s22, 12')
    a('s_mov_b32 m0, s31')
    for i in range(4):
        a('buffer_load_dwordx4 v5, s[8:11], s30 offen lds')
        if i < 3:
            a(f's_add_u32 s30, s30, {8*3072}')
            a('s_add_u32 m0, m0, 1024')
    a('v_lshlrev_b32 v6, 7, v9')
    a('v_lshl_add_u32 v6, v4, 3, v6')
    a('v_add_u32 v6, s31, v6')
    for j in range(4): a(f'v_mov_b32 v{12+j}, 0x3f803f80')
    a('s_mul_i32 s33, s27, 43'); a('s_lshr_b32 s33, s33, 7')
    a('s_mul_i32 s34, s33, 3'); a('s_sub_u32 s34, s27, s34')
    a('s_mul_i32 s33, s33, 80'); a('s_add_u32 s33, s33, s29'); a('s_mul_i32 s33, s33, 3')
    a('s_mul_i32 s35, s34, 120')
    for tl in range(4):
        a(f's_add_u32 s36, s35, {(tl//2)*60 + tl%2}')
        a('s_cmp_eq_u32 s34, 2')
        a(f's_cselect_b32 s36, {tl*60+2}, s36')
        a('s_add_u32 s36, s36, s33'); a('s_lshl_b32 s36, s36, 10'); a(f's_add_u32 s{40+tl}, s36, {W1P_OFF}')
    a('s_waitcnt vmcnt(0)')
    for tl in range(4):
        b = 20 + tl*4
        a(f'ds_read_b64_tr_b16 {vr(b,2)}, v6 offset:{tl*32}')
        a(f'ds_read_b64_tr_b16 {vr(b+2,2)}, v6 offset:{tl*32+2048}')
    for tl in range(4):
        b = 20 + tl*4
        a(f's_waitcnt lgkmcnt({6-2*tl})')
        a(f'buffer_store_dwordx4 {vr(b,4)}, v3, s[12:15], s{40+tl} offen {stflag}')
        a(f'v_mfma_f32_16x16x32_bf16 {vr(40+4*tl,4)}, {vr(b,4)}, v[12:15], 0')
    a('v_lshlrev_b32 v10, 4, v8')
    a('s_lshl_b32 s32, s22, 8'); a('s_add_u32 s32, s32, 40960')
    a('v_add_u32 v10, s32, v10')
    for tl in range(4):
        a(f'ds_write_b128 v10, {vr(40+4*tl,4)} offset:{64*tl}')
    a('s_waitcnt lgkmcnt(0)')
    a('s_barrier')
    a('s_cmp_lg_u32 s22, 0')
    a(f's_cbranch_scc1 {name}_fin')
    a('v_lshlrev_b32 v10, 2, v2')
    for w in range(10): a(f'ds_read_b32 v{20+w}, v10 offset:{40960+256*w}')
    a('s_mul_i32 s32, s28, 6144'); a('s_lshl_b32 s33, s27, 8'); a('s_add_u32 s32, s32, s33'); a(f's_add_u32 s32, s32, {CS_OFF}')
    a('s_waitcnt lgkmcnt(0)')
    for w in range(1, 10): a(f'v_add_f32 v20, v20, v{20+w}')
    a(f'buffer_store_dword v20, v10, s[12:15], s32 offen {stflag}')
    a(f's_branch {name}_fin')
    if pack_w2:
        a.label(f'{name}_pack_w2')
        a.reset_hist()
        a('s_cmp_ge_u32 s22, 12')
        a(f's_cbranch_scc1 {name}_end')
        srd(a, 8, 18, 19, D*F*2)
        a('s_sub_u32 s27, s26, 48'); a('s_mul_i32 s27, s27, 12'); a('s_add_u32 s32, s27, s22')
        a('s_lshr_b32 s33, s32, 3'); a('s_and_b32 s34, s32, 7')
        a(f's_mul_i32 s35, s33, {32*1280}'); a('s_mul_i32 s36, s34, 160'); a('s_add_u32 s35, s35, s36')
        a('s_mul_i32 s36, s34, 48'); a('s_add_u32 s36, s36, s33'); a('s_mul_i32 s36, s36, 5120'); a(f's_add_u32 s40, s36, {W2P_OFF}')
        a('s_mul_i32 s29, s22, 5120')
        a('s_mov_b32 m0, s29')
        for i in range(5):
            a(f'v_add_u32 v10, {64*i}, v2')
            a('v_mul_u32_u24 v11, 205, v10'); a('v_lshrrev_b32 v11, 11, v11')
            a('v_mul_u32_u24 v12, 10, v11'); a('v_sub_u32 v12, v10, v12')
            a('v_mul_u32_u24 v11, 1280, v11')
            a(f'v_lshl_add_u32 v{14+i}, v12, 4, v11')
            a(f'buffer_load_dwordx4 v{14+i}, s[8:11], s35 offen lds')
            if i < 4: a('s_add_u32 m0, m0, 1024')
        a('v_mul_u32_u24 v5, 160, v9')
        a('v_add_u32 v5, s29, v5')
        a('v_lshl_add_u32 v5, v4, 3, v5')
        a('v_add_u32 v13, 0x1000, v3')
        a('s_waitcnt vmcnt(0)')
        for i in range(5):
            b = 20 + i*4
            a(f'ds_read_b64_tr_b16 {vr(b,2)}, v5 offset:{32*i}')
            a(f'ds_read_b64_tr_b16 {vr(b+2,2)}, v5 offset:{32*i+16*160}')
        for i in range(5):
            b = 20 + i*4
            a(f's_waitcnt lgkmcnt({8-2*i})')
            if i < 4: a(f'buffer_store_dwordx4 {vr(b,4)}, v3, s[12:15], s40 offen offset:{1024*i} {stflag}')
            else: a(f'buffer_store_dwordx4 {vr(b,4)}, v13, s[12:15], s40 offen {stflag}')
    a(f's_branch {name}_fin')
    a.label(f'{name}_zero')
    a.reset_hist()
    a('s_cmp_ge_u32 s22, 8')
    a(f's_cbranch_scc1 {name}_end')
    a('s_waitcnt lgkmcnt(0)')
    srd(a, 12, 12, 13, ws_size(stamps))
    a('v_lshlrev_b32 v3, 4, v0')
    for j in range(4): a(f'v_mov_b32 v{4+j}, 0')
    a(f's_mov_b32 s30, {FLAG_OFF}')
    a('buffer_store_dwordx4 v[4:7], v3, s[12:15], s30 offen')
    a.label(f'{name}_fin')
    if stamps:
        a.reset_hist()
        a('s_nop 7')
        write_stamps(a, 6, 0, 22)
    a.label(f'{name}_end')
    a('s_endpgm')
    return dict(vgpr=120, sgpr=80, accum=120, lds=LDS_A, threads=1024)

if __name__ == '__main__':
    a = Asm()
    a.raw(f'; @launch kernel=ka_kernel grid=(256,1,1) block=(1024,1,1) lds={LDS_A}')
    a.raw('.amdgcn_target "amdgcn-amd-amdhsa--gfx950"\n.text')
    info = gen_kA(a, 'ka_kernel', stamps=True)
    a.raw('.section .rodata,"a"\n.p2align 6')
    a.raw(kernel_desc('ka_kernel', info['vgpr'], info['sgpr'], info['accum']))
    open('ka.s', 'w').write(a.text())
    print('instrs', a.count, 'nops', a.nops)
```

```python
from common import *
from sched import Sched

ST_OFF = 81920
RED_OFF = ST_OFF + 4096
LDS_CD = RED_OFF + 61440

def gen_kCD(a, name, mapping='B', stamps=False, R=90, LAT=700, DEPTH=7, oflag='', pollpos=50, verbose=False):
    a.raw(f'.globl {name}\n.p2align 8\n.type {name},@function\n{name}:')
    a.reset_hist()
    a('s_cmp_ge_u32 s2, 256')
    a(f's_cbranch_scc1 {name}_end')
    stamp(a, 0, stamps)
    a('s_load_dwordx2 s[8:9], s[0:1], 0')
    a('s_load_dwordx2 s[12:13], s[0:1], 96')
    a('s_load_dwordx2 s[16:17], s[0:1], 56')
    a('s_load_dwordx4 s[4:7], s[0:1], 72')
    a('v_lshrrev_b32 v1, 6, v0')
    a('v_and_b32 v2, 63, v0')
    a('v_readfirstlane_b32 s26, v1')
    emit_map(a, mapping, 22, 23)
    emit_rho_t1(a, 22, 24, 25)
    a('v_lshrrev_b32 v6, 3, v2')
    a('v_xor_b32 v7, v6, v2')
    a('v_and_b32 v7, 7, v7')
    a('v_mul_u32_u24 v6, 0xa000, v6')
    a('v_lshl_add_u32 v6, v7, 4, v6')
    a('s_lshl_b32 s32, s26, 9'); a('s_add_u32 s32, s32, s24'); a('s_mul_i32 s32, s32, 1280')
    a(f's_add_u32 s33, s32, {256*1280}')
    a('s_lshl_b32 s27, s26, 11')
    a('s_sub_u32 s25, 32, s24'); a('s_and_b32 s25, s25, 31')
    a('s_mul_i32 s34, s26, 2560')
    a(f's_add_u32 s35, s34, {U_OFF - 16}')
    a(f's_sub_u32 s34, {U_OFF + (639-15)*16}, s34')
    a('s_cmp_lt_u32 s26, 2')
    a('s_cselect_b64 vcc, -1, 0')
    a('s_cselect_b32 s28, 1, -1')
    a('s_cselect_b32 s30, s24, s25')
    a('s_cselect_b32 s38, 0, 0x80000000')
    a('s_cselect_b32 s39, 0, 1')
    a('s_cselect_b32 s35, s35, s34')
    a('s_lshl_b32 s28, s28, 8')
    a(f's_or_b32 s38, s38, {fbits(1/2048)}')
    a('s_cmp_eq_u32 s24, 0'); a('s_cselect_b32 s39, 0, s39')
    a(f's_mul_i32 s31, s30, {U_T1}'); a('s_add_u32 s31, s31, s35')
    a('s_lshl_b32 s36, s23, 2'); a('s_add_u32 s36, s36, s26')
    a(f's_mul_i32 s37, s36, {60*1024}'); a(f's_add_u32 s58, s37, {W2P_OFF}'); a(f's_add_u32 s37, s37, {W1P_OFF}')
    a('s_waitcnt lgkmcnt(0)')
    srd(a, 8, 8, 9, S*D*2)
    Sx = Sched(a, R=R, LAT=LAT, DEPTH=DEPTH)
    t = Sx
    for ap in range(10):
        for o in range(2):
            Sx.q([f's_add_u32 m0, s27, {ap*8192 + o*1024 - 128*ap}', f'buffer_load_dwordx4 v6, s[8:11], s{32+o} offen offset:{128*ap} lds'], 'x')
    def UA(tl, ks2): return (tl*2+ks2)*4
    for tl in range(10):
        for ks2 in range(2):
            vo = (12 if tl == 0 else 10) + ks2
            L = [f'buffer_load_dwordx4 {ar(UA(tl,ks2),4)}, v{vo}, s[12:15], s31 offen']
            if ks2 == 1 and tl < 9: L.append('s_add_u32 s31, s31, s28')
            Sx.q(L, ('u', tl//2), gate='addr')
    def WA(fr): return 80 + fr*4 if fr < 44 else (fr-44)*4
    for fr in range(60):
        L = [f'buffer_load_dwordx4 {ar(WA(fr),4)}, v5, s[12:15], s37 offen offset:{1024*(fr%4)}']
        if fr % 4 == 3: L.append('s_add_u32 s37, s37, 4096')
        Sx.q(L, ('w', fr//3), gate='s2done' if fr >= 44 else None)
    for _ in range(4): Sx.pop()
    for l in (f's_mov_b32 s14, {ws_size(stamps)}', 's_mov_b32 s15, 0x20000', f's_mov_b32 s18, {F*2}', 's_mov_b32 s19, 0x20000',
              's_mov_b32 s80, s4', 's_mov_b32 s81, s5', f's_mov_b32 s82, {D*2}', 's_mov_b32 s83, 0x20000',
              's_mov_b32 s84, s6', 's_mov_b32 s85, s7', f's_mov_b32 s86, {S*D*2}', 's_mov_b32 s87, 0x20000'): t(l)
    t('v_and_b32 v3, 15, v2')
    t('v_lshrrev_b32 v4, 4, v2')
    t('v_lshlrev_b32 v5, 4, v2')
    t('v_sub_u32 v11, 15, v3')
    t('v_cndmask_b32 v10, v11, v3, vcc')
    t('v_mul_u32_u24 v11, 5120, v4')
    t('v_lshl_add_u32 v10, v10, 4, v11')
    t('v_add_u32 v11, 0x5000, v10')
    t('v_and_b32 v12, 0xcf, v0')
    t('v_cmp_eq_u32 vcc, 0, v12')
    t('v_mov_b32 v14, 0x7ff00000')
    t('v_cndmask_b32 v12, v10, v14, vcc')
    t('v_cndmask_b32 v13, v11, v14, vcc')
    Sx.gate('addr')
    t('v_xor_b32 v7, v4, v3'); t('v_and_b32 v7, 7, v7'); t('v_lshlrev_b32 v7, 4, v7'); t('v_lshl_add_u32 v7, v3, 7, v7')
    t('v_xor_b32 v8, 64, v7')
    t('v_add_u32 v24, 0xa000, v7'); t('v_add_u32 v25, 0xa000, v8')
    t('s_mul_i32 s40, s26, 5'); t('s_lshr_b32 s41, s40, 1'); t('s_lshl_b32 s41, s41, 13')
    t('s_and_b32 s42, s26, 1'); t('s_lshl_b32 s43, s42, 6'); t('s_lshl_b32 s42, s42, 13'); t('s_add_u32 s42, s42, s41')
    t('v_xor_b32 v26, s43, v7'); t('v_add_u32 v26, s41, v26')
    t('v_xor_b32 v27, s43, v8'); t('v_add_u32 v27, s42, v27')
    def own(kk, tt): return (26 + (kk & 1), (kk//2)*8192 + tt*2048)
    t('v_and_b32 v28, 1, v3'); t('v_lshlrev_b32 v28, 4, v28'); t('v_mov_b32 v29, 0x3f80'); t('v_lshlrev_b32 v28, v28, v29')
    t('v_lshrrev_b32 v29, 1, v3')
    t('v_lshlrev_b32 v30, 2, v4'); t('v_sub_u32 v29, v29, v30')
    for q in range(4):
        t(f'v_cmp_eq_u32 vcc, {q}, v29'); t(f'v_cmp_eq_u32 s[44:45], {q-8}, v29')
        t(f'v_cndmask_b32 v{16+q}, 0, v28, vcc'); t(f'v_cndmask_b32 v{20+q}, 0, v28, s[44:45]')
    M = 32; T = 64
    t('v_lshlrev_b32 v14, 5, v3'); t('v_add_u32 v14, s24, v14')
    t('v_lshlrev_b32 v15, 1, v4'); t('v_cvt_f32_u32 v15, v15')
    t('v_xor_b32 v28, s39, v3'); t('v_lshlrev_b32 v28, 31, v28'); t('v_or_b32 v28, 0x38003800, v28')
    t('v_cmp_eq_u32 vcc, 0, v4')
    for tt in range(4):
        t(f'v_add_u32 v29, {512*tt}, v14')
        t('v_cvt_f32_u32 v29, v29')
        t('v_mul_f32 v29, s38, v29')
        t(f'v_mul_f32 v{T}, v29, v15')
        t(f'v_sub_f32 v30, 0, v{T}')
        for ks2 in range(2):
            for j in range(4):
                if ks2 == 0 and j == 0: continue
                c = [8*ks2, 32-8*ks2, 8*ks2+1, 31-8*ks2][j]
                t(f'v_fmamk_f32 v{T+ks2*4+j}, v29, {fbits(float(c))}, v{T if j%2==0 else 30}')
        t(f'v_mul_f32 v31, {fbits(16.0)}, v29')
        t(f'v_cndmask_b32 v{T+1}, v{T+1}, v31, vcc')
        for j in range(8): t(f'v_sin_f32 v{T+8+j}, v{T+j}')
        for j in range(8): t(f'v_cos_f32 v{T+j}, v{T+j}')
        for j in range(8): t(f'v_cvt_pk_f16_f32 v{M+tt*8+j}, v{T+j}, v{T+8+j}')
        t(f'v_cndmask_b32 v{M+tt*8}, v{M+tt*8}, v28, vcc')
    if verbose: print('Mgen done', Sx.clock)
    Sx.vwait('x', 20)
    a('s_barrier')
    stamp(a, 1, stamps)
    if verbose: print('x barrier', Sx.clock)
    Y = 64; XF = 224
    def YG(kk, tt): return Y + (kk*4+tt)*8
    def xread(kk):
        for tt in range(4):
            va, off = own(kk, tt)
            Sx.ds(f'ds_read_b128 {vr(XF+(kk&1)*16+tt*4,4)}, v{va} offset:{off}', ('xr', kk))
    xread(0)
    for kk in range(5):
        if kk + 1 < 5: xread(kk+1)
        Sx.lwait(('xr', kk), 100 if kk == 0 else 0)
        for tt in range(4):
            for i in range(2):
                t(f'v_mfma_f32_16x16x32_bf16 {vr(YG(kk,tt)+4*i,4)}, {vr(16+4*i,4)}, {vr(XF+(kk&1)*16+tt*4,4)}, 0')
    def packlist(kk):
        L = []
        for tt in range(4):
            b = YG(kk, tt)
            for j in range(4): L.append(f'v_cvt_pk_bf16_f32 v{b+j}, v{b+2*j}, v{b+2*j+1}')
            va, off = own(kk, tt)
            L.append(f'ds_write_b128 v{va}, {vr(b,4)} offset:{off}')
        return L
    pend = []
    for kk in range(5):
        Sx.vwait(('u', kk), 4)
        c = 0
        order = [(ks2, tt, i) for ks2 in range(2) for tt in range(4) for i in range(2)]
        if kk == 4: order = [(ks2, tt, i) for tt in range(4) for ks2 in range(2) for i in range(2)]
        for ks2, tt, i in order:
            d = vr(YG(kk,tt)+4*i, 4)
            t(f'v_mfma_f32_16x16x32_f16 {d}, {ar(UA(2*kk+i,ks2),4)}, {vr(M+tt*8+ks2*4,4)}, {d}')
            c += 1
            if c >= 3:
                for _ in range(2):
                    if pend: t(pend.pop(0))
        while pend: t(pend.pop(0))
        pend = packlist(kk)
    Sx.gate('s2done')
    while pend: t(pend.pop(0))
    Sx.lwait_all()
    a('s_barrier')
    stamp(a, 2, stamps)
    if verbose: print('h barrier', Sx.clock)
    BF = 32
    def bread(ks, tts=range(4)):
        for tt in tts:
            off = (ks//2)*8192 + tt*2048
            va = 7 + (ks & 1)
            if off >= 40960: va = 24 + (ks & 1); off -= 40960
            Sx.ds(f'ds_read_b128 {vr(BF+(ks&1)*16+tt*4,4)}, v{va} offset:{off}', ('b', ks))
    def UP(gi): return YG(gi//4, gi%4) + 4
    def AC(i, tt): return UP(i*4+tt)
    bread(0)
    for j in range(4): t(f'v_mov_b32 v{16+j}, 0x3f803f80')
    SS = 224; SG = 240
    stat = []
    for kk in range(5):
        for tt in range(4):
            h = vr(YG(kk,tt), 4)
            stat.append(f'v_mfma_f32_16x16x32_bf16 {vr(SS+4*tt,4)}, v[16:19], {h}, {"0" if kk == 0 else vr(SS+4*tt,4)}')
            stat.append(f'v_mfma_f32_16x16x32_bf16 {vr(SG+4*tt,4)}, {h}, {h}, {"0" if kk == 0 else vr(SG+4*tt,4)}')
    def CSR(p, i): return UP(12 + p*3 + i)
    def B1R(i): return UP(18) + 2*i if i < 2 else UP(19)
    t('s_mul_i32 s42, s23, 12'); t('s_lshl_b32 s43, s26, 1'); t('s_add_u32 s43, s43, s42')
    t('s_add_u32 s44, s42, 8'); t('s_add_u32 s44, s44, s26')
    t('s_lshl_b32 s45, s43, 5'); t('s_lshl_b32 s46, s44, 5')
    t('s_lshl_b32 s47, s43, 6'); t(f's_add_u32 s47, s47, {CS_OFF}')
    t('s_lshl_b32 s48, s44, 6'); t(f's_add_u32 s48, s48, {CS_OFF}')
    t('s_add_u32 s49, s47, 6144'); t('s_add_u32 s50, s48, 6144')
    t('v_lshlrev_b32 v20, 3, v4')
    t('v_lshlrev_b32 v21, 4, v4')
    for _ in range(6): t(stat.pop(0))
    extra = []
    for i in range(3):
        so, off = (45, 32*i) if i < 2 else (46, 0)
        extra.append(([f'buffer_load_dwordx2 {vr(B1R(i),2)}, v20, s[16:19], s{so} offen offset:{off}'], 'bc', None, 0.3))
    for p in range(2):
        for i in range(3):
            so, off = (47+2*p, 64*i) if i < 2 else (48+2*p, 0)
            extra.append(([f'buffer_load_dwordx4 {vr(CSR(p,i),4)}, v21, s[12:15], s{so} offen offset:{off}'], 'bc', None, 0.3))
    pos = max(0, len(Sx.Q) - 15)
    Sx.Q[pos:pos] = extra
    def W2A(q): return 64 + 4*q if q < 4 else WA(q-4)
    POLL = 22
    for q in range(60):
        if q == pollpos:
            Sx.q([f'buffer_load_dwordx2 {vr(POLL,2)}, v9, s[12:15], s59 offen sc1'], 'poll', gate='signalled', cost=0.3)
        L = [f'buffer_load_dwordx4 {ar(W2A(q),4)}, v5, s[12:15], s58 offen offset:{1024*(q%4)}']
        if q % 4 == 3: L.append('s_add_u32 s58, s58, 4096')
        Sx.q(L, 'w2', gate=None if q < 4 else ('ks', (q-4)//3))
    SA = 224
    side = []
    for ks in range(20):
        Sx.vwait(('w', ks), 3)
        Sx.lwait(('b', ks))
        c = 0
        for i in range(3):
            for tt in range(4):
                d = vr(AC(i,tt), 4)
                t(f'v_mfma_f32_16x16x32_bf16 {d}, {ar(WA(ks*3+i),4)}, {vr(BF+(ks&1)*16+tt*4,4)}, {"0" if ks == 0 else d}')
                c += 1
                if c in (1, 2, 3, 4) and ks + 1 < 20: bread(ks + 1, [c-1])
                if c in (6, 9, 12) and stat: t(stat.pop(0))
                for _ in range(2):
                    if side: t(side.pop(0))
        Sx.gate(('ks', ks))
        if ks == 12:
            assert not stat
            side += ['v_and_b32 v22, 3, v3', 'v_cmp_eq_u32 s[52:53], 1, v22', 'v_cmp_eq_u32 s[54:55], 2, v22', 'v_cmp_eq_u32 s[56:57], 3, v22',
                     'v_lshlrev_b32 v30, 3, v3', 's_lshl_b32 s40, s26, 9', f's_add_u32 s40, s40, {ST_OFF}', 'v_add_u32 v30, s40, v30']
            for tt in range(4):
                g = SG + 4*tt
                side += [f'v_cndmask_b32 v{SS+4*tt+1}, v{g}, v{g+1}, s[52:53]',
                         f'v_cndmask_b32 v{SS+4*tt+1}, v{SS+4*tt+1}, v{g+2}, s[54:55]',
                         f'v_cndmask_b32 v{SS+4*tt+1}, v{SS+4*tt+1}, v{g+3}, s[56:57]']
            side += ['v_lshlrev_b32 v29, 3, v2', f'v_add_u32 v29, {ST_OFF}, v29']
        if ks == 13:
            assert not side
            Sx.hold += 1
            t('s_mov_b32 exec_lo, 0x00f0000f'); t('s_mov_b32 exec_hi, 0xf0000f00')
            for tt in range(4): Sx.ds(f'ds_write_b64 v30, {vr(SS+4*tt,2)} offset:{128*tt}', 'stw')
            t('s_mov_b64 exec, -1')
            Sx.hold -= 1
        if ks == 14:
            Sx.lwait('stw')
            a('s_barrier')
            for w in range(4): Sx.ds(f'ds_read_b64 {vr(SA+2*w,2)}, v29 offset:{512*w}', 'str')
        if ks == 15:
            Sx.lwait('str')
            side += [f'v_add_f32 v{SA}, v{SA}, v{SA+2}', f'v_add_f32 v{SA+1}, v{SA+1}, v{SA+3}',
                     f'v_add_f32 v{SA+4}, v{SA+4}, v{SA+6}', f'v_add_f32 v{SA+5}, v{SA+5}, v{SA+7}',
                     f'v_add_f32 v{SA}, v{SA}, v{SA+4}', f'v_add_f32 v{SA+1}, v{SA+1}, v{SA+5}',
                     f'v_mul_f32 v{SA}, {fbits(1/640)}, v{SA}', f'v_mul_f32 v{SA+1}, {fbits(1/640)}, v{SA+1}',
                     f'v_fma_f32 v{SA+1}, -v{SA}, v{SA}, v{SA+1}', f'v_max_f32 v{SA+1}, 0, v{SA+1}',
                     f'v_add_f32 v{SA+1}, {fbits(1e-5)}, v{SA+1}', f'v_rsq_f32 v{SA+1}, v{SA+1}',
                     'v_lshlrev_b32 v31, 3, v2', 'v_add_u32 v31, s40, v31',
                     f'v_mul_f32 v{SA}, v{SA}, v{SA+1}']
        if ks == 16:
            assert not side
            Sx.ds(f'ds_write_b64 v31, {vr(SA,2)} offset:2048', 'stw2')
            for tt in range(4): Sx.ds(f'ds_read_b64 {vr(SA+8+2*tt,2)}, v30 offset:{2048+tt*128}', 'str2')
            Sx.vwait('bc', 9)
            for i in range(3):
                for r in range(4): side.append(f'v_add_f32 v{CSR(0,i)+r}, v{CSR(0,i)+r}, v{CSR(1,i)+r}')
            for i in range(3):
                for h in range(2):
                    side.append(f'v_lshlrev_b32 v{CSR(1,i)+2*h}, 16, v{B1R(i)+h}')
                    side.append(f'v_and_b32 v{CSR(1,i)+2*h+1}, 0xffff0000, v{B1R(i)+h}')
        if ks == 17:
            assert not side
            Sx.lwait('str2')
            for tt in range(4):
                for i in range(3):
                    for r in range(4):
                        side.append(f'v_fma_f32 v{AC(i,tt)-4+r}, -v{SA+8+2*tt}, v{CSR(0,i)+r}, v{CSR(1,i)+r}')
    assert not side
    stamp(a, 3, stamps)
    if verbose: print('ffn1 done', Sx.clock)
    ST = SA + 8
    t('s_mul_i32 s41, s22, 48'); t('s_mul_i32 s42, s23, 6'); t('s_add_u32 s51, s41, s42')
    t('s_add_u32 s42, s51, s26'); t('s_lshl_b32 s42, s42, 12'); t(f's_add_u32 s42, s42, {R_OFF}')
    t('s_lshr_b32 s43, s26, 1'); t('s_add_u32 s43, s43, s51'); t('s_add_u32 s43, s43, 4'); t('s_lshl_b32 s43, s43, 12')
    t('s_and_b32 s44, s26, 1'); t('s_lshl_b32 s44, s44, 3'); t('s_add_u32 s43, s43, s44'); t(f's_add_u32 s43, s43, {R_OFF}')
    for tt in range(4):
        o = YG(3, tt); o2 = YG(4, tt)
        for i in range(3):
            ac = AC(i, tt); tm = ac - 4
            for h in range(2):
                t(f'v_pk_fma_f32 {vr(ac+2*h,2)}, {vr(ac+2*h,2)}, {vr(ST+2*tt,2)}, {vr(tm+2*h,2)} op_sel:[0,1,0] op_sel_hi:[1,1,1]')
            for r in range(4): t(f'v_max_f32 v{ac+r}, 0, v{ac+r}')
            for h in range(2): t(f'v_pk_mul_f32 {vr(ac+2*h,2)}, {vr(ac+2*h,2)}, {vr(ac+2*h,2)}')
            dst = o + 2*i if i < 2 else o2
            for h in range(2): t(f'v_cvt_pk_bf16_f32 v{dst+h}, v{ac+2*h}, v{ac+2*h+1}')
        Sx.mem(f'buffer_store_dwordx4 {vr(o,4)}, v5, s[12:15], s42 offen offset:{1024*tt} sc1', 'rst')
        Sx.mem(f'buffer_store_dwordx2 {vr(o2,2)}, v5, s[12:15], s43 offen offset:{1024*tt} sc1', 'rst')
    if verbose: print('r stored', Sx.clock)
    ACC = 32
    def acc(u, i): return ACC + (u*5+i)*4
    B2 = 112
    t('s_mul_i32 s45, s23, 160')
    for i in range(5):
        Sx.mem(f'buffer_load_dwordx2 {vr(B2+2*i,2)}, v20, s[80:83], s45 offen offset:{32*i}', 'b2', 0.3)
    t('s_lshl_b32 s46, s22, 8'); t(f's_add_u32 s46, s46, {FLAG_OFF}')
    t('s_lshl_b32 s59, s26, 6'); t('s_add_u32 s59, s59, s46')
    t('s_lshr_b32 s47, s23, 1'); t('s_lshl_b32 s47, s47, 6'); t('s_add_u32 s46, s46, s47')
    t('s_and_b32 s47, s23, 1'); t('s_lshl_b32 s47, s47, 2'); t('s_add_u32 s46, s46, s47')
    t('v_mov_b32 v9, 0')
    t('v_mov_b32 v28, 1')
    t('s_mul_i32 s47, s23, 5')
    for i in range(5):
        t(f's_add_u32 s48, s47, {i}')
        t('s_lshr_b32 s49, s48, 2'); t('s_lshl_b32 s49, s49, 13'); t('s_add_u32 s49, s49, s27')
        t('s_and_b32 s50, s48, 1'); t('s_lshl_b32 s50, s50, 3'); t('s_add_u32 s49, s49, s50')
        t('s_and_b32 s50, s48, 2'); t('s_lshl_b32 s50, s50, 5')
        t('v_xor_b32 v29, s50, v7'); t('v_add_u32 v29, s49, v29')
        Sx.ds(f'ds_read_b64 {vr(B2+10+2*i,2)}, v29', 'hres')
    for u in range(4):
        t(f'v_add_u32 v{10+u}, {u}, v1'); t(f'v_and_b32 v{10+u}, 3, v{10+u}')
        t(f'v_mul_u32_u24 v{14+u}, 15360, v{10+u}')
        t(f'v_lshl_add_u32 v{10+u}, v{10+u}, 10, v5')
        t(f'v_add_u32 v{14+u}, v{14+u}, v5'); t(f'v_add_u32 v{14+u}, {RED_OFF}, v{14+u}')
    t('s_mul_i32 s48, s26, 12'); t('s_add_u32 s48, s48, s41'); t('s_lshl_b32 s48, s48, 12'); t(f's_add_u32 s48, s48, {R_OFF}')
    Sx.vwait('rst')
    a('s_barrier')
    Sx.hold += 1
    t('s_cmp_lg_u32 s26, 0')
    t(f's_cbranch_scc1 {name}_nosig')
    t('s_mov_b64 exec, 1')
    t('buffer_store_dword v28, v9, s[12:15], s46 offen sc1')
    t('s_mov_b64 exec, -1')
    a.label(f'{name}_nosig')
    Sx.hold -= 1
    Sx.gate('signalled')
    stamp(a, 4, stamps)
    if verbose: print('signalled', Sx.clock)
    Sx.lwait('hres'); Sx.vwait('b2')
    for q in range(10):
        t(f'v_lshlrev_b32 v{ACC+2*q}, 16, v{B2+q}'); t(f'v_and_b32 v{ACC+2*q+1}, 0xffff0000, v{B2+q}')
        t(f'v_lshlrev_b32 v132, 16, v{B2+10+q}'); t(f'v_and_b32 v133, 0xffff0000, v{B2+10+q}')
        t(f'v_pk_add_f32 {vr(ACC+2*q,2)}, {vr(ACC+2*q,2)}, v[132:133]')
    t('s_lshl_b32 s49, s26, 12')
    t('v_mul_u32_u24 v18, 176, v3'); t('v_add_u32 v18, v18, v20'); t('v_add_u32 v18, s49, v18')
    t('s_lshl_b32 s50, s26, 9'); t('s_add_u32 s50, s50, s24'); t('s_mul_i32 s50, s50, 1280'); t('s_add_u32 s50, s50, s45')
    for q in range(3):
        t(f'v_add_u32 v30, {64*q}, v2')
        t('v_mul_u32_u24 v31, 205, v30'); t('v_lshrrev_b32 v31, 11, v31')
        t('v_mul_u32_u24 v19, 10, v31'); t('v_sub_u32 v30, v30, v19'); t('v_lshlrev_b32 v30, 4, v30')
        t(f'v_mul_u32_u24 v{24+q}, 176, v31'); t(f'v_add_u32 v{24+q}, v{24+q}, v30'); t(f'v_add_u32 v{24+q}, s49, v{24+q}')
        t(f'v_mul_u32_u24 v{27+q}, 0xa000, v31'); t(f'v_add_u32 v{27+q}, v{27+q}, v30')
    t('v_cmp_gt_u32 vcc, 32, v2'); t('v_mov_b32 v30, 0x7ff00000'); t('v_cndmask_b32 v29, v30, v29, vcc')
    Sx.need('poll', 1)
    Sx.flush()
    assert not Sx.Q
    Sx.vwait('poll')
    a('s_mov_b32 s44, 0')
    a.label(f'{name}_chk')
    a(f'v_and_b32 v{POLL}, v{POLL}, v{POLL+1}')
    a(f'v_readfirstlane_b32 s47, v{POLL}')
    a('s_cmp_eq_u32 s47, 1')
    a(f's_cbranch_scc1 {name}_go')
    a('s_add_u32 s44, s44, 1')
    a('s_cmp_gt_u32 s44, 0x100000')
    a(f's_cbranch_scc1 {name}_go')
    a(f'buffer_load_dwordx2 {vr(POLL,2)}, v9, s[12:15], s59 offen sc1')
    a('s_waitcnt vmcnt(0)')
    a(f's_branch {name}_chk')
    a.label(f'{name}_go')
    stamp(a, 5, stamps)
    if verbose: print('go', Sx.clock)
    RF = 136; NRF = 30
    uorder = [1, 2, 3, 0]
    for li in range(48):
        u = uorder[li // 12]; ks = li % 12
        L = [f'buffer_load_dwordx4 {vr(RF+(li%NRF)*4,4)}, v{10+u}, s[12:15], s48 offen sc1']
        L.append('s_add_u32 s48, s48, 4096' if ks < 11 else f's_sub_u32 s48, s48, {11*4096}')
        Sx.q(L, ('r', li), gate=None if li < NRF else ('rc', li - NRF))
    for _ in range(4): Sx.pop()
    Sx.vwait('w2')
    side = []
    for li in range(48):
        u = uorder[li // 12]; ks = li % 12
        Sx.vwait(('r', li), 1)
        for i in range(5):
            d = vr(acc(u,i), 4)
            cc = '0' if (ks == 0 and u != 0) else d
            t(f'v_mfma_f32_16x16x32_bf16 {d}, {ar(W2A(ks*5+i),4)}, {vr(RF+(li%NRF)*4,4)}, {cc}')
            for _ in range(2):
                if side:
                    x = side.pop(0)
                    if x.startswith('ds_'): Sx.ds(x, 'red'); break
                    t(x)
        Sx.gate(('rc', li))
        if ks == 1 and li >= 12:
            up = uorder[li // 12 - 1]
            for i in range(5): side.append(f'ds_write_b128 v{14+up}, {vr(acc(up,i),4)} offset:{((up-1)*5+i)*1024}')
        if li == 36 + 4:
            assert not side
            Sx.lwait_all(0)
            a('s_barrier')
            for s_ in range(3):
                for i in range(5): side.append(f'ds_read_b128 {vr(acc(1+s_,i),4)}, v14 offset:{(s_*5+i)*1024}')
        if li == 36 + 8:
            assert not side
            Sx.lwait_all(0)
            for q in range(20): side.append(f'v_add_f32 v{acc(1,0)+q}, v{acc(1,0)+q}, v{acc(2,0)+q}')
            for q in range(10): side.append(f'v_add_f32 v{acc(1,0)+q}, v{acc(1,0)+q}, v{acc(3,0)+q}')
    assert not side
    for q in range(10, 20): t(f'v_add_f32 v{acc(1,0)+q}, v{acc(1,0)+q}, v{acc(3,0)+q}')
    stamp(a, 6, stamps)
    if verbose: print('ffn2 done', Sx.clock)
    for i in range(5):
        for h in range(2):
            t(f'v_pk_add_f32 {vr(acc(0,i)+2*h,2)}, {vr(acc(0,i)+2*h,2)}, {vr(acc(1,i)+2*h,2)}')
        for h in range(2):
            t(f'v_cvt_pk_bf16_f32 v{B2+2*i+h}, v{acc(0,i)+2*h}, v{acc(0,i)+2*h+1}')
        t(f'ds_write_b64 v18, {vr(B2+2*i,2)} offset:{32*i}')
    for q in range(3): t(f'ds_read_b128 {vr(RF+4*q,4)}, v{24+q}')
    for q in range(3):
        a(f's_waitcnt lgkmcnt({2-q})')
        a(f'buffer_store_dwordx4 {vr(RF+4*q,4)}, v{27+q}, s[84:87], s50 offen {oflag}')
    if stamps:
        write_stamps(a, 8, 1, 26)
    a.label(f'{name}_end')
    a('s_endpgm')
    return dict(vgpr=512, sgpr=96, accum=256, lds=LDS_CD, threads=256)
```

```python
from asmlib import *
class Sched:
    def __init__(self, a, R=90, LAT=700, DEPTH=7):
        self.a = a; self.R = R; self.LAT = LAT; self.DEPTH = DEPTH
        self.clock = 0; self.mfree = 0
        self.comp = []
        self.tags = []
        self.Q = []
        self.gates = set()
        self.vm = Cnt(a, 'vmcnt', 63); self.lg = Cnt(a, 'lgkmcnt', 15)
        self.hold = 0
        self.cnt = {}
    def cost(self, text):
        op = text.split()[0]
        if op.startswith('v_mfma'):
            st = max(self.clock, self.mfree); self.mfree = st + 16; self.clock = st + 8; return
        if op.startswith(('v_sin', 'v_cos', 'v_rsq', 'v_rcp', 'v_exp')): self.clock += 8
        elif op.startswith('v_pk_'): self.clock += 8
        elif op.startswith('v_'): self.clock += 5
        elif op.startswith('ds_write_b128'): self.clock += 24
        elif op.startswith('ds_'): self.clock += 8
        elif op.startswith('buffer'): self.clock += 8
        else: self.clock += 4
    def admit_time(self):
        return self.comp[-self.DEPTH] if len(self.comp) >= self.DEPTH else 0
    def raw_issue(self, tag, cost=1.0):
        prev = self.comp[-1] if self.comp else 0
        self.clock = max(self.clock, self.admit_time())
        self.comp.append(max(self.clock + self.LAT, prev + self.R * cost))
        self.tags.append(tag)
        self.vm.issue(tag); self.cnt[tag] = self.cnt.get(tag, 0) + 1
    def can(self):
        return self.Q and (self.Q[0][2] is None or self.Q[0][2] in self.gates)
    def pop(self):
        lines, tag, gate, cost = self.Q.pop(0)
        for l in lines:
            self.a(l); self.cost(l)
            if l.startswith('buffer'): self.raw_issue(tag, cost)
    def q(self, lines, tag, gate=None, cost=1.0):
        self.Q.append((lines if isinstance(lines, list) else [lines], tag, gate, cost))
    def __call__(self, text):
        self.a(text); self.cost(text)
        if not self.hold and self.can() and self.clock >= self.admit_time(): self.pop()
    def mem(self, text, tag, cost=1.0):
        self.a(text); self.cost(text); self.raw_issue(tag, cost)
    def ds(self, text, tag):
        self.lg.issue(tag); self(text)
    def need(self, tag, n):
        while self.cnt.get(tag, 0) < n:
            assert self.can(), ('gated', tag, self.Q[0][1:3] if self.Q else None)
            self.pop()
    def vwait(self, tag, n=None):
        if n: self.need(tag, n)
        idx = max(i for i, t in enumerate(self.tags) if t == tag)
        Tc = self.comp[idx]
        while not self.hold and self.can() and max(self.admit_time(), self.clock) < Tc - 20: self.pop()
        self.vm.wait(tag)
        self.clock = max(self.clock + 4, Tc)
    def lwait(self, tag, lat=0):
        self.lg.wait(tag); self.clock += 4 + lat
    def lwait_all(self, lat=100):
        self.lg.wait_all(); self.clock += lat
    def gate(self, g): self.gates.add(g)
    def flush(self):
        while self.can(): self.pop()
```

```python
from build2 import *
c = dict(R=80, LAT=600, DEPTH=9)
build('v3a.s', ckw=c)
build('v3b.s', ckw=c, akw=dict(stflag='sc1'))
build('v3c.s', ckw=c, akw=dict(stflag='sc1', uflag='sc1'))
build('v3d.s', ckw=dict(oflag='sc1', **c), akw=dict(stflag='sc1'))
build('v3b_st.s', stamps=True, ckw=c, akw=dict(stflag='sc1'))
```

```python
from common import *

XP = 1280
G_OFF = 64 * XP
G_E1 = 4112
T_OFF = 0
TP = 260
LDS_A = G_OFF + 8 * G_E1
NW_A = 16

def gen_kA(a, name, stamps=False, stflag='', uflag='', pack_w2=True, pf=None):
    a.raw(f'.globl {name}\n.p2align 8\n.type {name},@function\n{name}:')
    a.reset_hist()
    a('s_cmp_ge_u32 s2, 256')
    a(f's_cbranch_scc1 {name}_end')
    stamp(a, 0, stamps)
    a('s_load_dwordx2 s[8:9], s[0:1], 0')
    a('s_load_dwordx2 s[12:13], s[0:1], 96')
    a('s_load_dwordx2 s[16:17], s[0:1], 48')
    a('s_load_dwordx2 s[18:19], s[0:1], 64')
    a('v_lshrrev_b32 v1, 6, v0')
    a('v_and_b32 v2, 63, v0')
    a('v_readfirstlane_b32 s22, v1')
    a('v_and_b32 v7, 15, v2')
    a('v_lshrrev_b32 v8, 4, v2')
    a('s_and_b32 s24, s2, 7')
    a('s_lshr_b32 s25, s2, 3')
    a('s_cmp_lt_u32 s25, 20')
    a(f's_cbranch_scc1 {name}_fft_norm')
    a('s_cmp_ge_u32 s25, 25')
    a(f's_cbranch_scc1 {name}_pack_hi')
    a('s_cmp_eq_u32 s24, 0')
    a(f's_cbranch_scc0 {name}_pack_lo')
    a('s_mov_b32 s20, 32')
    a('s_sub_u32 s21, s25, 20')
    a('s_mov_b32 s23, 2')
    a(f's_branch {name}_fft')
    a.label(f'{name}_fft_norm')
    a('s_mul_i32 s26, s25, 52')
    a('s_lshr_b32 s26, s26, 8')
    a('s_mul_i32 s27, s26, 5')
    a('s_sub_u32 s21, s25, s27')
    a('s_lshl_b32 s27, s24, 2')
    a('s_add_u32 s27, s27, s26')
    emit_rho_t1(a, 27, 20, 28)
    a('s_lshl_b32 s23, s26, 2')
    a.label(f'{name}_fft')
    a.reset_hist()
    vm = Cnt(a, 'vmcnt', 63); lg = Cnt(a, 'lgkmcnt', 15)
    a('v_lshl_add_u32 v3, v1, 2, v8')
    a('v_and_b32 v5, 31, v3')
    a('v_lshlrev_b32 v5, 6, v5')
    a('v_add_u32 v5, s20, v5')
    a('v_sub_u32 v6, 0x800, v5')
    a('v_and_b32 v6, 0x7ff, v6')
    a('v_cmp_gt_u32 vcc, 32, v3')
    a('v_lshlrev_b32 v4, 4, v7')
    a('v_cndmask_b32 v5, v6, v5, vcc')
    a('v_mul_u32_u24 v5, 1280, v5')
    a('v_add_u32 v5, v5, v4')
    a(f'v_mul_u32_u24 v6, {XP}, v3')
    a('v_add_u32 v6, v6, v4')
    a('s_waitcnt lgkmcnt(0)')
    srd(a, 8, 8, 9, S*D*2)
    X = 64
    for jj in range(5):
        a(f'buffer_load_dwordx4 {vr(X+4*jj,4)}, v5, s[8:11], 0 offen offset:{256*jj}')
        vm.issue(('x', jj))
    srd(a, 12, 12, 13, ws_size(stamps))
    a('v_lshlrev_b32 v9, 2, v8')
    a('v_cvt_f32_u32 v9, v9')
    BA = 20; BA2 = 24; CSUM = 26; BB = 28; BM = 32; BCc = 36; BCs = 40; T = 44
    a('s_lshl_b32 s26, s21, 3')
    a('s_add_u32 s26, s26, 1')
    a('v_and_b32 v10, 7, v7')
    a('v_add_u32 v10, s26, v10')
    a('v_cvt_f32_u32 v10, v10')
    a(f'v_mul_f32 v10, {fbits(1/40)}, v10')
    a('v_lshrrev_b32 v11, 3, v7')
    a('v_cvt_f32_u32 v11, v11')
    a(f'v_mul_f32 v11, {fbits(0.25)}, v11')
    a('v_fma_f32 v11, v10, v9, v11')
    cj = [0,1,2,3,16,17,18,19,32,33,34,35]
    for j, c in enumerate(cj):
        a(f'v_fmamk_f32 v{T+j}, v10, {fbits(float(c))}, v11')
    for j in range(12):
        a(f'v_cos_f32 v{T+j}, v{T+j}')
    for j in range(6):
        a(f'v_cvt_pk_bf16_f32 v{BA+j}, v{T+2*j}, v{T+2*j+1}')
    a('v_cmp_gt_u32 vcc, 2, v8')
    ONES = 60
    for j in range(4): a(f'v_mov_b32 v{ONES+j}, 0x3f803f80')
    a(f'v_cndmask_b32 v{BA2}, 0, v{BA2}, vcc')
    a(f'v_cndmask_b32 v{BA2+1}, 0, v{BA2+1}, vcc')
    a(f'v_mfma_f32_16x16x32_bf16 v[84:87], {vr(ONES,4)}, {vr(BA,4)}, 0')
    a(f'v_mfma_f32_16x16x16_bf16 v[88:91], {vr(ONES,2)}, {vr(BA2,2)}, 0')
    a('s_and_b32 s27, s22, 7')
    a('s_add_u32 s28, s27, s26')
    a('v_lshrrev_b32 v10, 1, v7')
    a('v_mul_u32_u24 v10, 40, v10')
    a('v_add_u32 v10, s28, v10')
    a('v_and_b32 v11, 1, v7')
    a('v_cvt_f32_u32 v12, v11')
    a(f'v_mul_f32 v12, {fbits(0.25)}, v12')
    a('v_mov_b32 v13, 0x80008000')
    a('v_mul_lo_u32 v13, v13, v11')
    a('v_cvt_f32_u32 v14, v10')
    a(f'v_mul_f32 v14, {fbits(1/640)}, v14')
    a(f'v_fma_f32 v{T}, v14, v9, v12')
    for r in range(1, 4): a(f'v_fmamk_f32 v{T+r}, v14, {fbits(float(r))}, v{T}')
    a(f'v_add_f32 v{CSUM}, v84, v88')
    for r in range(4): a(f'v_sin_f32 v{T+4+r}, v{T+r}')
    for r in range(4): a(f'v_cos_f32 v{T+r}, v{T+r}')
    for j in range(4): a(f'v_cvt_pk_f16_f32 v{BB+j}, v{T+2*j}, v{T+2*j+1}')
    for j in range(4): a(f'v_xor_b32 v{BM+j}, v13, v{BB+j}')
    a('s_lshr_b32 s29, s22, 3')
    a('s_lshl_b32 s30, s29, 4')
    a('v_add_u32 v15, s30, v7')
    a('v_cvt_f32_u32 v10, v15')
    a(f'v_mul_f32 v10, {fbits(1/32)}, v10')
    a('s_cmp_eq_u32 s20, 32')
    a(f's_cselect_b32 s31, {fbits(0.5)}, 0')
    a('v_add_f32 v11, s31, v9')
    a('v_mul_f32 v11, v10, v11')
    for j, c in enumerate(cj[:8]):
        a(f'v_fmamk_f32 v{T+j}, v10, {fbits(float(c))}, v11')
    for j in range(8): a(f'v_sin_f32 v{T+8+j}, v{T+j}')
    for j in range(8): a(f'v_cos_f32 v{T+j}, v{T+j}')
    for j in range(4):
        a(f'v_cvt_pk_f16_f32 v{BCc+j}, v{T+2*j}, v{T+2*j+1}')
        a(f'v_cvt_pk_f16_f32 v{BCs+j}, v{T+8+2*j}, v{T+8+2*j+1}')
    a(f's_mul_i32 s32, s22, {4*XP}')
    a('v_lshlrev_b32 v10, 3, v2')
    a('v_add_u32 v10, s32, v10')
    a('v_and_b32 v11, 31, v2')
    a('v_lshlrev_b32 v11, 3, v11')
    a('v_add_u32 v11, s32, v11')
    a('v_and_b32 v12, 7, v7')
    a(f'v_mul_u32_u24 v12, {G_E1}, v12')
    a('v_lshl_add_u32 v12, v8, 8, v12')
    a('v_lshrrev_b32 v13, 3, v7')
    a('v_lshl_add_u32 v12, v13, 3, v12')
    a('s_lshr_b32 s33, s22, 2'); a('s_lshl_b32 s33, s33, 10'); a('s_and_b32 s34, s22, 3'); a('s_lshl_b32 s34, s34, 6'); a('s_add_u32 s33, s33, s34'); a(f's_add_u32 s33, s33, {G_OFF}')
    a('v_add_u32 v12, s33, v12')
    a(f's_mul_i32 s34, s27, {G_E1}'); a(f's_add_u32 s34, s34, {G_OFF}')
    a('v_lshlrev_b32 v13, 4, v2')
    a('v_add_u32 v13, s34, v13')
    a(f'v_mul_u32_u24 v14, {TP}, v15')
    a('v_lshl_add_u32 v14, v8, 6, v14')
    a('s_lshl_b32 s34, s27, 2')
    a('v_add_u32 v14, s34, v14')
    a(f's_mul_i32 s34, s22, {2*TP}')
    a('v_lshlrev_b32 v15, 2, v2')
    a('v_add_u32 v15, s34, v15')
    a('v_lshrrev_b32 v16, 3, v2')
    a('v_mul_u32_u24 v16, 40, v16')
    a('v_and_b32 v17, 7, v2')
    a('v_add_lshl_u32 v16, v16, v17, 4')
    a(f's_mul_i32 s36, s22, {2*U_T1}')
    a('s_mul_i32 s37, s24, 5120'); a('s_add_u32 s36, s36, s37')
    a('s_lshl_b32 s37, s21, 7'); a('s_add_u32 s36, s36, s37')
    a('s_add_u32 s36, s36, s23'); a(f's_add_u32 s36, s36, {U_OFF}')
    a(f's_add_u32 s37, s36, {U_T1}')
    a('s_and_b32 s35, s20, 31')
    SA = 56
    for j in range(4): a(f'v_mov_b32 v{SA+j}, 0')
    stamp(a, 1, stamps)
    for jj in range(5):
        vm.wait(('x', jj))
        a(f'ds_write_b128 v6, {vr(X+4*jj,4)} offset:{256*jj}')
        lg.issue('xw')
        if jj == 4:
            FR = 96
            for rho in range(4):
                b = FR + rho * 6
                a(f'ds_read_b64_tr_b16 {vr(b,2)}, v10 offset:{rho*XP}')
                a(f'ds_read_b64_tr_b16 {vr(b+2,2)}, v10 offset:{rho*XP+512}')
                a(f'ds_read_b64_tr_b16 {vr(b+4,2)}, v11 offset:{rho*XP+1024}')
                lg.issue(('tr', rho), 3)
        for r in range(4):
            a(f'v_dot2c_f32_bf16 v{SA+(r&1)}, v{X+4*jj+r}, v{ONES}')
            a(f'v_dot2c_f32_bf16 v{SA+2+(r&1)}, v{X+4*jj+r}, v{X+4*jj+r}')
    stamp(a, 2, stamps)
    a(f'v_add_f32 v{SA}, v{SA}, v{SA+1}')
    a(f'v_add_f32 v{SA+2}, v{SA+2}, v{SA+3}')
    D1 = 44
    D1r = [84, 88, 92, 44]
    for rho in range(4):
        lg.wait(('tr', rho))
        a(f'v_mfma_f32_16x16x32_bf16 {vr(D1r[rho],4)}, {vr(FR+rho*6,4)}, {vr(BA,4)}, 0')
        rot = [8, 4, 2, 1][rho]
        a(f'v_add_f32_dpp v{SA}, v{SA}, v{SA} row_ror:{rot} row_mask:0xf bank_mask:0xf')
        a(f'v_add_f32_dpp v{SA+2}, v{SA+2}, v{SA+2} row_ror:{rot} row_mask:0xf bank_mask:0xf')
    sts = [f'v_mul_f32 v{SA}, {fbits(1/640)}, v{SA}',
           f'v_mul_f32 v{SA+2}, {fbits(1/640)}, v{SA+2}',
           f'v_fma_f32 v{SA+2}, -v{SA}, v{SA}, v{SA+2}',
           f'v_max_f32 v{SA+2}, 0, v{SA+2}',
           f'v_add_f32 v{SA+2}, {fbits(1e-5)}, v{SA+2}',
           f'v_rsq_f32 v{SA+2}, v{SA+2}',
           's_nop 0',
           f'v_mul_f32 v{SA}, v{SA}, v{SA+2}']
    for rho in range(4):
        a(f'v_mfma_f32_16x16x16_bf16 {vr(D1r[rho],4)}, {vr(FR+rho*6+4,2)}, {vr(BA2,2)}, {vr(D1r[rho],4)}')
        a(sts[2*rho]); a(sts[2*rho+1])
    for rho in range(4):
        a(f'v_readlane_b32 s{44+2*rho}, v{SA+2}, {16*rho}')
        a(f'v_readlane_b32 s{45+2*rho}, v{SA}, {16*rho}')
    for rho in range(4):
        a(f'v_mul_f32 v{48+2*rho}, s{45+2*rho}, v{CSUM}')
    for rho in range(4):
        d = D1r[rho]; sp = 44 + 2*rho; tb = 48 + 2*rho
        a(f'v_pk_fma_f32 {vr(d,2)}, {vr(d,2)}, {sr(sp,2)}, {vr(tb,2)} op_sel_hi:[1,0,0] neg_lo:[0,0,1] neg_hi:[0,0,1]')
        a(f'v_pk_fma_f32 {vr(d+2,2)}, {vr(d+2,2)}, {sr(sp,2)}, {vr(tb,2)} op_sel_hi:[1,0,0] neg_lo:[0,0,1] neg_hi:[0,0,1]')
    for rho in range(4):
        d = D1r[rho]
        a(f'v_cvt_pk_f16_f32 v{d}, v{d}, v{d+1}')
        a(f'v_cvt_pk_f16_f32 v{d+1}, v{d+2}, v{d+3}')
        a(f'ds_write_b64 v12, {vr(d,2)} offset:{16*rho}')
    lg.wait_all()
    stamp(a, 3, stamps)
    a('s_barrier')
    AF = 64
    for rt in (0, 2, 1, 3):
        a(f'ds_read_b128 {vr(AF+rt*4,4)}, v13 offset:{rt*1024}')
    D2 = 96
    for h in range(2):
        a(f's_waitcnt lgkmcnt({3-2*h})')
        a(f'v_mfma_f32_16x16x32_f16 {vr(D2+h*4,4)}, {vr(AF+h*4,4)}, {vr(BB,4)}, 0')
        a(f's_waitcnt lgkmcnt({2-2*h})')
        a(f'v_mfma_f32_16x16x32_f16 {vr(D2+h*4,4)}, {vr(AF+(2+h)*4,4)}, {vr(BM,4)}, {vr(D2+h*4,4)}')
    ZF = 104
    for j in range(4): a(f'v_cvt_pk_f16_f32 v{ZF+j}, v{D2+2*j}, v{D2+2*j+1}')
    D3 = 108
    a(f'v_mfma_f32_16x16x32_f16 {vr(D3,4)}, {vr(ZF,4)}, {vr(BCc,4)}, 0')
    a(f'v_mfma_f32_16x16x32_f16 {vr(D3+4,4)}, {vr(ZF,4)}, {vr(BCs,4)}, 0')
    c = D3; s_ = D3 + 4
    for e in range(2):
        a(f'v_add_f32 v{c+2*e}, v{c+2*e}, v{s_+2*e+1}')
        a(f'v_sub_f32 v{c+2*e+1}, v{c+2*e+1}, v{s_+2*e}')
    for e in range(2):
        a(f'v_cvt_pk_f16_f32 v{116+e}, v{c+2*e}, v{c+2*e+1}')
    a('ds_write2_b32 v14, v116, v117 offset0:0 offset1:8')
    a('s_waitcnt lgkmcnt(0)')
    a('s_barrier')
    a(f'ds_read_b32 v118, v15')
    a(f'ds_read_b32 v119, v15 offset:{TP}')
    stamp(a, 4, stamps)
    a('s_cmp_eq_u32 s35, 0')
    a(f's_cbranch_scc1 {name}_short')
    a('s_waitcnt lgkmcnt(0)')
    a(f'buffer_store_dword v118, v16, s[12:15], s36 offen {uflag}')
    a(f'buffer_store_dword v119, v16, s[12:15], s37 offen {uflag}')
    a(f's_branch {name}_fin')
    a.label(f'{name}_short')
    a('s_waitcnt lgkmcnt(0)')
    a(f'buffer_store_short v118, v16, s[12:15], s36 offen {uflag}')
    a(f'buffer_store_short v119, v16, s[12:15], s37 offen {uflag}')
    a(f's_branch {name}_fin')

    a.label(f'{name}_pack_lo')
    a.reset_hist()
    a('s_sub_u32 s26, s25, 20'); a('s_mul_i32 s26, s26, 7'); a('s_add_u32 s26, s26, s24'); a('s_sub_u32 s26, s26, 1')
    a(f's_branch {name}_pack')
    a.label(f'{name}_pack_hi')
    a('s_sub_u32 s26, s2, 165')
    a.label(f'{name}_pack')
    a('s_cmp_eq_u32 s26, 80')
    a(f's_cbranch_scc1 {name}_zero')
    if pf:
        a('s_cmp_gt_u32 s26, 80')
        a(f's_cbranch_scc1 {name}_pf')
    a(f's_cmp_ge_u32 s26, {80 if pack_w2 else 48}')
    a(f's_cbranch_scc1 {name}_end')
    a('v_lshrrev_b32 v9, 2, v7')
    a('v_and_b32 v4, 3, v2')
    a('v_lshlrev_b32 v3, 4, v2')
    a('v_lshl_add_u32 v9, v8, 2, v9')
    a('s_waitcnt lgkmcnt(0)')
    srd(a, 12, 12, 13, ws_size(stamps))
    if pack_w2:
        a('s_cmp_ge_u32 s26, 48')
        a(f's_cbranch_scc1 {name}_pack_w2')
    a('s_cmp_ge_u32 s22, 10')
    a(f's_cbranch_scc1 {name}_end')
    srd(a, 8, 16, 17, D*F*2)
    a('v_lshrrev_b32 v5, 3, v2')
    a('v_mul_u32_u24 v5, 3072, v5')
    a('v_and_b32 v6, 7, v2')
    a('v_lshl_add_u32 v5, v6, 4, v5')
    a('s_lshr_b32 s27, s26, 1'); a('s_and_b32 s28, s26, 1')
    a('s_mul_i32 s29, s28, 10'); a('s_add_u32 s29, s29, s22')
    a(f's_mul_i32 s30, s29, {32*3072}'); a('s_lshl_b32 s31, s27, 7'); a('s_add_u32 s30, s30, s31')
    a('s_lshl_b32 s31, s22, 12')
    a('s_mov_b32 m0, s31')
    for i in range(4):
        a('buffer_load_dwordx4 v5, s[8:11], s30 offen lds')
        if i < 3:
            a(f's_add_u32 s30, s30, {8*3072}')
            a('s_add_u32 m0, m0, 1024')
    a('v_lshlrev_b32 v6, 7, v9')
    a('v_lshl_add_u32 v6, v4, 3, v6')
    a('v_add_u32 v6, s31, v6')
    for j in range(4): a(f'v_mov_b32 v{12+j}, 0x3f803f80')
    a('s_mul_i32 s33, s27, 43'); a('s_lshr_b32 s33, s33, 7')
    a('s_mul_i32 s34, s33, 3'); a('s_sub_u32 s34, s27, s34')
    a('s_mul_i32 s33, s33, 240')
    a('s_mul_i32 s35, s34, 120'); a('s_lshl_b32 s37, s29, 1'); a('s_add_u32 s35, s35, s37')
    for tl in range(4):
        a(f's_add_u32 s36, s35, {(tl//2)*60 + tl%2}')
        a(f's_add_u32 s37, s29, {tl*60+40}')
        a('s_cmp_eq_u32 s34, 2')
        a('s_cselect_b32 s36, s37, s36')
        a('s_add_u32 s36, s36, s33'); a('s_lshl_b32 s36, s36, 10'); a(f's_add_u32 s{40+tl}, s36, {W1P_OFF}')
    a('s_waitcnt vmcnt(0)')
    for tl in range(4):
        b = 20 + tl*4
        a(f'ds_read_b64_tr_b16 {vr(b,2)}, v6 offset:{tl*32}')
        a(f'ds_read_b64_tr_b16 {vr(b+2,2)}, v6 offset:{tl*32+2048}')
    for tl in range(4):
        b = 20 + tl*4
        a(f's_waitcnt lgkmcnt({6-2*tl})')
        a(f'buffer_store_dwordx4 {vr(b,4)}, v3, s[12:15], s{40+tl} offen {stflag}')
        a(f'v_mfma_f32_16x16x32_bf16 {vr(40+4*tl,4)}, {vr(b,4)}, v[12:15], 0')
    a('v_lshlrev_b32 v10, 4, v8')
    a('s_lshl_b32 s32, s22, 8'); a('s_add_u32 s32, s32, 40960')
    a('v_add_u32 v10, s32, v10')
    for tl in range(4):
        a(f'ds_write_b128 v10, {vr(40+4*tl,4)} offset:{64*tl}')
    a('s_waitcnt lgkmcnt(0)')
    a('s_barrier')
    a('s_cmp_lg_u32 s22, 0')
    a(f's_cbranch_scc1 {name}_fin')
    a('v_lshlrev_b32 v10, 2, v2')
    for w in range(10): a(f'ds_read_b32 v{20+w}, v10 offset:{40960+256*w}')
    a('s_mul_i32 s32, s28, 6144'); a('s_lshl_b32 s33, s27, 8'); a('s_add_u32 s32, s32, s33'); a(f's_add_u32 s32, s32, {CS_OFF}')
    a('s_waitcnt lgkmcnt(0)')
    for w in range(1, 10): a(f'v_add_f32 v20, v20, v{20+w}')
    a(f'buffer_store_dword v20, v10, s[12:15], s32 offen {stflag}')
    a(f's_branch {name}_fin')
    if pack_w2:
        a.label(f'{name}_pack_w2')
        a.reset_hist()
        a('s_cmp_ge_u32 s22, 12')
        a(f's_cbranch_scc1 {name}_end')
        srd(a, 8, 18, 19, D*F*2)
        a('s_sub_u32 s27, s26, 48'); a('s_mul_i32 s27, s27, 12'); a('s_add_u32 s32, s27, s22')
        a('s_lshr_b32 s33, s32, 3'); a('s_and_b32 s34, s32, 7')
        a(f's_mul_i32 s35, s33, {32*1280}'); a('s_mul_i32 s36, s34, 160'); a('s_add_u32 s35, s35, s36')
        a('s_mul_i32 s36, s34, 48'); a('s_add_u32 s36, s36, s33'); a('s_mul_i32 s36, s36, 5120'); a(f's_add_u32 s40, s36, {W2P_OFF}')
        a('s_mul_i32 s29, s22, 5120')
        a('s_mov_b32 m0, s29')
        for i in range(5):
            a(f'v_add_u32 v10, {64*i}, v2')
            a('v_mul_u32_u24 v11, 205, v10'); a('v_lshrrev_b32 v11, 11, v11')
            a('v_mul_u32_u24 v12, 10, v11'); a('v_sub_u32 v12, v10, v12')
            a('v_mul_u32_u24 v11, 1280, v11')
            a(f'v_lshl_add_u32 v{14+i}, v12, 4, v11')
            a(f'buffer_load_dwordx4 v{14+i}, s[8:11], s35 offen lds')
            if i < 4: a('s_add_u32 m0, m0, 1024')
        a('v_mul_u32_u24 v5, 160, v9')
        a('v_add_u32 v5, s29, v5')
        a('v_lshl_add_u32 v5, v4, 3, v5')
        a('v_add_u32 v13, 0x1000, v3')
        a('s_waitcnt vmcnt(0)')
        for i in range(5):
            b = 20 + i*4
            a(f'ds_read_b64_tr_b16 {vr(b,2)}, v5 offset:{32*i}')
            a(f'ds_read_b64_tr_b16 {vr(b+2,2)}, v5 offset:{32*i+16*160}')
        for i in range(5):
            b = 20 + i*4
            a(f's_waitcnt lgkmcnt({8-2*i})')
            if i < 4: a(f'buffer_store_dwordx4 {vr(b,4)}, v3, s[12:15], s40 offen offset:{1024*i} {stflag}')
            else: a(f'buffer_store_dwordx4 {vr(b,4)}, v13, s[12:15], s40 offen {stflag}')
    a(f's_branch {name}_fin')
    a.label(f'{name}_zero')
    a.reset_hist()
    a('s_cmp_ge_u32 s22, 8')
    a(f's_cbranch_scc1 {name}_end')
    a('s_waitcnt lgkmcnt(0)')
    srd(a, 12, 12, 13, ws_size(stamps))
    a('v_lshlrev_b32 v3, 4, v0')
    for j in range(4): a(f'v_mov_b32 v{4+j}, 0')
    a(f's_mov_b32 s30, {FLAG_OFF}')
    a('buffer_store_dwordx4 v[4:7], v3, s[12:15], s30 offen')
    if pf:
        a(f's_branch {name}_fin')
        a.label(f'{name}_pf')
        a.reset_hist()
        a('s_getpc_b64 s[30:31]')
        a.label(f'{name}_pfl')
        a(f's_add_u32 s30, s30, {pf}-{name}_pfl')
        a('s_addc_u32 s31, s31, 0')
        a('v_lshlrev_b32 v3, 4, v0')
        a(f'v_min_u32 v3, {pf}_end-{pf}-16, v3')
        a('v_mov_b32 v5, s31')
        a('v_add_co_u32 v4, vcc, s30, v3')
        a('v_addc_co_u32 v5, vcc, 0, v5, vcc')
        a('global_load_dwordx4 v[8:11], v[4:5], off')
        a('s_waitcnt vmcnt(0)')
        a(f's_branch {name}_end')
    a.label(f'{name}_fin')
    if stamps:
        a.reset_hist()
        a('s_nop 7')
        write_stamps(a, 6, 0, 22)
    a.label(f'{name}_end')
    a('s_endpgm')
    return dict(vgpr=120, sgpr=80, accum=120, lds=LDS_A, threads=1024)

if __name__ == '__main__':
    a = Asm()
    a.raw(f'; @launch kernel=ka_kernel grid=(256,1,1) block=(1024,1,1) lds={LDS_A}')
    a.raw('.amdgcn_target "amdgcn-amd-amdhsa--gfx950"\n.text')
    info = gen_kA(a, 'ka_kernel', stamps=True)
    a.raw('.section .rodata,"a"\n.p2align 6')
    a.raw(kernel_desc('ka_kernel', info['vgpr'], info['sgpr'], info['accum']))
    open('ka.s', 'w').write(a.text())
    print('instrs', a.count, 'nops', a.nops)
```

```python
from common import *
from sched import Sched

ST_OFF = 81920
RED_OFF = ST_OFF + 4096
LDS_CD = RED_OFF + 61440

def gen_kCD(a, name, mapping='B', stamps=False, R=80, LAT=600, DEPTH=9, oflag='', pollpos=52, u0early=4, verbose=False):
    a.raw(f'.globl {name}\n.p2align 8\n.type {name},@function\n{name}:')
    a.reset_hist()
    a('s_cmp_ge_u32 s2, 256')
    a(f's_cbranch_scc1 {name}_end')
    stamp(a, 0, stamps)
    a('s_load_dwordx2 s[8:9], s[0:1], 0')
    a('s_load_dwordx2 s[12:13], s[0:1], 96')
    a('s_load_dwordx2 s[16:17], s[0:1], 56')
    a('s_load_dwordx4 s[4:7], s[0:1], 72')
    a('v_lshrrev_b32 v1, 6, v0')
    a('v_and_b32 v2, 63, v0')
    a('v_readfirstlane_b32 s26, v1')
    emit_map(a, mapping, 22, 23)
    emit_rho_t1(a, 22, 24, 25)
    a('v_lshrrev_b32 v6, 3, v2')
    a('v_xor_b32 v7, v6, v2')
    a('v_and_b32 v7, 7, v7')
    a('v_mul_u32_u24 v6, 0xa000, v6')
    a('v_lshl_add_u32 v6, v7, 4, v6')
    a('s_lshl_b32 s32, s26, 9'); a('s_add_u32 s32, s32, s24'); a('s_mul_i32 s32, s32, 1280')
    a(f's_add_u32 s33, s32, {256*1280}')
    a('s_lshl_b32 s27, s26, 11')
    a('s_sub_u32 s25, 32, s24'); a('s_and_b32 s25, s25, 31')
    a('s_mul_i32 s34, s26, 2560')
    a(f's_add_u32 s35, s34, {U_OFF - 16}')
    a(f's_sub_u32 s34, {U_OFF + (639-15)*16}, s34')
    a('s_cmp_lt_u32 s26, 2')
    a('s_cselect_b64 vcc, -1, 0')
    a('s_cselect_b32 s28, 1, -1')
    a('s_cselect_b32 s30, s24, s25')
    a('s_cselect_b32 s38, 0, 0x80000000')
    a('s_cselect_b32 s39, 0, 1')
    a('s_cselect_b32 s35, s35, s34')
    a('s_lshl_b32 s28, s28, 8')
    a(f's_or_b32 s38, s38, {fbits(1/2048)}')
    a('s_cmp_eq_u32 s24, 0'); a('s_cselect_b32 s39, 0, s39')
    a(f's_mul_i32 s31, s30, {U_T1}'); a('s_add_u32 s31, s31, s35')
    a('s_lshl_b32 s36, s23, 2'); a('s_add_u32 s36, s36, s26')
    a(f's_mul_i32 s37, s36, {60*1024}'); a(f's_add_u32 s58, s37, {W2P_OFF}'); a(f's_add_u32 s37, s37, {W1P_OFF}')
    a('s_waitcnt lgkmcnt(0)')
    srd(a, 8, 8, 9, S*D*2)
    Sx = Sched(a, R=R, LAT=LAT, DEPTH=DEPTH)
    t = Sx
    for ap in range(10):
        for o in range(2):
            Sx.q([f's_add_u32 m0, s27, {ap*8192 + o*1024 - 128*ap}', f'buffer_load_dwordx4 v6, s[8:11], s{32+o} offen offset:{128*ap} lds'], 'x')
    def UA(tl, ks2): return (tl*2+ks2)*4
    for tl in range(10):
        for ks2 in range(2):
            vo = (12 if tl == 0 else 10) + ks2
            L = [f'buffer_load_dwordx4 {ar(UA(tl,ks2),4)}, v{vo}, s[12:15], s31 offen']
            if ks2 == 1 and tl < 9: L.append('s_add_u32 s31, s31, s28')
            Sx.q(L, ('u', tl//2), gate='addr')
    def WA(fr): return 80 + fr*4 if fr < 44 else (fr-44)*4
    for fr in range(60):
        L = [f'buffer_load_dwordx4 {ar(WA(fr),4)}, v5, s[12:15], s37 offen offset:{1024*(fr%4)}']
        if fr % 4 == 3: L.append('s_add_u32 s37, s37, 4096')
        Sx.q(L, ('w', fr//2 if fr < 40 else fr - 20), gate='s2done' if fr >= 44 else None)
    for _ in range(4): Sx.pop()
    for l in (f's_mov_b32 s14, {ws_size(stamps)}', 's_mov_b32 s15, 0x20000', f's_mov_b32 s18, {F*2}', 's_mov_b32 s19, 0x20000',
              's_mov_b32 s80, s4', 's_mov_b32 s81, s5', f's_mov_b32 s82, {D*2}', 's_mov_b32 s83, 0x20000',
              's_mov_b32 s84, s6', 's_mov_b32 s85, s7', f's_mov_b32 s86, {S*D*2}', 's_mov_b32 s87, 0x20000'): t(l)
    t('v_and_b32 v3, 15, v2')
    t('v_lshrrev_b32 v4, 4, v2')
    t('v_lshlrev_b32 v5, 4, v2')
    t('v_sub_u32 v11, 15, v3')
    t('v_cndmask_b32 v10, v11, v3, vcc')
    t('v_mul_u32_u24 v11, 5120, v4')
    t('v_lshl_add_u32 v10, v10, 4, v11')
    t('v_add_u32 v11, 0x5000, v10')
    t('v_and_b32 v12, 0xcf, v0')
    t('v_cmp_eq_u32 vcc, 0, v12')
    t('v_mov_b32 v14, 0x7ff00000')
    t('v_cndmask_b32 v12, v10, v14, vcc')
    t('v_cndmask_b32 v13, v11, v14, vcc')
    Sx.gate('addr')
    t('v_xor_b32 v7, v4, v3'); t('v_and_b32 v7, 7, v7'); t('v_lshlrev_b32 v7, 4, v7'); t('v_lshl_add_u32 v7, v3, 7, v7')
    t('v_xor_b32 v8, 64, v7')
    t('v_add_u32 v24, 0xa000, v7'); t('v_add_u32 v25, 0xa000, v8')
    t('s_mul_i32 s40, s26, 5'); t('s_lshr_b32 s41, s40, 1'); t('s_lshl_b32 s41, s41, 13')
    t('s_and_b32 s42, s26, 1'); t('s_lshl_b32 s43, s42, 6'); t('s_lshl_b32 s42, s42, 13'); t('s_add_u32 s42, s42, s41')
    t('v_xor_b32 v26, s43, v7'); t('v_add_u32 v26, s41, v26')
    t('v_xor_b32 v27, s43, v8'); t('v_add_u32 v27, s42, v27')
    def own(kk, tt): return (26 + (kk & 1), (kk//2)*8192 + tt*2048)
    t('v_and_b32 v28, 1, v3'); t('v_lshlrev_b32 v28, 4, v28'); t('v_mov_b32 v29, 0x3f80'); t('v_lshlrev_b32 v28, v28, v29')
    t('v_lshrrev_b32 v29, 1, v3')
    t('v_lshlrev_b32 v30, 2, v4'); t('v_sub_u32 v29, v29, v30')
    for q in range(4):
        t(f'v_cmp_eq_u32 vcc, {q}, v29'); t(f'v_cmp_eq_u32 s[44:45], {q-8}, v29')
        t(f'v_cndmask_b32 v{16+q}, 0, v28, vcc'); t(f'v_cndmask_b32 v{20+q}, 0, v28, s[44:45]')
    M = 32; T = 64
    t('v_lshlrev_b32 v14, 5, v3'); t('v_add_u32 v14, s24, v14')
    t('v_lshlrev_b32 v15, 1, v4'); t('v_cvt_f32_u32 v15, v15')
    t('v_xor_b32 v28, s39, v3'); t('v_lshlrev_b32 v28, 31, v28'); t('v_or_b32 v28, 0x38003800, v28')
    t('v_cmp_eq_u32 vcc, 0, v4')
    for tt in range(4):
        t(f'v_add_u32 v29, {512*tt}, v14')
        t('v_cvt_f32_u32 v29, v29')
        t('v_mul_f32 v29, s38, v29')
        t(f'v_mul_f32 v{T}, v29, v15')
        t(f'v_sub_f32 v30, 0, v{T}')
        for ks2 in range(2):
            for j in range(4):
                if ks2 == 0 and j == 0: continue
                c = [8*ks2, 32-8*ks2, 8*ks2+1, 31-8*ks2][j]
                t(f'v_fmamk_f32 v{T+ks2*4+j}, v29, {fbits(float(c))}, v{T if j%2==0 else 30}')
        t(f'v_mul_f32 v31, {fbits(16.0)}, v29')
        t(f'v_cndmask_b32 v{T+1}, v{T+1}, v31, vcc')
        for j in range(8): t(f'v_sin_f32 v{T+8+j}, v{T+j}')
        for j in range(8): t(f'v_cos_f32 v{T+j}, v{T+j}')
        for j in range(8): t(f'v_cvt_pk_f16_f32 v{M+tt*8+j}, v{T+j}, v{T+8+j}')
        t(f'v_cndmask_b32 v{M+tt*8}, v{M+tt*8}, v28, vcc')
    if verbose: print('Mgen done', Sx.clock)
    Sx.vwait('x', 20)
    a('s_barrier')
    stamp(a, 1, stamps)
    if verbose: print('x barrier', Sx.clock)
    Y = 64; XF = 224
    def YG(kk, tt): return Y + (kk*4+tt)*8
    def xread(kk):
        for tt in range(4):
            va, off = own(kk, tt)
            Sx.ds(f'ds_read_b128 {vr(XF+(kk&1)*16+tt*4,4)}, v{va} offset:{off}', ('xr', kk))
    xread(0)
    for kk in range(5):
        if kk + 1 < 5: xread(kk+1)
        Sx.lwait(('xr', kk), 100 if kk == 0 else 0)
        for tt in range(4):
            for i in range(2):
                t(f'v_mfma_f32_16x16x32_bf16 {vr(YG(kk,tt)+4*i,4)}, {vr(16+4*i,4)}, {vr(XF+(kk&1)*16+tt*4,4)}, 0')
    def packlist(kk):
        L = []
        for tt in range(4):
            b = YG(kk, tt)
            for j in range(4): L.append(f'v_cvt_pk_bf16_f32 v{b+j}, v{b+2*j}, v{b+2*j+1}')
            va, off = own(kk, tt)
            L.append(f'ds_write_b128 v{va}, {vr(b,4)} offset:{off}')
        return L
    pend = []
    for kk in range(5):
        Sx.vwait(('u', kk), 4)
        c = 0
        order = [(ks2, tt, i) for ks2 in range(2) for tt in range(4) for i in range(2)]
        if kk == 4: order = [(ks2, tt, i) for tt in range(4) for ks2 in range(2) for i in range(2)]
        for ks2, tt, i in order:
            d = vr(YG(kk,tt)+4*i, 4)
            t(f'v_mfma_f32_16x16x32_f16 {d}, {ar(UA(2*kk+i,ks2),4)}, {vr(M+tt*8+ks2*4,4)}, {d}')
            c += 1
            if c >= 3:
                for _ in range(2):
                    if pend: t(pend.pop(0))
        while pend: t(pend.pop(0))
        pend = packlist(kk)
    Sx.gate('s2done')
    while pend: t(pend.pop(0))
    Sx.lwait_all()
    a('s_barrier')
    stamp(a, 2, stamps)
    if verbose: print('h barrier', Sx.clock)
    BF = 32
    def bread(st, tts=range(4)):
        ks = st % 20
        for tt in tts:
            off = (ks//2)*8192 + tt*2048
            va = 7 + (ks & 1)
            if off >= 40960: va = 24 + (ks & 1); off -= 40960
            Sx.ds(f'ds_read_b128 {vr(BF+(st&1)*16+tt*4,4)}, v{va} offset:{off}', ('b', st, tt))
    def UP(gi): return YG(gi//4, gi%4) + 4
    def AC(i, tt): return UP(i*4+tt)
    bread(0)
    for j in range(4): t(f'v_mov_b32 v{16+j}, 0x3f803f80')
    SS = 224; SG = 240
    stat = []
    for kk in range(5):
        for tt in range(4):
            h = vr(YG(kk,tt), 4)
            stat.append(f'v_mfma_f32_16x16x32_bf16 {vr(SS+4*tt,4)}, v[16:19], {h}, {"0" if kk == 0 else vr(SS+4*tt,4)}')
            stat.append(f'v_mfma_f32_16x16x32_bf16 {vr(SG+4*tt,4)}, {h}, {h}, {"0" if kk == 0 else vr(SG+4*tt,4)}')
    def CSR(p, i): return UP(12 + p*3 + i)
    def B1R(i): return UP(18) + 2*i if i < 2 else UP(19)
    t('s_mul_i32 s42, s23, 12'); t('s_lshl_b32 s43, s26, 1'); t('s_add_u32 s43, s43, s42')
    t('s_add_u32 s44, s42, 8'); t('s_add_u32 s44, s44, s26')
    t('s_lshl_b32 s45, s43, 5'); t('s_lshl_b32 s46, s44, 5')
    t('s_lshl_b32 s47, s43, 6'); t(f's_add_u32 s47, s47, {CS_OFF}')
    t('s_lshl_b32 s48, s44, 6'); t(f's_add_u32 s48, s48, {CS_OFF}')
    t('s_add_u32 s49, s47, 6144'); t('s_add_u32 s50, s48, 6144')
    t('v_lshlrev_b32 v20, 3, v4')
    t('v_lshlrev_b32 v21, 4, v4')
    for _ in range(8): t(stat.pop(0))
    extra = []
    for i in range(3):
        so, off = (45, 32*i) if i < 2 else (46, 0)
        extra.append(([f'buffer_load_dwordx2 {vr(B1R(i),2)}, v20, s[16:19], s{so} offen offset:{off}'], 'bc', None, 0.3))
    for p in range(2):
        for i in range(3):
            so, off = (47+2*p, 64*i) if i < 2 else (48+2*p, 0)
            extra.append(([f'buffer_load_dwordx4 {vr(CSR(p,i),4)}, v21, s[12:15], s{so} offen offset:{off}'], 'bc', None, 0.3))
    pos = max(0, len(Sx.Q) - 26)
    Sx.Q[pos:pos] = extra
    def W2A(q): return 64 + 4*q if q < 4 else WA(q-4)
    POLL = 22
    for q in range(60):
        if q == pollpos:
            Sx.q([f'buffer_load_dwordx2 {vr(POLL,2)}, v9, s[12:15], s59 offen sc1'], 'poll0', gate='sig0', cost=0.3)
        L = [f'buffer_load_dwordx4 {ar(W2A(q),4)}, v5, s[12:15], s58 offen offset:{1024*(q%4)}']
        if q % 4 == 3: L.append('s_add_u32 s58, s58, 4096')
        fr = q - 4
        Sx.q(L, 'w2', gate=None if q < 4 else ('st', fr//2 if fr < 40 else fr - 20))
    SA = 224; ST = SA + 8
    side = []
    def do_side(n):
        for _ in range(n):
            if not side: return
            x = side.pop(0)
            if callable(x): x()
            elif x.startswith('ds_'): Sx.ds(x, 'red'); return
            else: t(x)
    def tmp_list(i, tt): return [f'v_fma_f32 v{AC(i,tt)-4+r}, -v{ST+2*tt}, v{CSR(0,i)+r}, v{CSR(1,i)+r}' for r in range(4)]
    def epi(i, tt, plain):
        L = []
        ac = AC(i, tt); tm = ac - 4
        if plain:
            for r in range(4): L.append(f'v_fma_f32 v{ac+r}, v{ac+r}, v{ST+2*tt+1}, v{tm+r}')
            for r in range(4): L.append(f'v_max_f32 v{ac+r}, 0, v{ac+r}')
            for r in range(4): L.append(f'v_mul_f32 v{ac+r}, v{ac+r}, v{ac+r}')
        else:
            for h in range(2): L.append(f'v_pk_fma_f32 {vr(ac+2*h,2)}, {vr(ac+2*h,2)}, {vr(ST+2*tt,2)}, {vr(tm+2*h,2)} op_sel:[0,1,0] op_sel_hi:[1,1,1]')
            for r in range(4): L.append(f'v_max_f32 v{ac+r}, 0, v{ac+r}')
            for h in range(2): L.append(f'v_pk_mul_f32 {vr(ac+2*h,2)}, {vr(ac+2*h,2)}, {vr(ac+2*h,2)}')
        dst = YG(3, tt) + 2*i if i < 2 else YG(4, tt)
        for h in range(2): L.append(f'v_cvt_pk_bf16_f32 v{dst+h}, v{ac+2*h}, v{ac+2*h+1}')
        return L
    def stA(tt): return lambda: Sx.mem(f'buffer_store_dwordx4 {vr(YG(3,tt),4)}, v5, s[12:15], s42 offen offset:{1024*tt} sc1', ('rst', 0))
    def stB(tt): return lambda: Sx.mem(f'buffer_store_dwordx2 {vr(YG(4,tt),2)}, v5, s[12:15], s43 offen offset:{1024*tt} sc1', ('rst', 1))
    def signal(half):
        Sx.vwait(('rst', half))
        a('s_barrier')
        Sx.hold += 1
        t('s_cmp_lg_u32 s26, 0')
        t(f's_cbranch_scc1 {name}_nosig{half}')
        t('s_mov_b64 exec, 1')
        t(f'buffer_store_dword v28, v9, s[12:15], s46 offen offset:{8*half} sc1')
        t('s_mov_b64 exec, -1')
        a.label(f'{name}_nosig{half}')
        Sx.hold -= 1
        Sx.gate(f'sig{half}')
    for st in range(40):
        ps, ks = divmod(st, 20)
        Sx.vwait(('w', st), 2 if ps == 0 else 1)
        c = 0
        for i in ((0, 1) if ps == 0 else (2,)):
            for tt in range(4):
                if c < 4: Sx.lwait(('b', st, tt))
                d = vr(AC(i,tt), 4)
                fr = ks*2+i if ps == 0 else 40 + ks
                t(f'v_mfma_f32_16x16x32_bf16 {d}, {ar(WA(fr),4)}, {vr(BF+(st&1)*16+tt*4,4)}, {"0" if ks == 0 else d}')
                c += 1
                if c <= 4 and st + 1 < 40: bread(st + 1, [c-1])
                if c in (3, 5, 6, 8) and stat: t(stat.pop(0))
                do_side(2)
        Sx.gate(('st', st))
        if st == 8:
            assert not stat
            side += ['v_and_b32 v22, 3, v3', 'v_cmp_eq_u32 s[52:53], 1, v22', 'v_cmp_eq_u32 s[54:55], 2, v22', 'v_cmp_eq_u32 s[56:57], 3, v22',
                     'v_lshlrev_b32 v30, 3, v3', 's_lshl_b32 s40, s26, 9', f's_add_u32 s40, s40, {ST_OFF}', 'v_add_u32 v30, s40, v30']
            for tt in range(4):
                g = SG + 4*tt
                side += [f'v_cndmask_b32 v{SS+4*tt+1}, v{g}, v{g+1}, s[52:53]',
                         f'v_cndmask_b32 v{SS+4*tt+1}, v{SS+4*tt+1}, v{g+2}, s[54:55]',
                         f'v_cndmask_b32 v{SS+4*tt+1}, v{SS+4*tt+1}, v{g+3}, s[56:57]']
            side += ['v_lshlrev_b32 v29, 3, v2', f'v_add_u32 v29, {ST_OFF}, v29']
        if st == 10:
            assert not side
            Sx.hold += 1
            t('s_mov_b32 exec_lo, 0x00f0000f'); t('s_mov_b32 exec_hi, 0xf0000f00')
            for tt in range(4): Sx.ds(f'ds_write_b64 v30, {vr(SS+4*tt,2)} offset:{128*tt}', 'stw')
            t('s_mov_b64 exec, -1')
            Sx.hold -= 1
        if st == 11:
            Sx.lwait('stw')
            a('s_barrier')
            for w in range(4): Sx.ds(f'ds_read_b64 {vr(SA+2*w,2)}, v29 offset:{512*w}', 'str')
        if st == 12:
            Sx.lwait('str')
            side += [f'v_add_f32 v{SA}, v{SA}, v{SA+2}', f'v_add_f32 v{SA+1}, v{SA+1}, v{SA+3}',
                     f'v_add_f32 v{SA+4}, v{SA+4}, v{SA+6}', f'v_add_f32 v{SA+5}, v{SA+5}, v{SA+7}',
                     f'v_add_f32 v{SA}, v{SA}, v{SA+4}', f'v_add_f32 v{SA+1}, v{SA+1}, v{SA+5}',
                     f'v_mul_f32 v{SA}, {fbits(1/640)}, v{SA}', f'v_mul_f32 v{SA+1}, {fbits(1/640)}, v{SA+1}',
                     f'v_fma_f32 v{SA+1}, -v{SA}, v{SA}, v{SA+1}', f'v_max_f32 v{SA+1}, 0, v{SA+1}',
                     f'v_add_f32 v{SA+1}, {fbits(1e-5)}, v{SA+1}', f'v_rsq_f32 v{SA+1}, v{SA+1}',
                     'v_lshlrev_b32 v31, 3, v2', 'v_add_u32 v31, s40, v31',
                     f'v_mul_f32 v{SA}, v{SA}, v{SA+1}']
        if st == 13:
            assert not side
            Sx.ds(f'ds_write_b64 v31, {vr(SA,2)} offset:2048', 'stw2')
            for tt in range(4): Sx.ds(f'ds_read_b64 {vr(ST+2*tt,2)}, v30 offset:{2048+tt*128}', 'str2')
            Sx.vwait('bc', 9)
            for i in range(3):
                for r in range(4): side.append(f'v_add_f32 v{CSR(0,i)+r}, v{CSR(0,i)+r}, v{CSR(1,i)+r}')
            for i in range(3):
                for h in range(2):
                    side.append(f'v_lshlrev_b32 v{CSR(1,i)+2*h}, 16, v{B1R(i)+h}')
                    side.append(f'v_and_b32 v{CSR(1,i)+2*h+1}, 0xffff0000, v{B1R(i)+h}')
            side.append(lambda: Sx.lwait('str2'))
            for i in range(3):
                for tt in range(4): side += tmp_list(i, tt)
            side += ['s_mul_i32 s41, s22, 48', 's_mul_i32 s42, s23, 6', 's_add_u32 s51, s41, s42',
                     's_add_u32 s42, s51, s26', 's_lshl_b32 s42, s42, 12', f's_add_u32 s42, s42, {R_OFF}',
                     's_lshr_b32 s43, s26, 1', 's_add_u32 s43, s43, s51', 's_add_u32 s43, s43, 4', 's_lshl_b32 s43, s43, 12',
                     's_and_b32 s44, s26, 1', 's_lshl_b32 s44, s44, 3', 's_add_u32 s43, s43, s44', f's_add_u32 s43, s43, {R_OFF}']
        if st == 19:
            assert not side
            stamp(a, 3, stamps)
            if verbose: print('passA done', Sx.clock)
            side += ['s_lshl_b32 s46, s22, 8', f's_add_u32 s46, s46, {FLAG_OFF}', 's_lshl_b32 s59, s26, 6', 's_add_u32 s59, s59, s46',
                     's_lshr_b32 s47, s23, 1', 's_lshl_b32 s47, s47, 6', 's_add_u32 s46, s46, s47',
                     's_and_b32 s47, s23, 1', 's_lshl_b32 s47, s47, 2', 's_add_u32 s46, s46, s47']
            for tt in range(4): side += epi(0, tt, True) + epi(1, tt, True) + [stA(tt)]
            side += ['v_mov_b32 v9, 0', 'v_mov_b32 v28, 1', 's_mul_i32 s45, s23, 160']
            for u in range(4):
                side += [f'v_add_u32 v{10+u}, {u}, v1', f'v_and_b32 v{10+u}, 3, v{10+u}', f'v_mul_u32_u24 v{14+u}, 15360, v{10+u}',
                         f'v_lshl_add_u32 v{10+u}, v{10+u}, 10, v5', f'v_add_u32 v{14+u}, v{14+u}, v5', f'v_add_u32 v{14+u}, {RED_OFF}, v{14+u}']
            if verbose: print('side items passB', len(side))
    do_side(1000)
    if verbose: print('ffn1 done', Sx.clock)
    stamp(a, 4, stamps)
    for tt in range(4): side += epi(2, tt, False) + [stB(tt)]
    do_side(1000)
    ACC = 32
    def acc(u, i): return ACC + (u*5+i)*4
    B2 = 112
    for i in range(5):
        Sx.mem(f'buffer_load_dwordx2 {vr(B2+2*i,2)}, v20, s[80:83], s45 offen offset:{32*i}', 'b2', 0.3)
    signal(0)
    if verbose: print('sig0', Sx.clock)
    t('s_mul_i32 s47, s23, 5')
    for i in range(5):
        t(f's_add_u32 s48, s47, {i}')
        t('s_lshr_b32 s49, s48, 2'); t('s_lshl_b32 s49, s49, 13'); t('s_add_u32 s49, s49, s27')
        t('s_and_b32 s50, s48, 1'); t('s_lshl_b32 s50, s50, 3'); t('s_add_u32 s49, s49, s50')
        t('s_and_b32 s50, s48, 2'); t('s_lshl_b32 s50, s50, 5')
        t('v_xor_b32 v29, s50, v7'); t('v_add_u32 v29, s49, v29')
        Sx.ds(f'ds_read_b64 {vr(B2+10+2*i,2)}, v29', 'hres')
    t('s_mul_i32 s48, s26, 12'); t('s_add_u32 s48, s48, s41'); t('s_lshl_b32 s48, s48, 12'); t(f's_add_u32 s48, s48, {R_OFF}')
    signal(1)
    if verbose: print('sig1', Sx.clock)
    stamp(a, 5, stamps)
    Sx.lwait('hres'); Sx.vwait('b2')
    for q in range(10):
        t(f'v_lshlrev_b32 v{ACC+2*q}, 16, v{B2+q}'); t(f'v_and_b32 v{ACC+2*q+1}, 0xffff0000, v{B2+q}')
        t(f'v_lshlrev_b32 v132, 16, v{B2+10+q}'); t(f'v_and_b32 v133, 0xffff0000, v{B2+10+q}')
        t(f'v_pk_add_f32 {vr(ACC+2*q,2)}, {vr(ACC+2*q,2)}, v[132:133]')
    t('s_lshl_b32 s49, s26, 12')
    t('v_mul_u32_u24 v18, 176, v3'); t('v_add_u32 v18, v18, v20'); t('v_add_u32 v18, s49, v18')
    t('s_lshl_b32 s50, s26, 9'); t('s_add_u32 s50, s50, s24'); t('s_mul_i32 s50, s50, 1280'); t('s_add_u32 s50, s50, s45')
    for q in range(3):
        t(f'v_add_u32 v30, {64*q}, v2')
        t('v_mul_u32_u24 v31, 205, v30'); t('v_lshrrev_b32 v31, 11, v31')
        t('v_mul_u32_u24 v19, 10, v31'); t('v_sub_u32 v30, v30, v19'); t('v_lshlrev_b32 v30, 4, v30')
        t(f'v_mul_u32_u24 v{24+q}, 176, v31'); t(f'v_add_u32 v{24+q}, v{24+q}, v30'); t(f'v_add_u32 v{24+q}, s49, v{24+q}')
        t(f'v_mul_u32_u24 v{27+q}, 0xa000, v31'); t(f'v_add_u32 v{27+q}, v{27+q}, v30')
    t('v_cmp_gt_u32 vcc, 32, v2'); t('v_mov_b32 v30, 0x7ff00000'); t('v_cndmask_b32 v29, v30, v29, vcc')
    def poll(half):
        Sx.vwait(f'poll{half}')
        a('s_mov_b32 s44, 0')
        a.label(f'{name}_chk{half}')
        a(f'v_and_b32 v{POLL}, v{POLL}, v{POLL+1}')
        a(f'v_readfirstlane_b32 s47, v{POLL}')
        a('s_cmp_eq_u32 s47, 1')
        a(f's_cbranch_scc1 {name}_go{half}')
        a('s_add_u32 s44, s44, 1')
        a('s_cmp_gt_u32 s44, 0x100000')
        a(f's_cbranch_scc1 {name}_go{half}')
        a(f'buffer_load_dwordx2 {vr(POLL,2)}, v9, s[12:15], s59 offen offset:{8*half} sc1')
        a('s_waitcnt vmcnt(0)')
        a(f's_branch {name}_chk{half}')
        a.label(f'{name}_go{half}')
    Sx.need('poll0', 1)
    Sx.flush(); assert not Sx.Q
    poll(0)
    stamp(a, 6, stamps)
    if verbose: print('go0', Sx.clock)
    RF = 136; NRF = 30
    kA_ = [0,1,2,3,6,7,8,9]; kB_ = [4,5,10,11]
    seq = []
    for n_, ks in enumerate(kA_):
        seq += [(ks, u) for u in (1, 2, 3)]
        if n_ < u0early: seq.append((ks, 0))
    nA = len(seq)
    for u in (1, 2, 3): seq += [(ks, u) for ks in kB_]
    seq += [(ks, 0) for ks in kA_[u0early:] + kB_]
    assert len(seq) == 48
    cur = [0]
    def q_r(li):
        ks, u = seq[li]
        L = []
        if ks != cur[0]:
            dlt = (ks - cur[0]) * 4096
            L.append(f's_add_u32 s48, s48, {dlt}' if dlt > 0 else f's_sub_u32 s48, s48, {-dlt}')
            cur[0] = ks
        L.append(f'buffer_load_dwordx4 {vr(RF+(li%NRF)*4,4)}, v{10+u}, s[12:15], s48 offen sc1')
        Sx.q(L, ('r', li), gate=None if li < NRF else ('rc', li - NRF))
    pp1 = nA - 8
    for li in range(nA):
        if li == pp1: Sx.q([f'buffer_load_dwordx2 {vr(POLL,2)}, v9, s[12:15], s59 offen offset:8 sc1'], 'poll1', cost=0.3)
        q_r(li)
    for _ in range(4): Sx.pop()
    Sx.vwait('w2')
    seen = set()
    lastB = {u: nA + 4*(u-1) + 3 for u in (1, 2, 3)}
    for li in range(48):
        ks, u = seq[li]
        if li == pp1:
            Sx.need('poll1', 1)
            Sx.hold += 1
            poll(1)
            Sx.hold -= 1
            if verbose: print('go1', Sx.clock)
            for l2 in range(nA, 48): q_r(l2)
        Sx.vwait(('r', li), 1)
        for i in range(5):
            d = vr(acc(u,i), 4)
            cc = '0' if (u not in seen and u != 0) else d
            t(f'v_mfma_f32_16x16x32_bf16 {d}, {ar(W2A(ks*5+i),4)}, {vr(RF+(li%NRF)*4,4)}, {cc}')
            do_side(2)
        seen.add(u)
        Sx.gate(('rc', li))
        for up in (1, 2, 3):
            if li == lastB[up] + 1:
                for i in range(5): side.append(f'ds_write_b128 v{14+up}, {vr(acc(up,i),4)} offset:{((up-1)*5+i)*1024}')
        if li == lastB[3] + 3:
            assert not side
            Sx.lwait_all(0)
            a('s_barrier')
            for s_ in range(3):
                for i in range(5): t(f'ds_read_b128 {vr(acc(1+s_,i),4)}, v14 offset:{(s_*5+i)*1024}')
        if li == lastB[3] + 5:
            Sx.lwait_all(0)
            for q in range(20):
                side.append(f'v_add_f32 v{acc(1,0)+q}, v{acc(1,0)+q}, v{acc(2,0)+q}')
            for q in range(20):
                side.append(f'v_add_f32 v{acc(1,0)+q}, v{acc(1,0)+q}, v{acc(3,0)+q}')
    if verbose: print('ffn2 done', Sx.clock, 'side left', len(side))
    do_side(1000)
    for i in range(5):
        for h in range(2):
            t(f'v_pk_add_f32 {vr(acc(0,i)+2*h,2)}, {vr(acc(0,i)+2*h,2)}, {vr(acc(1,i)+2*h,2)}')
        for h in range(2):
            t(f'v_cvt_pk_bf16_f32 v{B2+2*i+h}, v{acc(0,i)+2*h}, v{acc(0,i)+2*h+1}')
        t(f'ds_write_b64 v18, {vr(B2+2*i,2)} offset:{32*i}')
    for q in range(3): t(f'ds_read_b128 {vr(RF+4*q,4)}, v{24+q}')
    for q in range(3):
        a(f's_waitcnt lgkmcnt({2-q})')
        a(f'buffer_store_dwordx4 {vr(RF+4*q,4)}, v{27+q}, s[84:87], s50 offen {oflag}')
    if stamps:
        write_stamps(a, 8, 1, 26)
    a.label(f'{name}_end')
    a('s_endpgm')
    return dict(vgpr=512, sgpr=96, accum=256, lds=LDS_CD, threads=256)
```

```python
from common import *
from sched import Sched

ST_OFF = 81920
RED_OFF = ST_OFF + 4096
LDS_CD = RED_OFF + 61440

def gen_kCD(a, name, mapping='B', stamps=False, R=80, LAT=600, DEPTH=9, oflag='', pollpos=50, pause=0, verbose=False):
    a.raw(f'.globl {name}\n.p2align 8\n.type {name},@function\n{name}:')
    a.reset_hist()
    a('s_cmp_ge_u32 s2, 256')
    a(f's_cbranch_scc1 {name}_end')
    stamp(a, 0, stamps)
    a('s_load_dwordx2 s[8:9], s[0:1], 0')
    a('s_load_dwordx2 s[12:13], s[0:1], 96')
    a('s_load_dwordx2 s[16:17], s[0:1], 56')
    a('s_load_dwordx4 s[4:7], s[0:1], 72')
    a('v_lshrrev_b32 v1, 6, v0')
    a('v_and_b32 v2, 63, v0')
    a('v_readfirstlane_b32 s26, v1')
    emit_map(a, mapping, 22, 23)
    emit_rho_t1(a, 22, 24, 25)
    a('v_lshrrev_b32 v6, 3, v2')
    a('v_xor_b32 v7, v6, v2')
    a('v_and_b32 v7, 7, v7')
    a('v_mul_u32_u24 v6, 0xa000, v6')
    a('v_lshl_add_u32 v6, v7, 4, v6')
    a('s_lshl_b32 s32, s26, 9'); a('s_add_u32 s32, s32, s24'); a('s_mul_i32 s32, s32, 1280')
    a(f's_add_u32 s33, s32, {256*1280}')
    a('s_lshl_b32 s27, s26, 11')
    a('s_sub_u32 s25, 32, s24'); a('s_and_b32 s25, s25, 31')
    a('s_mul_i32 s34, s26, 2560')
    a(f's_add_u32 s35, s34, {U_OFF - 16}')
    a(f's_sub_u32 s34, {U_OFF + (639-15)*16}, s34')
    a('s_cmp_lt_u32 s26, 2')
    a('s_cselect_b64 vcc, -1, 0')
    a('s_cselect_b32 s28, 1, -1')
    a('s_cselect_b32 s30, s24, s25')
    a('s_cselect_b32 s38, 0, 0x80000000')
    a('s_cselect_b32 s39, 0, 1')
    a('s_cselect_b32 s35, s35, s34')
    a('s_lshl_b32 s28, s28, 8')
    a(f's_or_b32 s38, s38, {fbits(1/2048)}')
    a('s_cmp_eq_u32 s24, 0'); a('s_cselect_b32 s39, 0, s39')
    a(f's_mul_i32 s31, s30, {U_T1}'); a('s_add_u32 s31, s31, s35')
    a('s_lshl_b32 s36, s23, 2'); a('s_add_u32 s36, s36, s26')
    a(f's_mul_i32 s37, s36, {60*1024}'); a(f's_add_u32 s58, s37, {W2P_OFF}'); a(f's_add_u32 s37, s37, {W1P_OFF}'); a('s_add_u32 s29, s37, 40960')
    a('s_waitcnt lgkmcnt(0)')
    srd(a, 8, 8, 9, S*D*2)
    Sx = Sched(a, R=R, LAT=LAT, DEPTH=DEPTH)
    t = Sx
    for ap in range(10):
        for o in range(2):
            Sx.q([f's_add_u32 m0, s27, {ap*8192 + o*1024 - 128*ap}', f'buffer_load_dwordx4 v6, s[8:11], s{32+o} offen offset:{128*ap} lds'], 'x')
    def UA(tl, ks2): return (tl*2+ks2)*4
    for tl in range(10):
        for ks2 in range(2):
            vo = (12 if tl == 0 else 10) + ks2
            L = [f'buffer_load_dwordx4 {ar(UA(tl,ks2),4)}, v{vo}, s[12:15], s31 offen']
            if ks2 == 1 and tl < 9: L.append('s_add_u32 s31, s31, s28')
            Sx.q(L, ('u', tl//2), gate='addr')
    def WA(fr): return 80 + fr*4 if fr < 44 else (fr-44)*4
    for fr in range(60):
        ks_, i_ = divmod(fr, 3)
        if i_ < 2:
            m = 2*ks_ + i_
            L = [f'buffer_load_dwordx4 {ar(WA(fr),4)}, v5, s[12:15], s37 offen offset:{1024*(m%4)}']
            if m % 4 == 3: L.append('s_add_u32 s37, s37, 4096')
        else:
            L = [f'buffer_load_dwordx4 {ar(WA(fr),4)}, v5, s[12:15], s29 offen offset:{1024*(ks_%4)}']
            if ks_ % 4 == 3: L.append('s_add_u32 s29, s29, 4096')
        Sx.q(L, ('w', fr//3), gate='s2done' if fr >= 44 else None)
    for _ in range(4): Sx.pop()
    for l in (f's_mov_b32 s14, {ws_size(stamps)}', 's_mov_b32 s15, 0x20000', f's_mov_b32 s18, {F*2}', 's_mov_b32 s19, 0x20000',
              's_mov_b32 s80, s4', 's_mov_b32 s81, s5', f's_mov_b32 s82, {D*2}', 's_mov_b32 s83, 0x20000',
              's_mov_b32 s84, s6', 's_mov_b32 s85, s7', f's_mov_b32 s86, {S*D*2}', 's_mov_b32 s87, 0x20000'): t(l)
    t('v_and_b32 v3, 15, v2')
    t('v_lshrrev_b32 v4, 4, v2')
    t('v_lshlrev_b32 v5, 4, v2')
    t('v_sub_u32 v11, 15, v3')
    t('v_cndmask_b32 v10, v11, v3, vcc')
    t('v_mul_u32_u24 v11, 5120, v4')
    t('v_lshl_add_u32 v10, v10, 4, v11')
    t('v_add_u32 v11, 0x5000, v10')
    t('v_and_b32 v12, 0xcf, v0')
    t('v_cmp_eq_u32 vcc, 0, v12')
    t('v_mov_b32 v14, 0x7ff00000')
    t('v_cndmask_b32 v12, v10, v14, vcc')
    t('v_cndmask_b32 v13, v11, v14, vcc')
    Sx.gate('addr')
    t('v_xor_b32 v7, v4, v3'); t('v_and_b32 v7, 7, v7'); t('v_lshlrev_b32 v7, 4, v7'); t('v_lshl_add_u32 v7, v3, 7, v7')
    t('v_xor_b32 v8, 64, v7')
    t('v_add_u32 v24, 0xa000, v7'); t('v_add_u32 v25, 0xa000, v8')
    t('s_mul_i32 s40, s26, 5'); t('s_lshr_b32 s41, s40, 1'); t('s_lshl_b32 s41, s41, 13')
    t('s_and_b32 s42, s26, 1'); t('s_lshl_b32 s43, s42, 6'); t('s_lshl_b32 s42, s42, 13'); t('s_add_u32 s42, s42, s41')
    t('v_xor_b32 v26, s43, v7'); t('v_add_u32 v26, s41, v26')
    t('v_xor_b32 v27, s43, v8'); t('v_add_u32 v27, s42, v27')
    def own(kk, tt): return (26 + (kk & 1), (kk//2)*8192 + tt*2048)
    t('v_and_b32 v28, 1, v3'); t('v_lshlrev_b32 v28, 4, v28'); t('v_mov_b32 v29, 0x3f80'); t('v_lshlrev_b32 v28, v28, v29')
    t('v_lshrrev_b32 v29, 1, v3')
    t('v_lshlrev_b32 v30, 2, v4'); t('v_sub_u32 v29, v29, v30')
    for q in range(4):
        t(f'v_cmp_eq_u32 vcc, {q}, v29'); t(f'v_cmp_eq_u32 s[44:45], {q-8}, v29')
        t(f'v_cndmask_b32 v{16+q}, 0, v28, vcc'); t(f'v_cndmask_b32 v{20+q}, 0, v28, s[44:45]')
    M = 32; T = 64
    t('v_lshlrev_b32 v14, 5, v3'); t('v_add_u32 v14, s24, v14')
    t('v_lshlrev_b32 v15, 1, v4'); t('v_cvt_f32_u32 v15, v15')
    t('v_xor_b32 v28, s39, v3'); t('v_lshlrev_b32 v28, 31, v28'); t('v_or_b32 v28, 0x38003800, v28')
    t('v_cmp_eq_u32 vcc, 0, v4')
    for tt in range(4):
        t(f'v_add_u32 v29, {512*tt}, v14')
        t('v_cvt_f32_u32 v29, v29')
        t('v_mul_f32 v29, s38, v29')
        t(f'v_mul_f32 v{T}, v29, v15')
        t(f'v_sub_f32 v30, 0, v{T}')
        for ks2 in range(2):
            for j in range(4):
                if ks2 == 0 and j == 0: continue
                c = [8*ks2, 32-8*ks2, 8*ks2+1, 31-8*ks2][j]
                t(f'v_fmamk_f32 v{T+ks2*4+j}, v29, {fbits(float(c))}, v{T if j%2==0 else 30}')
        t(f'v_mul_f32 v31, {fbits(16.0)}, v29')
        t(f'v_cndmask_b32 v{T+1}, v{T+1}, v31, vcc')
        for j in range(8): t(f'v_sin_f32 v{T+8+j}, v{T+j}')
        for j in range(8): t(f'v_cos_f32 v{T+j}, v{T+j}')
        for j in range(8): t(f'v_cvt_pk_f16_f32 v{M+tt*8+j}, v{T+j}, v{T+8+j}')
        t(f'v_cndmask_b32 v{M+tt*8}, v{M+tt*8}, v28, vcc')
    if verbose: print('Mgen done', Sx.clock)
    Sx.vwait('x', 20)
    a('s_barrier')
    stamp(a, 1, stamps)
    if verbose: print('x barrier', Sx.clock)
    Y = 64; XF = 224
    def YG(kk, tt): return Y + (kk*4+tt)*8
    def xread(kk):
        for tt in range(4):
            va, off = own(kk, tt)
            Sx.ds(f'ds_read_b128 {vr(XF+(kk&1)*16+tt*4,4)}, v{va} offset:{off}', ('xr', kk))
    xread(0)
    for kk in range(5):
        if kk + 1 < 5: xread(kk+1)
        Sx.lwait(('xr', kk), 100 if kk == 0 else 0)
        for tt in range(4):
            for i in range(2):
                t(f'v_mfma_f32_16x16x32_bf16 {vr(YG(kk,tt)+4*i,4)}, {vr(16+4*i,4)}, {vr(XF+(kk&1)*16+tt*4,4)}, 0')
    def packlist(kk):
        L = []
        for tt in range(4):
            b = YG(kk, tt)
            for j in range(4): L.append(f'v_cvt_pk_bf16_f32 v{b+j}, v{b+2*j}, v{b+2*j+1}')
            va, off = own(kk, tt)
            L.append(f'ds_write_b128 v{va}, {vr(b,4)} offset:{off}')
        return L
    pend = []
    for kk in range(5):
        Sx.vwait(('u', kk), 4)
        c = 0
        order = [(ks2, tt, i) for ks2 in range(2) for tt in range(4) for i in range(2)]
        if kk == 4: order = [(ks2, tt, i) for tt in range(4) for ks2 in range(2) for i in range(2)]
        for ks2, tt, i in order:
            d = vr(YG(kk,tt)+4*i, 4)
            t(f'v_mfma_f32_16x16x32_f16 {d}, {ar(UA(2*kk+i,ks2),4)}, {vr(M+tt*8+ks2*4,4)}, {d}')
            c += 1
            if c >= 3:
                for _ in range(2):
                    if pend: t(pend.pop(0))
        while pend: t(pend.pop(0))
        pend = packlist(kk)
    Sx.gate('s2done')
    while pend: t(pend.pop(0))
    Sx.lwait_all()
    a('s_barrier')
    stamp(a, 2, stamps)
    if verbose: print('h barrier', Sx.clock)
    BF = 32
    def bread(ks, tts=range(4)):
        for tt in tts:
            off = (ks//2)*8192 + tt*2048
            va = 7 + (ks & 1)
            if off >= 40960: va = 24 + (ks & 1); off -= 40960
            Sx.ds(f'ds_read_b128 {vr(BF+(ks&1)*16+tt*4,4)}, v{va} offset:{off}', ('b', ks))
    def UP(gi): return YG(gi//4, gi%4) + 4
    def AC(i, tt): return UP(i*4+tt)
    bread(0)
    for j in range(4): t(f'v_mov_b32 v{16+j}, 0x3f803f80')
    SS = 224; SG = 240
    stat = []
    for kk in range(5):
        for tt in range(4):
            h = vr(YG(kk,tt), 4)
            stat.append(f'v_mfma_f32_16x16x32_bf16 {vr(SS+4*tt,4)}, v[16:19], {h}, {"0" if kk == 0 else vr(SS+4*tt,4)}')
            stat.append(f'v_mfma_f32_16x16x32_bf16 {vr(SG+4*tt,4)}, {h}, {h}, {"0" if kk == 0 else vr(SG+4*tt,4)}')
    def CSR(p, i): return UP(12 + p*3 + i)
    def B1R(i): return UP(18) + 2*i if i < 2 else UP(19)
    t('s_mul_i32 s42, s23, 12'); t('s_lshl_b32 s43, s26, 1'); t('s_add_u32 s43, s43, s42')
    t('s_add_u32 s44, s42, 8'); t('s_add_u32 s44, s44, s26')
    t('s_lshl_b32 s45, s43, 5'); t('s_lshl_b32 s46, s44, 5')
    t('s_lshl_b32 s47, s43, 6'); t(f's_add_u32 s47, s47, {CS_OFF}')
    t('s_lshl_b32 s48, s44, 6'); t(f's_add_u32 s48, s48, {CS_OFF}')
    t('s_add_u32 s49, s47, 6144'); t('s_add_u32 s50, s48, 6144')
    t('v_lshlrev_b32 v20, 3, v4')
    t('v_lshlrev_b32 v21, 4, v4')
    for _ in range(6): t(stat.pop(0))
    extra = []
    for i in range(3):
        so, off = (45, 32*i) if i < 2 else (46, 0)
        extra.append(([f'buffer_load_dwordx2 {vr(B1R(i),2)}, v20, s[16:19], s{so} offen offset:{off}'], 'bc', None, 0.3))
    for p in range(2):
        for i in range(3):
            so, off = (47+2*p, 64*i) if i < 2 else (48+2*p, 0)
            extra.append(([f'buffer_load_dwordx4 {vr(CSR(p,i),4)}, v21, s[12:15], s{so} offen offset:{off}'], 'bc', None, 0.3))
    pos = max(0, len(Sx.Q) - 15)
    Sx.Q[pos:pos] = extra
    def W2A(q): return 64 + 4*q if q < 4 else WA(q-4)
    POLL = 22
    for q in range(60):
        if q == pollpos:
            Sx.q([f'buffer_load_dwordx2 {vr(POLL,2)}, v9, s[12:15], s59 offen sc1'], 'poll', gate='signalled', cost=0.3)
        L = [f'buffer_load_dwordx4 {ar(W2A(q),4)}, v5, s[12:15], s58 offen offset:{1024*(q%4)}']
        if q % 4 == 3: L.append('s_add_u32 s58, s58, 4096')
        Sx.q(L, 'w2', gate=None if q < 4 else ('ks', (q-4)//3))
    SA = 224
    side = []
    for ks in range(20):
        Sx.vwait(('w', ks), 3)
        Sx.lwait(('b', ks))
        c = 0
        for i in range(3):
            for tt in range(4):
                d = vr(AC(i,tt), 4)
                t(f'v_mfma_f32_16x16x32_bf16 {d}, {ar(WA(ks*3+i),4)}, {vr(BF+(ks&1)*16+tt*4,4)}, {"0" if ks == 0 else d}')
                c += 1
                if c in (1, 2, 3, 4) and ks + 1 < 20: bread(ks + 1, [c-1])
                if c in (6, 9, 12) and stat: t(stat.pop(0))
                for _ in range(2):
                    if side: t(side.pop(0))
        Sx.gate(('ks', ks))
        if pause and ks == 19 - pause: Sx.hold += 1
        if ks == 12:
            assert not stat
            side += ['v_and_b32 v22, 3, v3', 'v_cmp_eq_u32 s[52:53], 1, v22', 'v_cmp_eq_u32 s[54:55], 2, v22', 'v_cmp_eq_u32 s[56:57], 3, v22',
                     'v_lshlrev_b32 v30, 3, v3', 's_lshl_b32 s40, s26, 9', f's_add_u32 s40, s40, {ST_OFF}', 'v_add_u32 v30, s40, v30']
            for tt in range(4):
                g = SG + 4*tt
                side += [f'v_cndmask_b32 v{SS+4*tt+1}, v{g}, v{g+1}, s[52:53]',
                         f'v_cndmask_b32 v{SS+4*tt+1}, v{SS+4*tt+1}, v{g+2}, s[54:55]',
                         f'v_cndmask_b32 v{SS+4*tt+1}, v{SS+4*tt+1}, v{g+3}, s[56:57]']
            side += ['v_lshlrev_b32 v29, 3, v2', f'v_add_u32 v29, {ST_OFF}, v29']
        if ks == 13:
            assert not side
            Sx.hold += 1
            t('s_mov_b32 exec_lo, 0x00f0000f'); t('s_mov_b32 exec_hi, 0xf0000f00')
            for tt in range(4): Sx.ds(f'ds_write_b64 v30, {vr(SS+4*tt,2)} offset:{128*tt}', 'stw')
            t('s_mov_b64 exec, -1')
            Sx.hold -= 1
        if ks == 14:
            Sx.lwait('stw')
            a('s_barrier')
            for w in range(4): Sx.ds(f'ds_read_b64 {vr(SA+2*w,2)}, v29 offset:{512*w}', 'str')
        if ks == 15:
            Sx.lwait('str')
            side += [f'v_add_f32 v{SA}, v{SA}, v{SA+2}', f'v_add_f32 v{SA+1}, v{SA+1}, v{SA+3}',
                     f'v_add_f32 v{SA+4}, v{SA+4}, v{SA+6}', f'v_add_f32 v{SA+5}, v{SA+5}, v{SA+7}',
                     f'v_add_f32 v{SA}, v{SA}, v{SA+4}', f'v_add_f32 v{SA+1}, v{SA+1}, v{SA+5}',
                     f'v_mul_f32 v{SA}, {fbits(1/640)}, v{SA}', f'v_mul_f32 v{SA+1}, {fbits(1/640)}, v{SA+1}',
                     f'v_fma_f32 v{SA+1}, -v{SA}, v{SA}, v{SA+1}', f'v_max_f32 v{SA+1}, 0, v{SA+1}',
                     f'v_add_f32 v{SA+1}, {fbits(1e-5)}, v{SA+1}', f'v_rsq_f32 v{SA+1}, v{SA+1}',
                     'v_lshlrev_b32 v31, 3, v2', 'v_add_u32 v31, s40, v31',
                     f'v_mul_f32 v{SA}, v{SA}, v{SA+1}']
        if ks == 16:
            assert not side
            Sx.ds(f'ds_write_b64 v31, {vr(SA,2)} offset:2048', 'stw2')
            for tt in range(4): Sx.ds(f'ds_read_b64 {vr(SA+8+2*tt,2)}, v30 offset:{2048+tt*128}', 'str2')
            Sx.vwait('bc', 9)
            for i in range(3):
                for r in range(4): side.append(f'v_add_f32 v{CSR(0,i)+r}, v{CSR(0,i)+r}, v{CSR(1,i)+r}')
            for i in range(3):
                for h in range(2):
                    side.append(f'v_lshlrev_b32 v{CSR(1,i)+2*h}, 16, v{B1R(i)+h}')
                    side.append(f'v_and_b32 v{CSR(1,i)+2*h+1}, 0xffff0000, v{B1R(i)+h}')
        if ks == 17:
            assert not side
            Sx.lwait('str2')
            for tt in range(4):
                for i in range(3):
                    for r in range(4):
                        side.append(f'v_fma_f32 v{AC(i,tt)-4+r}, -v{SA+8+2*tt}, v{CSR(0,i)+r}, v{CSR(1,i)+r}')
    assert not side
    stamp(a, 3, stamps)
    if verbose: print('ffn1 done', Sx.clock)
    ST = SA + 8
    t('s_mul_i32 s41, s22, 48'); t('s_mul_i32 s42, s23, 6'); t('s_add_u32 s51, s41, s42')
    t('s_add_u32 s42, s51, s26'); t('s_lshl_b32 s42, s42, 12'); t(f's_add_u32 s42, s42, {R_OFF}')
    t('s_lshr_b32 s43, s26, 1'); t('s_lshl_b32 s49, s43, 12'); t(f's_add_u32 s49, s49, {RED_OFF}')
    t('s_add_u32 s43, s43, s51'); t('s_add_u32 s43, s43, 4'); t('s_lshl_b32 s43, s43, 12')
    t('s_and_b32 s44, s26, 1'); t('s_lshl_b32 s50, s44, 3'); t('s_add_u32 s50, s50, s49')
    t('s_lshl_b32 s44, s44, 11'); t('s_add_u32 s43, s43, s44'); t(f's_add_u32 s43, s43, {R_OFF}'); t('s_add_u32 s49, s49, s44')
    t('v_add_u32 v10, s50, v5'); t('v_add_u32 v11, s49, v5')
    def epi(i, tt):
        ac = AC(i, tt); tm = ac - 4
        for h in range(2):
            t(f'v_pk_fma_f32 {vr(ac+2*h,2)}, {vr(ac+2*h,2)}, {vr(ST+2*tt,2)}, {vr(tm+2*h,2)} op_sel:[0,1,0] op_sel_hi:[1,1,1]')
        for r in range(4): t(f'v_max_f32 v{ac+r}, 0, v{ac+r}')
        for h in range(2): t(f'v_pk_mul_f32 {vr(ac+2*h,2)}, {vr(ac+2*h,2)}, {vr(ac+2*h,2)}')
        dst = YG(3, tt) + 2*i if i < 2 else YG(4, tt)
        for h in range(2): t(f'v_cvt_pk_bf16_f32 v{dst+h}, v{ac+2*h}, v{ac+2*h+1}')
    for i in range(2): epi(i, 0)
    Sx.mem(f'buffer_store_dwordx4 {vr(YG(3,0),4)}, v5, s[12:15], s42 offen sc1', 'rst')
    for tt in range(4):
        epi(2, tt)
        Sx.ds(f'ds_write_b64 v10, {vr(YG(4,tt),2)} offset:{1024*tt}', 'xw')
    for tt in range(1, 3):
        for i in range(2): epi(i, tt)
        Sx.mem(f'buffer_store_dwordx4 {vr(YG(3,tt),4)}, v5, s[12:15], s42 offen offset:{1024*tt} sc1', 'rst')
    Sx.lwait('xw')
    a('s_barrier')
    for j in range(2): Sx.ds(f'ds_read_b128 {vr(YG(4,j),4)}, v11 offset:{1024*j}', 'xr2')
    for i in range(2): epi(i, 3)
    Sx.mem(f'buffer_store_dwordx4 {vr(YG(3,3),4)}, v5, s[12:15], s42 offen offset:3072 sc1', 'rst')
    Sx.lwait('xr2')
    for j in range(2): Sx.mem(f'buffer_store_dwordx4 {vr(YG(4,j),4)}, v5, s[12:15], s43 offen offset:{1024*j} sc1', 'rst')
    if pause: Sx.hold -= 1
    if verbose: print('r stored', Sx.clock)
    ACC = 32
    def acc(u, i): return ACC + (u*5+i)*4
    B2 = 112
    t('s_mul_i32 s45, s23, 160')
    for i in range(5):
        Sx.mem(f'buffer_load_dwordx2 {vr(B2+2*i,2)}, v20, s[80:83], s45 offen offset:{32*i}', 'b2', 0.3)
    t('s_lshl_b32 s46, s22, 8'); t(f's_add_u32 s46, s46, {FLAG_OFF}')
    t('s_lshl_b32 s59, s26, 6'); t('s_add_u32 s59, s59, s46')
    t('s_lshr_b32 s47, s23, 1'); t('s_lshl_b32 s47, s47, 6'); t('s_add_u32 s46, s46, s47')
    t('s_and_b32 s47, s23, 1'); t('s_lshl_b32 s47, s47, 2'); t('s_add_u32 s46, s46, s47')
    t('v_mov_b32 v9, 0')
    t('v_mov_b32 v28, 1')
    t('s_mul_i32 s47, s23, 5')
    for i in range(5):
        t(f's_add_u32 s48, s47, {i}')
        t('s_lshr_b32 s49, s48, 2'); t('s_lshl_b32 s49, s49, 13'); t('s_add_u32 s49, s49, s27')
        t('s_and_b32 s50, s48, 1'); t('s_lshl_b32 s50, s50, 3'); t('s_add_u32 s49, s49, s50')
        t('s_and_b32 s50, s48, 2'); t('s_lshl_b32 s50, s50, 5')
        t('v_xor_b32 v29, s50, v7'); t('v_add_u32 v29, s49, v29')
        Sx.ds(f'ds_read_b64 {vr(B2+10+2*i,2)}, v29', 'hres')
    for u in range(4):
        t(f'v_add_u32 v{10+u}, {u}, v1'); t(f'v_and_b32 v{10+u}, 3, v{10+u}')
        t(f'v_mul_u32_u24 v{14+u}, 15360, v{10+u}')
        t(f'v_lshl_add_u32 v{10+u}, v{10+u}, 10, v5')
        t(f'v_add_u32 v{14+u}, v{14+u}, v5'); t(f'v_add_u32 v{14+u}, {RED_OFF}, v{14+u}')
    t('s_mul_i32 s48, s26, 12'); t('s_add_u32 s48, s48, s41'); t('s_lshl_b32 s48, s48, 12'); t(f's_add_u32 s48, s48, {R_OFF}')
    Sx.vwait('rst')
    a('s_barrier')
    Sx.hold += 1
    t('s_cmp_lg_u32 s26, 0')
    t(f's_cbranch_scc1 {name}_nosig')
    t('s_mov_b64 exec, 1')
    t('buffer_store_dword v28, v9, s[12:15], s46 offen sc1')
    t('s_mov_b64 exec, -1')
    a.label(f'{name}_nosig')
    Sx.hold -= 1
    Sx.gate('signalled')
    stamp(a, 4, stamps)
    if verbose: print('signalled', Sx.clock)
    Sx.lwait('hres'); Sx.vwait('b2')
    for q in range(10):
        t(f'v_lshlrev_b32 v{ACC+2*q}, 16, v{B2+q}'); t(f'v_and_b32 v{ACC+2*q+1}, 0xffff0000, v{B2+q}')
        t(f'v_lshlrev_b32 v132, 16, v{B2+10+q}'); t(f'v_and_b32 v133, 0xffff0000, v{B2+10+q}')
        t(f'v_pk_add_f32 {vr(ACC+2*q,2)}, {vr(ACC+2*q,2)}, v[132:133]')
    t('s_lshl_b32 s49, s26, 12')
    t('v_mul_u32_u24 v18, 176, v3'); t('v_add_u32 v18, v18, v20'); t('v_add_u32 v18, s49, v18')
    t('s_lshl_b32 s50, s26, 9'); t('s_add_u32 s50, s50, s24'); t('s_mul_i32 s50, s50, 1280'); t('s_add_u32 s50, s50, s45')
    for q in range(3):
        t(f'v_add_u32 v30, {64*q}, v2')
        t('v_mul_u32_u24 v31, 205, v30'); t('v_lshrrev_b32 v31, 11, v31')
        t('v_mul_u32_u24 v19, 10, v31'); t('v_sub_u32 v30, v30, v19'); t('v_lshlrev_b32 v30, 4, v30')
        t(f'v_mul_u32_u24 v{24+q}, 176, v31'); t(f'v_add_u32 v{24+q}, v{24+q}, v30'); t(f'v_add_u32 v{24+q}, s49, v{24+q}')
        t(f'v_mul_u32_u24 v{27+q}, 0xa000, v31'); t(f'v_add_u32 v{27+q}, v{27+q}, v30')
    t('v_cmp_gt_u32 vcc, 32, v2'); t('v_mov_b32 v30, 0x7ff00000'); t('v_cndmask_b32 v29, v30, v29, vcc')
    Sx.need('poll', 1)
    Sx.flush()
    assert not Sx.Q
    Sx.vwait('poll')
    a('s_mov_b32 s44, 0')
    a.label(f'{name}_chk')
    a(f'v_and_b32 v{POLL}, v{POLL}, v{POLL+1}')
    a(f'v_readfirstlane_b32 s47, v{POLL}')
    a('s_cmp_eq_u32 s47, 1')
    a(f's_cbranch_scc1 {name}_go')
    a('s_add_u32 s44, s44, 1')
    a('s_cmp_gt_u32 s44, 0x100000')
    a(f's_cbranch_scc1 {name}_go')
    a(f'buffer_load_dwordx2 {vr(POLL,2)}, v9, s[12:15], s59 offen sc1')
    a('s_waitcnt vmcnt(0)')
    a(f's_branch {name}_chk')
    a.label(f'{name}_go')
    stamp(a, 5, stamps)
    if verbose: print('go', Sx.clock)
    RF = 136; NRF = 30
    uorder = [1, 2, 3, 0]
    for li in range(48):
        u = uorder[li // 12]; ks = li % 12
        L = [f'buffer_load_dwordx4 {vr(RF+(li%NRF)*4,4)}, v{10+u}, s[12:15], s48 offen sc1']
        L.append('s_add_u32 s48, s48, 4096' if ks < 11 else f's_sub_u32 s48, s48, {11*4096}')
        Sx.q(L, ('r', li), gate=None if li < NRF else ('rc', li - NRF))
    for _ in range(4): Sx.pop()
    Sx.vwait('w2')
    side = []
    for li in range(48):
        u = uorder[li // 12]; ks = li % 12
        Sx.vwait(('r', li), 1)
        for i in range(5):
            d = vr(acc(u,i), 4)
            cc = '0' if (ks == 0 and u != 0) else d
            t(f'v_mfma_f32_16x16x32_bf16 {d}, {ar(W2A(ks*5+i),4)}, {vr(RF+(li%NRF)*4,4)}, {cc}')
            for _ in range(2):
                if side:
                    x = side.pop(0)
                    if x.startswith('ds_'): Sx.ds(x, 'red'); break
                    t(x)
        Sx.gate(('rc', li))
        if ks == 1 and li >= 12:
            up = uorder[li // 12 - 1]
            for i in range(5): side.append(f'ds_write_b128 v{14+up}, {vr(acc(up,i),4)} offset:{((up-1)*5+i)*1024}')
        if li == 36 + 4:
            assert not side
            Sx.lwait_all(0)
            a('s_barrier')
            for s_ in range(3):
                for i in range(5): side.append(f'ds_read_b128 {vr(acc(1+s_,i),4)}, v14 offset:{(s_*5+i)*1024}')
        if li == 36 + 8:
            assert not side
            Sx.lwait_all(0)
            for q in range(20): side.append(f'v_add_f32 v{acc(1,0)+q}, v{acc(1,0)+q}, v{acc(2,0)+q}')
            for q in range(10): side.append(f'v_add_f32 v{acc(1,0)+q}, v{acc(1,0)+q}, v{acc(3,0)+q}')
    assert not side
    for q in range(10, 20): t(f'v_add_f32 v{acc(1,0)+q}, v{acc(1,0)+q}, v{acc(3,0)+q}')
    stamp(a, 6, stamps)
    if verbose: print('ffn2 done', Sx.clock)
    for i in range(5):
        for h in range(2):
            t(f'v_pk_add_f32 {vr(acc(0,i)+2*h,2)}, {vr(acc(0,i)+2*h,2)}, {vr(acc(1,i)+2*h,2)}')
        for h in range(2):
            t(f'v_cvt_pk_bf16_f32 v{B2+2*i+h}, v{acc(0,i)+2*h}, v{acc(0,i)+2*h+1}')
        t(f'ds_write_b64 v18, {vr(B2+2*i,2)} offset:{32*i}')
    for q in range(3): t(f'ds_read_b128 {vr(RF+4*q,4)}, v{24+q}')
    for q in range(3):
        a(f's_waitcnt lgkmcnt({2-q})')
        a(f'buffer_store_dwordx4 {vr(RF+4*q,4)}, v{27+q}, s[84:87], s50 offen {oflag}')
    if stamps:
        write_stamps(a, 8, 1, 26)
    a.label(f'{name}_end')
    a('s_endpgm')
    return dict(vgpr=512, sgpr=96, accum=256, lds=LDS_CD, threads=256)
```

```python
import build2, kCD4, kA2
from build2 import *
build2.gen_kCD = kCD4.gen_kCD
build2.gen_kA = kA2.gen_kA
build(f'v11a.s', akw=dict(stflag='sc1'))
build(f'v11b.s', akw=dict(stflag='sc1', pf='fnet_cd_kernel'))
```

```python
from common import *

XP = 1280
G_OFF = 64 * XP
G_E1 = 4112
T_OFF = 0
TP = 260
LDS_A = G_OFF + 8 * G_E1
NW_A = 16

def gen_kA(a, name, stamps=False, stflag='', uflag='', qrot=0, pack_w2=True, pf=None):
    a.raw(f'.globl {name}\n.p2align 8\n.type {name},@function\n{name}:')
    a.reset_hist()
    a('s_cmp_ge_u32 s2, 256')
    a(f's_cbranch_scc1 {name}_end')
    stamp(a, 0, stamps)
    a('s_load_dwordx2 s[8:9], s[0:1], 0')
    a('s_load_dwordx2 s[12:13], s[0:1], 96')
    a('s_load_dwordx2 s[16:17], s[0:1], 48')
    a('s_load_dwordx2 s[18:19], s[0:1], 64')
    a('v_lshrrev_b32 v1, 6, v0')
    a('v_and_b32 v2, 63, v0')
    a('v_readfirstlane_b32 s22, v1')
    a('v_and_b32 v7, 15, v2')
    a('v_lshrrev_b32 v8, 4, v2')
    if qrot:
        a(f's_add_u32 s2, s2, {8*qrot}'); a('s_and_b32 s2, s2, 255')
    a('s_and_b32 s24, s2, 7')
    a('s_lshr_b32 s25, s2, 3')
    a('s_cmp_lt_u32 s25, 20')
    a(f's_cbranch_scc1 {name}_fft_norm')
    a('s_cmp_ge_u32 s25, 25')
    a(f's_cbranch_scc1 {name}_pack_hi')
    a('s_cmp_eq_u32 s24, 0')
    a(f's_cbranch_scc0 {name}_pack_lo')
    a('s_mov_b32 s20, 32')
    a('s_sub_u32 s21, s25, 20')
    a('s_mov_b32 s23, 2')
    a(f's_branch {name}_fft')
    a.label(f'{name}_fft_norm')
    a('s_mul_i32 s26, s25, 52')
    a('s_lshr_b32 s26, s26, 8')
    a('s_mul_i32 s27, s26, 5')
    a('s_sub_u32 s21, s25, s27')
    a('s_lshl_b32 s27, s24, 2')
    a('s_add_u32 s27, s27, s26')
    emit_rho_t1(a, 27, 20, 28)
    a('s_lshl_b32 s23, s26, 2')
    a.label(f'{name}_fft')
    a.reset_hist()
    vm = Cnt(a, 'vmcnt', 63); lg = Cnt(a, 'lgkmcnt', 15)
    a('v_lshl_add_u32 v3, v1, 2, v8')
    a('v_and_b32 v5, 31, v3')
    a('v_lshlrev_b32 v5, 6, v5')
    a('v_add_u32 v5, s20, v5')
    a('v_sub_u32 v6, 0x800, v5')
    a('v_and_b32 v6, 0x7ff, v6')
    a('v_cmp_gt_u32 vcc, 32, v3')
    a('v_lshlrev_b32 v4, 4, v7')
    a('v_cndmask_b32 v5, v6, v5, vcc')
    a('v_mul_u32_u24 v5, 1280, v5')
    a('v_add_u32 v5, v5, v4')
    a(f'v_mul_u32_u24 v6, {XP}, v3')
    a('v_add_u32 v6, v6, v4')
    a('s_waitcnt lgkmcnt(0)')
    srd(a, 8, 8, 9, S*D*2)
    X = 64
    for jj in range(5):
        a(f'buffer_load_dwordx4 {vr(X+4*jj,4)}, v5, s[8:11], 0 offen offset:{256*jj}')
        vm.issue(('x', jj))
    srd(a, 12, 12, 13, ws_size(stamps))
    a('v_lshlrev_b32 v9, 2, v8')
    a('v_cvt_f32_u32 v9, v9')
    BA = 20; BA2 = 24; CSUM = 26; BB = 28; BM = 32; BCc = 36; BCs = 40; T = 44
    a('s_lshl_b32 s26, s21, 3')
    a('s_add_u32 s26, s26, 1')
    a('v_and_b32 v10, 7, v7')
    a('v_add_u32 v10, s26, v10')
    a('v_cvt_f32_u32 v10, v10')
    a(f'v_mul_f32 v10, {fbits(1/40)}, v10')
    a('v_lshrrev_b32 v11, 3, v7')
    a('v_cvt_f32_u32 v11, v11')
    a(f'v_mul_f32 v11, {fbits(0.25)}, v11')
    a('v_fma_f32 v11, v10, v9, v11')
    cj = [0,1,2,3,16,17,18,19,32,33,34,35]
    for j, c in enumerate(cj):
        a(f'v_fmamk_f32 v{T+j}, v10, {fbits(float(c))}, v11')
    for j in range(12):
        a(f'v_cos_f32 v{T+j}, v{T+j}')
    for j in range(6):
        a(f'v_cvt_pk_bf16_f32 v{BA+j}, v{T+2*j}, v{T+2*j+1}')
    a('v_cmp_gt_u32 vcc, 2, v8')
    ONES = 60
    for j in range(4): a(f'v_mov_b32 v{ONES+j}, 0x3f803f80')
    a(f'v_cndmask_b32 v{BA2}, 0, v{BA2}, vcc')
    a(f'v_cndmask_b32 v{BA2+1}, 0, v{BA2+1}, vcc')
    a(f'v_mfma_f32_16x16x32_bf16 v[84:87], {vr(ONES,4)}, {vr(BA,4)}, 0')
    a(f'v_mfma_f32_16x16x16_bf16 v[88:91], {vr(ONES,2)}, {vr(BA2,2)}, 0')
    a('s_and_b32 s27, s22, 7')
    a('s_add_u32 s28, s27, s26')
    a('v_lshrrev_b32 v10, 1, v7')
    a('v_mul_u32_u24 v10, 40, v10')
    a('v_add_u32 v10, s28, v10')
    a('v_and_b32 v11, 1, v7')
    a('v_cvt_f32_u32 v12, v11')
    a(f'v_mul_f32 v12, {fbits(0.25)}, v12')
    a('v_mov_b32 v13, 0x80008000')
    a('v_mul_lo_u32 v13, v13, v11')
    a('v_cvt_f32_u32 v14, v10')
    a(f'v_mul_f32 v14, {fbits(1/640)}, v14')
    a(f'v_fma_f32 v{T}, v14, v9, v12')
    for r in range(1, 4): a(f'v_fmamk_f32 v{T+r}, v14, {fbits(float(r))}, v{T}')
    a(f'v_add_f32 v{CSUM}, v84, v88')
    for r in range(4): a(f'v_sin_f32 v{T+4+r}, v{T+r}')
    for r in range(4): a(f'v_cos_f32 v{T+r}, v{T+r}')
    for j in range(4): a(f'v_cvt_pk_f16_f32 v{BB+j}, v{T+2*j}, v{T+2*j+1}')
    for j in range(4): a(f'v_xor_b32 v{BM+j}, v13, v{BB+j}')
    a('s_lshr_b32 s29, s22, 3')
    a('s_lshl_b32 s30, s29, 4')
    a('v_add_u32 v15, s30, v7')
    a('v_cvt_f32_u32 v10, v15')
    a(f'v_mul_f32 v10, {fbits(1/32)}, v10')
    a('s_cmp_eq_u32 s20, 32')
    a(f's_cselect_b32 s31, {fbits(0.5)}, 0')
    a('v_add_f32 v11, s31, v9')
    a('v_mul_f32 v11, v10, v11')
    for j, c in enumerate(cj[:8]):
        a(f'v_fmamk_f32 v{T+j}, v10, {fbits(float(c))}, v11')
    for j in range(8): a(f'v_sin_f32 v{T+8+j}, v{T+j}')
    for j in range(8): a(f'v_cos_f32 v{T+j}, v{T+j}')
    for j in range(4):
        a(f'v_cvt_pk_f16_f32 v{BCc+j}, v{T+2*j}, v{T+2*j+1}')
        a(f'v_cvt_pk_f16_f32 v{BCs+j}, v{T+8+2*j}, v{T+8+2*j+1}')
    a(f's_mul_i32 s32, s22, {4*XP}')
    a('v_lshlrev_b32 v10, 3, v2')
    a('v_add_u32 v10, s32, v10')
    a('v_and_b32 v11, 31, v2')
    a('v_lshlrev_b32 v11, 3, v11')
    a('v_add_u32 v11, s32, v11')
    a('v_and_b32 v12, 7, v7')
    a(f'v_mul_u32_u24 v12, {G_E1}, v12')
    a('v_lshl_add_u32 v12, v8, 8, v12')
    a('v_lshrrev_b32 v13, 3, v7')
    a('v_lshl_add_u32 v12, v13, 3, v12')
    a('s_lshr_b32 s33, s22, 2'); a('s_lshl_b32 s33, s33, 10'); a('s_and_b32 s34, s22, 3'); a('s_lshl_b32 s34, s34, 6'); a('s_add_u32 s33, s33, s34'); a(f's_add_u32 s33, s33, {G_OFF}')
    a('v_add_u32 v12, s33, v12')
    a(f's_mul_i32 s34, s27, {G_E1}'); a(f's_add_u32 s34, s34, {G_OFF}')
    a('v_lshlrev_b32 v13, 4, v2')
    a('v_add_u32 v13, s34, v13')
    a(f'v_mul_u32_u24 v14, {TP}, v15')
    a('v_lshl_add_u32 v14, v8, 6, v14')
    a('s_lshl_b32 s34, s27, 2')
    a('v_add_u32 v14, s34, v14')
    a(f's_mul_i32 s34, s22, {2*TP}')
    a('v_lshlrev_b32 v15, 2, v2')
    a('v_add_u32 v15, s34, v15')
    a('v_lshrrev_b32 v16, 3, v2')
    a('v_mul_u32_u24 v16, 40, v16')
    a('v_and_b32 v17, 7, v2')
    a('v_add_lshl_u32 v16, v16, v17, 4')
    a(f's_mul_i32 s36, s22, {2*U_T1}')
    a('s_mul_i32 s37, s24, 5120'); a('s_add_u32 s36, s36, s37')
    a('s_lshl_b32 s37, s21, 7'); a('s_add_u32 s36, s36, s37')
    a('s_add_u32 s36, s36, s23'); a(f's_add_u32 s36, s36, {U_OFF}')
    a(f's_add_u32 s37, s36, {U_T1}')
    a('s_and_b32 s35, s20, 31')
    SA = 56
    for j in range(4): a(f'v_mov_b32 v{SA+j}, 0')
    stamp(a, 1, stamps)
    for jj in range(5):
        vm.wait(('x', jj))
        a(f'ds_write_b128 v6, {vr(X+4*jj,4)} offset:{256*jj}')
        lg.issue('xw')
        if jj == 4:
            FR = 96
            for rho in range(4):
                b = FR + rho * 6
                a(f'ds_read_b64_tr_b16 {vr(b,2)}, v10 offset:{rho*XP}')
                a(f'ds_read_b64_tr_b16 {vr(b+2,2)}, v10 offset:{rho*XP+512}')
                a(f'ds_read_b64_tr_b16 {vr(b+4,2)}, v11 offset:{rho*XP+1024}')
                lg.issue(('tr', rho), 3)
        for r in range(4):
            a(f'v_dot2c_f32_bf16 v{SA+(r&1)}, v{X+4*jj+r}, v{ONES}')
            a(f'v_dot2c_f32_bf16 v{SA+2+(r&1)}, v{X+4*jj+r}, v{X+4*jj+r}')
    stamp(a, 2, stamps)
    a(f'v_add_f32 v{SA}, v{SA}, v{SA+1}')
    a(f'v_add_f32 v{SA+2}, v{SA+2}, v{SA+3}')
    D1 = 44
    D1r = [84, 88, 92, 44]
    for rho in range(4):
        lg.wait(('tr', rho))
        a(f'v_mfma_f32_16x16x32_bf16 {vr(D1r[rho],4)}, {vr(FR+rho*6,4)}, {vr(BA,4)}, 0')
        rot = [8, 4, 2, 1][rho]
        a(f'v_add_f32_dpp v{SA}, v{SA}, v{SA} row_ror:{rot} row_mask:0xf bank_mask:0xf')
        a(f'v_add_f32_dpp v{SA+2}, v{SA+2}, v{SA+2} row_ror:{rot} row_mask:0xf bank_mask:0xf')
    sts = [f'v_mul_f32 v{SA}, {fbits(1/640)}, v{SA}',
           f'v_mul_f32 v{SA+2}, {fbits(1/640)}, v{SA+2}',
           f'v_fma_f32 v{SA+2}, -v{SA}, v{SA}, v{SA+2}',
           f'v_max_f32 v{SA+2}, 0, v{SA+2}',
           f'v_add_f32 v{SA+2}, {fbits(1e-5)}, v{SA+2}',
           f'v_rsq_f32 v{SA+2}, v{SA+2}',
           's_nop 0',
           f'v_mul_f32 v{SA}, v{SA}, v{SA+2}']
    for rho in range(4):
        a(f'v_mfma_f32_16x16x16_bf16 {vr(D1r[rho],4)}, {vr(FR+rho*6+4,2)}, {vr(BA2,2)}, {vr(D1r[rho],4)}')
        a(sts[2*rho]); a(sts[2*rho+1])
    for rho in range(4):
        a(f'v_readlane_b32 s{44+2*rho}, v{SA+2}, {16*rho}')
        a(f'v_readlane_b32 s{45+2*rho}, v{SA}, {16*rho}')
    for rho in range(4):
        a(f'v_mul_f32 v{48+2*rho}, s{45+2*rho}, v{CSUM}')
    for rho in range(4):
        d = D1r[rho]; sp = 44 + 2*rho; tb = 48 + 2*rho
        a(f'v_pk_fma_f32 {vr(d,2)}, {vr(d,2)}, {sr(sp,2)}, {vr(tb,2)} op_sel_hi:[1,0,0] neg_lo:[0,0,1] neg_hi:[0,0,1]')
        a(f'v_pk_fma_f32 {vr(d+2,2)}, {vr(d+2,2)}, {sr(sp,2)}, {vr(tb,2)} op_sel_hi:[1,0,0] neg_lo:[0,0,1] neg_hi:[0,0,1]')
    for rho in range(4):
        d = D1r[rho]
        a(f'v_cvt_pk_f16_f32 v{d}, v{d}, v{d+1}')
        a(f'v_cvt_pk_f16_f32 v{d+1}, v{d+2}, v{d+3}')
        a(f'ds_write_b64 v12, {vr(d,2)} offset:{16*rho}')
    lg.wait_all()
    stamp(a, 3, stamps)
    a('s_barrier')
    AF = 64
    for rt in (0, 2, 1, 3):
        a(f'ds_read_b128 {vr(AF+rt*4,4)}, v13 offset:{rt*1024}')
    D2 = 96
    for h in range(2):
        a(f's_waitcnt lgkmcnt({3-2*h})')
        a(f'v_mfma_f32_16x16x32_f16 {vr(D2+h*4,4)}, {vr(AF+h*4,4)}, {vr(BB,4)}, 0')
        a(f's_waitcnt lgkmcnt({2-2*h})')
        a(f'v_mfma_f32_16x16x32_f16 {vr(D2+h*4,4)}, {vr(AF+(2+h)*4,4)}, {vr(BM,4)}, {vr(D2+h*4,4)}')
    ZF = 104
    for j in range(4): a(f'v_cvt_pk_f16_f32 v{ZF+j}, v{D2+2*j}, v{D2+2*j+1}')
    D3 = 108
    a(f'v_mfma_f32_16x16x32_f16 {vr(D3,4)}, {vr(ZF,4)}, {vr(BCc,4)}, 0')
    a(f'v_mfma_f32_16x16x32_f16 {vr(D3+4,4)}, {vr(ZF,4)}, {vr(BCs,4)}, 0')
    c = D3; s_ = D3 + 4
    for e in range(2):
        a(f'v_add_f32 v{c+2*e}, v{c+2*e}, v{s_+2*e+1}')
        a(f'v_sub_f32 v{c+2*e+1}, v{c+2*e+1}, v{s_+2*e}')
    for e in range(2):
        a(f'v_cvt_pk_f16_f32 v{116+e}, v{c+2*e}, v{c+2*e+1}')
    a('ds_write2_b32 v14, v116, v117 offset0:0 offset1:8')
    a('s_waitcnt lgkmcnt(0)')
    a('s_barrier')
    a(f'ds_read_b32 v118, v15')
    a(f'ds_read_b32 v119, v15 offset:{TP}')
    stamp(a, 4, stamps)
    a('s_cmp_eq_u32 s35, 0')
    a(f's_cbranch_scc1 {name}_short')
    a('s_waitcnt lgkmcnt(0)')
    a(f'buffer_store_dword v118, v16, s[12:15], s36 offen {uflag}')
    a(f'buffer_store_dword v119, v16, s[12:15], s37 offen {uflag}')
    a(f's_branch {name}_fin')
    a.label(f'{name}_short')
    a('s_waitcnt lgkmcnt(0)')
    a(f'buffer_store_short v118, v16, s[12:15], s36 offen {uflag}')
    a(f'buffer_store_short v119, v16, s[12:15], s37 offen {uflag}')
    a(f's_branch {name}_fin')

    a.label(f'{name}_pack_lo')
    a.reset_hist()
    a('s_sub_u32 s26, s25, 20'); a('s_mul_i32 s26, s26, 7'); a('s_add_u32 s26, s26, s24'); a('s_sub_u32 s26, s26, 1')
    a(f's_branch {name}_pack')
    a.label(f'{name}_pack_hi')
    a('s_sub_u32 s26, s2, 165')
    a.label(f'{name}_pack')
    a('s_cmp_eq_u32 s26, 80')
    a(f's_cbranch_scc1 {name}_zero')
    if pf:
        a('s_cmp_gt_u32 s26, 80')
        a(f's_cbranch_scc1 {name}_pf')
    a(f's_cmp_ge_u32 s26, {80 if pack_w2 else 48}')
    a(f's_cbranch_scc1 {name}_end')
    a('v_lshrrev_b32 v9, 2, v7')
    a('v_and_b32 v4, 3, v2')
    a('v_lshlrev_b32 v3, 4, v2')
    a('v_lshl_add_u32 v9, v8, 2, v9')
    a('s_waitcnt lgkmcnt(0)')
    srd(a, 12, 12, 13, ws_size(stamps))
    if pack_w2:
        a('s_cmp_ge_u32 s26, 48')
        a(f's_cbranch_scc1 {name}_pack_w2')
    a('s_cmp_ge_u32 s22, 10')
    a(f's_cbranch_scc1 {name}_end')
    srd(a, 8, 16, 17, D*F*2)
    a('v_lshrrev_b32 v5, 3, v2')
    a('v_mul_u32_u24 v5, 3072, v5')
    a('v_and_b32 v6, 7, v2')
    a('v_lshl_add_u32 v5, v6, 4, v5')
    a('s_lshr_b32 s27, s26, 1'); a('s_and_b32 s28, s26, 1')
    a('s_mul_i32 s29, s28, 10'); a('s_add_u32 s29, s29, s22')
    a(f's_mul_i32 s30, s29, {32*3072}'); a('s_lshl_b32 s31, s27, 7'); a('s_add_u32 s30, s30, s31')
    a('s_lshl_b32 s31, s22, 12')
    a('s_mov_b32 m0, s31')
    for i in range(4):
        a('buffer_load_dwordx4 v5, s[8:11], s30 offen lds')
        if i < 3:
            a(f's_add_u32 s30, s30, {8*3072}')
            a('s_add_u32 m0, m0, 1024')
    a('v_lshlrev_b32 v6, 7, v9')
    a('v_lshl_add_u32 v6, v4, 3, v6')
    a('v_add_u32 v6, s31, v6')
    for j in range(4): a(f'v_mov_b32 v{12+j}, 0x3f803f80')
    a('s_mul_i32 s33, s27, 43'); a('s_lshr_b32 s33, s33, 7')
    a('s_mul_i32 s34, s33, 3'); a('s_sub_u32 s34, s27, s34')
    a('s_mul_i32 s33, s33, 240')
    a('s_mul_i32 s35, s34, 120'); a('s_lshl_b32 s37, s29, 1'); a('s_add_u32 s35, s35, s37')
    for tl in range(4):
        a(f's_add_u32 s36, s35, {(tl//2)*60 + tl%2}')
        a(f's_add_u32 s37, s29, {tl*60+40}')
        a('s_cmp_eq_u32 s34, 2')
        a('s_cselect_b32 s36, s37, s36')
        a('s_add_u32 s36, s36, s33'); a('s_lshl_b32 s36, s36, 10'); a(f's_add_u32 s{40+tl}, s36, {W1P_OFF}')
    a('s_waitcnt vmcnt(0)')
    for tl in range(4):
        b = 20 + tl*4
        a(f'ds_read_b64_tr_b16 {vr(b,2)}, v6 offset:{tl*32}')
        a(f'ds_read_b64_tr_b16 {vr(b+2,2)}, v6 offset:{tl*32+2048}')
    for tl in range(4):
        b = 20 + tl*4
        a(f's_waitcnt lgkmcnt({6-2*tl})')
        a(f'buffer_store_dwordx4 {vr(b,4)}, v3, s[12:15], s{40+tl} offen {stflag}')
        a(f'v_mfma_f32_16x16x32_bf16 {vr(40+4*tl,4)}, {vr(b,4)}, v[12:15], 0')
    a('v_lshlrev_b32 v10, 4, v8')
    a('s_lshl_b32 s32, s22, 8'); a('s_add_u32 s32, s32, 40960')
    a('v_add_u32 v10, s32, v10')
    for tl in range(4):
        a(f'ds_write_b128 v10, {vr(40+4*tl,4)} offset:{64*tl}')
    a('s_waitcnt lgkmcnt(0)')
    a('s_barrier')
    a('s_cmp_lg_u32 s22, 0')
    a(f's_cbranch_scc1 {name}_fin')
    a('v_lshlrev_b32 v10, 2, v2')
    for w in range(10): a(f'ds_read_b32 v{20+w}, v10 offset:{40960+256*w}')
    a('s_mul_i32 s32, s28, 6144'); a('s_lshl_b32 s33, s27, 8'); a('s_add_u32 s32, s32, s33'); a(f's_add_u32 s32, s32, {CS_OFF}')
    a('s_waitcnt lgkmcnt(0)')
    for w in range(1, 10): a(f'v_add_f32 v20, v20, v{20+w}')
    a(f'buffer_store_dword v20, v10, s[12:15], s32 offen {stflag}')
    a(f's_branch {name}_fin')
    if pack_w2:
        a.label(f'{name}_pack_w2')
        a.reset_hist()
        a('s_cmp_ge_u32 s22, 12')
        a(f's_cbranch_scc1 {name}_end')
        srd(a, 8, 18, 19, D*F*2)
        a('s_sub_u32 s27, s26, 48'); a('s_mul_i32 s27, s27, 12'); a('s_add_u32 s32, s27, s22')
        a('s_lshr_b32 s33, s32, 3'); a('s_and_b32 s34, s32, 7')
        a(f's_mul_i32 s35, s33, {32*1280}'); a('s_mul_i32 s36, s34, 160'); a('s_add_u32 s35, s35, s36')
        a('s_mul_i32 s36, s34, 48'); a('s_add_u32 s36, s36, s33'); a('s_mul_i32 s36, s36, 5120'); a(f's_add_u32 s40, s36, {W2P_OFF}')
        a('s_mul_i32 s29, s22, 5120')
        a('s_mov_b32 m0, s29')
        for i in range(5):
            a(f'v_add_u32 v10, {64*i}, v2')
            a('v_mul_u32_u24 v11, 205, v10'); a('v_lshrrev_b32 v11, 11, v11')
            a('v_mul_u32_u24 v12, 10, v11'); a('v_sub_u32 v12, v10, v12')
            a('v_mul_u32_u24 v11, 1280, v11')
            a(f'v_lshl_add_u32 v{14+i}, v12, 4, v11')
            a(f'buffer_load_dwordx4 v{14+i}, s[8:11], s35 offen lds')
            if i < 4: a('s_add_u32 m0, m0, 1024')
        a('v_mul_u32_u24 v5, 160, v9')
        a('v_add_u32 v5, s29, v5')
        a('v_lshl_add_u32 v5, v4, 3, v5')
        a('v_add_u32 v13, 0x1000, v3')
        a('s_waitcnt vmcnt(0)')
        for i in range(5):
            b = 20 + i*4
            a(f'ds_read_b64_tr_b16 {vr(b,2)}, v5 offset:{32*i}')
            a(f'ds_read_b64_tr_b16 {vr(b+2,2)}, v5 offset:{32*i+16*160}')
        for i in range(5):
            b = 20 + i*4
            a(f's_waitcnt lgkmcnt({8-2*i})')
            if i < 4: a(f'buffer_store_dwordx4 {vr(b,4)}, v3, s[12:15], s40 offen offset:{1024*i} {stflag}')
            else: a(f'buffer_store_dwordx4 {vr(b,4)}, v13, s[12:15], s40 offen {stflag}')
    a(f's_branch {name}_fin')
    a.label(f'{name}_zero')
    a.reset_hist()
    a('s_cmp_ge_u32 s22, 8')
    a(f's_cbranch_scc1 {name}_end')
    a('s_waitcnt lgkmcnt(0)')
    srd(a, 12, 12, 13, ws_size(stamps))
    a('v_lshlrev_b32 v3, 4, v0')
    for j in range(4): a(f'v_mov_b32 v{4+j}, 0')
    a(f's_mov_b32 s30, {FLAG_OFF}')
    a('buffer_store_dwordx4 v[4:7], v3, s[12:15], s30 offen')
    if pf:
        a(f's_branch {name}_fin')
        a.label(f'{name}_pf')
        a.reset_hist()
        a('s_load_dwordx2 s[32:33], s[0:1], 80')
        a('s_load_dwordx2 s[36:37], s[0:1], 56')
        a('s_load_dwordx2 s[40:41], s[0:1], 72')
        a('v_lshlrev_b32 v3, 14, v0')
        a('v_lshlrev_b32 v4, 12, v0')
        a('s_waitcnt lgkmcnt(0)')
        srd(a, 12, 12, 13, ws_size(stamps))
        srd(a, 32, 32, 33, S*D*2)
        srd(a, 36, 36, 37, F*2)
        srd(a, 40, 40, 41, D*2)
        a('buffer_load_dword v8, v3, s[12:15], 0 offen')
        a('buffer_load_dword v9, v4, s[32:35], 0 offen')
        a('buffer_load_dword v10, v4, s[36:39], 0 offen')
        a('buffer_load_dword v11, v4, s[40:43], 0 offen')
        a('s_waitcnt vmcnt(0)')
        a(f's_branch {name}_end')
    a.label(f'{name}_fin')
    if stamps:
        a.reset_hist()
        a('s_nop 7')
        write_stamps(a, 6, 0, 22)
    a.label(f'{name}_end')
    a('s_endpgm')
    return dict(vgpr=120, sgpr=80, accum=120, lds=LDS_A, threads=1024)

if __name__ == '__main__':
    a = Asm()
    a.raw(f'; @launch kernel=ka_kernel grid=(256,1,1) block=(1024,1,1) lds={LDS_A}')
    a.raw('.amdgcn_target "amdgcn-amd-amdhsa--gfx950"\n.text')
    info = gen_kA(a, 'ka_kernel', stamps=True)
    a.raw('.section .rodata,"a"\n.p2align 6')
    a.raw(kernel_desc('ka_kernel', info['vgpr'], info['sgpr'], info['accum']))
    open('ka.s', 'w').write(a.text())
    print('instrs', a.count, 'nops', a.nops)
```

```python
from common import *
src = open('v11a.s').read()
def mk(fn, nbuf):
    a = Asm()
    name = 'probe_kernel'
    a.raw(f'.globl {name}\n.p2align 8\n.type {name},@function\n{name}:')
    a('s_cmp_ge_u32 s2, 256'); a(f's_cbranch_scc1 {name}_end')
    a('s_load_dwordx2 s[8:9], s[0:1], 8'); a('s_load_dwordx2 s[12:13], s[0:1], 16')
    a('v_lshlrev_b32 v1, 4, v0')
    a('s_lshl_b32 s20, s2, 15')
    a('s_waitcnt lgkmcnt(0)')
    srd(a, 8, 8, 9, 2048*2048*2); srd(a, 12, 12, 13, 2048*2048*2)
    for b in range(nbuf):
        for i in range(8):
            a(f's_add_u32 s21, s20, {4096*i}')
            a(f'buffer_load_dwordx4 {vr(4+(b*8+i)*4,4)}, v1, s[{8+4*b}:{11+4*b}], s21 offen')
    a('s_waitcnt vmcnt(0)')
    a.label(f'{name}_end'); a('s_endpgm')
    a.raw('.section .rodata,"a"\n.p2align 6\n' + kernel_desc(name, 72, 32, 72))
    s = src.replace('.section .rodata,"a"\n', a.text(), 1)
    s = s.replace('; @launch kernel=fnet_a', '; @launch kernel=probe_kernel grid=(256,1,1) block=(256,1,1) lds=0\n; @launch kernel=fnet_a', 1)
    open(fn, 'w').write(s)
mk('pr0.s', 0); mk('pr1.s', 1); mk('pr2.s', 2)
```

```python
from common import *

XP = 1280
G_OFF = 64 * XP
G_E1 = 4112
T_OFF = 0
TP = 260
CO_OFF = G_OFF + 8 * G_E1
LDS_A = CO_OFF + 14 * 1024
NW_A = 16

def gen_kA(a, name, stamps=False, stflag='', uflag='', pack_w2=True, pf=None, nfirst=2, early=True):
    a.raw(f'.globl {name}\n.p2align 8\n.type {name},@function\n{name}:')
    a.reset_hist()
    a('s_cmp_ge_u32 s2, 256')
    a(f's_cbranch_scc1 {name}_end')
    stamp(a, 0, stamps)
    a('s_load_dwordx2 s[8:9], s[0:1], 0')
    a('s_load_dwordx2 s[12:13], s[0:1], 96')
    a('s_load_dwordx2 s[16:17], s[0:1], 48')
    a('s_load_dwordx2 s[18:19], s[0:1], 64')
    a('v_lshrrev_b32 v1, 6, v0')
    a('v_and_b32 v2, 63, v0')
    a('v_readfirstlane_b32 s22, v1')
    a('v_and_b32 v7, 15, v2')
    a('v_lshrrev_b32 v8, 4, v2')
    a('s_and_b32 s24, s2, 7')
    a('s_lshr_b32 s25, s2, 3')
    a('s_cmp_lt_u32 s25, 20')
    a(f's_cbranch_scc1 {name}_fft_norm')
    a('s_cmp_ge_u32 s25, 25')
    a(f's_cbranch_scc1 {name}_pack_hi')
    a('s_cmp_eq_u32 s24, 0')
    a(f's_cbranch_scc0 {name}_pack_lo')
    a('s_mov_b32 s20, 32')
    a('s_sub_u32 s21, s25, 20')
    a('s_mov_b32 s23, 2')
    a(f's_branch {name}_fft')
    a.label(f'{name}_fft_norm')
    a('s_mul_i32 s26, s25, 52')
    a('s_lshr_b32 s26, s26, 8')
    a('s_mul_i32 s27, s26, 5')
    a('s_sub_u32 s21, s25, s27')
    a('s_lshl_b32 s27, s24, 2')
    a('s_add_u32 s27, s27, s26')
    emit_rho_t1(a, 27, 20, 28)
    a('s_lshl_b32 s23, s26, 2')
    a.label(f'{name}_fft')
    a.reset_hist()
    vm = Cnt(a, 'vmcnt', 63); lg = Cnt(a, 'lgkmcnt', 15)
    a('v_lshl_add_u32 v3, v1, 2, v8')
    a('v_and_b32 v5, 31, v3')
    a('v_lshlrev_b32 v5, 6, v5')
    a('v_add_u32 v5, s20, v5')
    a('v_sub_u32 v6, 0x800, v5')
    a('v_and_b32 v6, 0x7ff, v6')
    a('v_cmp_gt_u32 vcc, 32, v3')
    a('v_lshlrev_b32 v4, 4, v7')
    a('v_cndmask_b32 v5, v6, v5, vcc')
    a('v_mul_u32_u24 v5, 1280, v5')
    a('v_add_u32 v5, v5, v4')
    a(f'v_mul_u32_u24 v6, {XP}, v3')
    a('v_add_u32 v6, v6, v4')
    a('s_waitcnt lgkmcnt(0)')
    srd(a, 8, 8, 9, S*D*2)
    X = 64
    def xload(jj):
        a(f'buffer_load_dwordx4 {vr(X+4*jj,4)}, v5, s[8:11], 0 offen offset:{256*jj}')
        vm.issue(('x', jj))
    for jj in range(nfirst): xload(jj)
    srd(a, 12, 12, 13, ws_size(stamps))
    BA = 20; BA2 = 24; CSUM = 26; BB = 28; BM = 32; BCc = 36; BCs = 40; T = 44
    a('v_lshlrev_b32 v9, 2, v8')
    a('v_cvt_f32_u32 v9, v9')
    a('s_lshl_b32 s26, s21, 3')
    a('s_add_u32 s26, s26, 1')
    a('s_and_b32 s27, s22, 7')
    a('s_cmp_lt_u32 s22, 8')
    a(f's_cbranch_scc1 {name}_cb')
    a('s_cmp_lt_u32 s22, 12')
    a(f's_cbranch_scc1 {name}_cc')
    a('v_and_b32 v10, 7, v7')
    a('v_add_u32 v10, s26, v10')
    a('v_cvt_f32_u32 v10, v10')
    a(f'v_mul_f32 v10, {fbits(1/40)}, v10')
    a('v_lshrrev_b32 v11, 3, v7')
    a('v_cvt_f32_u32 v11, v11')
    a(f'v_mul_f32 v11, {fbits(0.25)}, v11')
    a('s_cmp_eq_u32 s22, 12')
    a(f's_cselect_b32 s31, 0, {fbits(32.0)}')
    a('v_add_f32 v9, s31, v9')
    a(f'v_mul_f32 v12, {fbits(16.0)}, v10')
    a(f's_branch {name}_cgen')
    a.label(f'{name}_cc')
    a('s_lshl_b32 s30, s22, 3'); a('s_and_b32 s30, s30, 16')
    a('v_add_u32 v10, s30, v7')
    a('v_cvt_f32_u32 v10, v10')
    a(f'v_mul_f32 v10, {fbits(1/32)}, v10')
    a('s_bitcmp1_b32 s22, 0')
    a(f's_cselect_b32 s31, {fbits(-0.25)}, 0')
    a('v_mov_b32 v11, s31')
    a('s_cmp_eq_u32 s20, 32')
    a(f's_cselect_b32 s31, {fbits(0.5)}, 0')
    a('v_add_f32 v9, s31, v9')
    a(f'v_mul_f32 v12, {fbits(16.0)}, v10')
    a(f's_branch {name}_cgen')
    a.label(f'{name}_cb')
    a('s_add_u32 s28, s27, s26')
    a('v_lshrrev_b32 v10, 1, v7')
    a('v_mul_u32_u24 v10, 40, v10')
    a('v_add_u32 v10, s28, v10')
    a('v_cvt_f32_u32 v10, v10')
    a(f'v_mul_f32 v10, {fbits(1/640)}, v10')
    a('v_and_b32 v11, 1, v7')
    a('v_cvt_f32_u32 v11, v11')
    a(f'v_mul_f32 v11, {fbits(0.25)}, v11')
    a(f'v_mov_b32 v12, {fbits(-0.25)}')
    a.label(f'{name}_cgen')
    a(f'v_fma_f32 v{T}, v10, v9, v11')
    for r in range(1, 4): a(f'v_fmamk_f32 v{T+r}, v10, {fbits(float(r))}, v{T}')
    for r in range(4): a(f'v_add_f32 v{T+4+r}, v{T+r}, v12')
    for r in range(8): a(f'v_cos_f32 v{T+r}, v{T+r}')
    a('v_lshlrev_b32 v13, 4, v2')
    a('s_min_u32 s31, s22, 13'); a('s_lshl_b32 s31, s31, 10'); a(f's_add_u32 s31, s31, {CO_OFF}')
    a('v_add_u32 v14, s31, v13')
    a('s_cmp_ge_u32 s22, 12')
    a(f's_cbranch_scc1 {name}_cbf')
    for j in range(4): a(f'v_cvt_pk_f16_f32 v{T+8+j}, v{T+2*j}, v{T+2*j+1}')
    a(f's_branch {name}_cw')
    a.label(f'{name}_cbf')
    for j in range(4): a(f'v_cvt_pk_bf16_f32 v{T+8+j}, v{T+2*j}, v{T+2*j+1}')
    a.label(f'{name}_cw')
    a(f'ds_write_b128 v14, {vr(T+8,4)}')
    ONES = 60
    for j in range(4): a(f'v_mov_b32 v{ONES+j}, 0x3f803f80')
    a('s_lshr_b32 s29, s22, 3')
    a('s_lshl_b32 s30, s29, 4')
    a('v_add_u32 v15, s30, v7')
    a(f'v_add_u32 v18, {CO_OFF}, v13')
    a('s_lshl_b32 s31, s27, 10'); a('v_add_u32 v19, s31, v18')
    a('s_lshl_b32 s31, s29, 11'); a('v_add_u32 v17, s31, v18')
    a('s_waitcnt lgkmcnt(0)')
    a('s_barrier')
    a(f'ds_read_b128 {vr(BA,4)}, v18 offset:{12*1024}')
    a(f'ds_read_b64 {vr(BA2,2)}, v18 offset:{13*1024}')
    a(f'ds_read_b128 {vr(BB,4)}, v19')
    a(f'ds_read_b128 {vr(BCc,4)}, v17 offset:8192')
    a(f'ds_read_b128 {vr(BCs,4)}, v17 offset:9216')
    for jj in range(nfirst, 5): xload(jj)
    a(f's_mul_i32 s32, s22, {4*XP}')
    a('v_lshlrev_b32 v10, 3, v2')
    a('v_add_u32 v10, s32, v10')
    a('v_and_b32 v11, 31, v2')
    a('v_lshlrev_b32 v11, 3, v11')
    a('v_add_u32 v11, s32, v11')
    a('v_and_b32 v12, 7, v7')
    a(f'v_mul_u32_u24 v12, {G_E1}, v12')
    a('v_lshl_add_u32 v12, v8, 8, v12')
    a('v_lshrrev_b32 v9, 3, v7')
    a('v_lshl_add_u32 v12, v9, 3, v12')
    a('s_lshr_b32 s33, s22, 2'); a('s_lshl_b32 s33, s33, 10'); a('s_and_b32 s34, s22, 3'); a('s_lshl_b32 s34, s34, 6'); a('s_add_u32 s33, s33, s34'); a(f's_add_u32 s33, s33, {G_OFF}')
    a('v_add_u32 v12, s33, v12')
    a(f's_mul_i32 s34, s27, {G_E1}'); a(f's_add_u32 s34, s34, {G_OFF}')
    a('v_add_u32 v13, s34, v13')
    a(f'v_mul_u32_u24 v14, {TP}, v15')
    a('v_lshl_add_u32 v14, v8, 6, v14')
    a('s_lshl_b32 s34, s27, 2')
    a('v_add_u32 v14, s34, v14')
    a(f's_mul_i32 s34, s22, {2*TP}')
    a('v_lshlrev_b32 v15, 2, v2')
    a('v_add_u32 v15, s34, v15')
    a('v_lshrrev_b32 v16, 3, v2')
    a('v_mul_u32_u24 v16, 40, v16')
    a('v_and_b32 v9, 7, v2')
    a('v_add_lshl_u32 v16, v16, v9, 4')
    a(f's_mul_i32 s36, s22, {2*U_T1}')
    a('s_mul_i32 s37, s24, 5120'); a('s_add_u32 s36, s36, s37')
    a('s_lshl_b32 s37, s21, 7'); a('s_add_u32 s36, s36, s37')
    a('s_add_u32 s36, s36, s23'); a(f's_add_u32 s36, s36, {U_OFF}')
    a(f's_add_u32 s37, s36, {U_T1}')
    a('s_and_b32 s35, s20, 31')
    SA = 56
    for j in range(4): a(f'v_mov_b32 v{SA+j}, 0')
    a('v_and_b32 v9, 1, v7')
    a('v_mov_b32 v3, 0x80008000')
    a('v_mul_lo_u32 v9, v3, v9')
    a('v_cmp_gt_u32 vcc, 2, v8')
    a('s_waitcnt lgkmcnt(2)')
    a(f'v_cndmask_b32 v{BA2}, 0, v{BA2}, vcc')
    a(f'v_cndmask_b32 v{BA2+1}, 0, v{BA2+1}, vcc')
    a(f'v_mfma_f32_16x16x32_bf16 v[84:87], {vr(ONES,4)}, {vr(BA,4)}, 0')
    a(f'v_mfma_f32_16x16x16_bf16 v[88:91], {vr(ONES,2)}, {vr(BA2,2)}, 0')
    for j in range(4): a(f'v_xor_b32 v{BM+j}, v9, v{BB+j}')
    stamp(a, 1, stamps)
    for jj in range(5):
        if jj == 1: a(f'v_add_f32 v{CSUM}, v84, v88')
        vm.wait(('x', jj))
        a(f'ds_write_b128 v6, {vr(X+4*jj,4)} offset:{256*jj}')
        lg.issue('xw')
        if jj == 4:
            FR = 96
            for rho in range(4):
                b = FR + rho * 6
                a(f'ds_read_b64_tr_b16 {vr(b,2)}, v10 offset:{rho*XP}')
                a(f'ds_read_b64_tr_b16 {vr(b+2,2)}, v10 offset:{rho*XP+512}')
                a(f'ds_read_b64_tr_b16 {vr(b+4,2)}, v11 offset:{rho*XP+1024}')
                lg.issue(('tr', rho), 3)
        for r in range(4):
            a(f'v_dot2c_f32_bf16 v{SA+(r&1)}, v{X+4*jj+r}, v{ONES}')
            a(f'v_dot2c_f32_bf16 v{SA+2+(r&1)}, v{X+4*jj+r}, v{X+4*jj+r}')
    stamp(a, 2, stamps)
    a(f'v_add_f32 v{SA}, v{SA}, v{SA+1}')
    a(f'v_add_f32 v{SA+2}, v{SA+2}, v{SA+3}')
    D1 = 44
    D1r = [84, 88, 92, 44]
    for rho in range(4):
        lg.wait(('tr', rho))
        a(f'v_mfma_f32_16x16x32_bf16 {vr(D1r[rho],4)}, {vr(FR+rho*6,4)}, {vr(BA,4)}, 0')
        rot = [8, 4, 2, 1][rho]
        a(f'v_add_f32_dpp v{SA}, v{SA}, v{SA} row_ror:{rot} row_mask:0xf bank_mask:0xf')
        a(f'v_add_f32_dpp v{SA+2}, v{SA+2}, v{SA+2} row_ror:{rot} row_mask:0xf bank_mask:0xf')
    sts = [f'v_mul_f32 v{SA}, {fbits(1/640)}, v{SA}',
           f'v_mul_f32 v{SA+2}, {fbits(1/640)}, v{SA+2}',
           f'v_fma_f32 v{SA+2}, -v{SA}, v{SA}, v{SA+2}',
           f'v_max_f32 v{SA+2}, 0, v{SA+2}',
           f'v_add_f32 v{SA+2}, {fbits(1e-5)}, v{SA+2}',
           f'v_rsq_f32 v{SA+2}, v{SA+2}',
           's_nop 0',
           f'v_mul_f32 v{SA}, v{SA}, v{SA+2}']
    for rho in range(4):
        a(f'v_mfma_f32_16x16x16_bf16 {vr(D1r[rho],4)}, {vr(FR+rho*6+4,2)}, {vr(BA2,2)}, {vr(D1r[rho],4)}')
        a(sts[2*rho]); a(sts[2*rho+1])
    for rho in range(4):
        a(f'v_readlane_b32 s{44+2*rho}, v{SA+2}, {16*rho}')
        a(f'v_readlane_b32 s{45+2*rho}, v{SA}, {16*rho}')
    for rho in range(4):
        a(f'v_mul_f32 v{48+2*rho}, s{45+2*rho}, v{CSUM}')
    for rho in range(4):
        d = D1r[rho]; sp = 44 + 2*rho; tb = 48 + 2*rho
        a(f'v_pk_fma_f32 {vr(d,2)}, {vr(d,2)}, {sr(sp,2)}, {vr(tb,2)} op_sel_hi:[1,0,0] neg_lo:[0,0,1] neg_hi:[0,0,1]')
        a(f'v_pk_fma_f32 {vr(d+2,2)}, {vr(d+2,2)}, {sr(sp,2)}, {vr(tb,2)} op_sel_hi:[1,0,0] neg_lo:[0,0,1] neg_hi:[0,0,1]')
    for rho in range(4):
        d = D1r[rho]
        a(f'v_cvt_pk_f16_f32 v{d}, v{d}, v{d+1}')
        a(f'v_cvt_pk_f16_f32 v{d+1}, v{d+2}, v{d+3}')
        a(f'ds_write_b64 v12, {vr(d,2)} offset:{16*rho}')
    lg.wait_all()
    stamp(a, 3, stamps)
    a('s_barrier')
    AF = 64
    for rt in (0, 2, 1, 3):
        a(f'ds_read_b128 {vr(AF+rt*4,4)}, v13 offset:{rt*1024}')
    D2 = 96
    for h in range(2):
        a(f's_waitcnt lgkmcnt({3-2*h})')
        a(f'v_mfma_f32_16x16x32_f16 {vr(D2+h*4,4)}, {vr(AF+h*4,4)}, {vr(BB,4)}, 0')
        a(f's_waitcnt lgkmcnt({2-2*h})')
        a(f'v_mfma_f32_16x16x32_f16 {vr(D2+h*4,4)}, {vr(AF+(2+h)*4,4)}, {vr(BM,4)}, {vr(D2+h*4,4)}')
    ZF = 104
    for j in range(4): a(f'v_cvt_pk_f16_f32 v{ZF+j}, v{D2+2*j}, v{D2+2*j+1}')
    D3 = 108
    a(f'v_mfma_f32_16x16x32_f16 {vr(D3,4)}, {vr(ZF,4)}, {vr(BCc,4)}, 0')
    a(f'v_mfma_f32_16x16x32_f16 {vr(D3+4,4)}, {vr(ZF,4)}, {vr(BCs,4)}, 0')
    c = D3; s_ = D3 + 4
    for e in range(2):
        a(f'v_add_f32 v{c+2*e}, v{c+2*e}, v{s_+2*e+1}')
        a(f'v_sub_f32 v{c+2*e+1}, v{c+2*e+1}, v{s_+2*e}')
    for e in range(2):
        a(f'v_cvt_pk_f16_f32 v{116+e}, v{c+2*e}, v{c+2*e+1}')
    a('ds_write2_b32 v14, v116, v117 offset0:0 offset1:8')
    a('s_waitcnt lgkmcnt(0)')
    a('s_barrier')
    a(f'ds_read_b32 v118, v15')
    a(f'ds_read_b32 v119, v15 offset:{TP}')
    stamp(a, 4, stamps)
    a('s_cmp_eq_u32 s35, 0')
    a(f's_cbranch_scc1 {name}_short')
    a('s_waitcnt lgkmcnt(0)')
    a(f'buffer_store_dword v118, v16, s[12:15], s36 offen {uflag}')
    a(f'buffer_store_dword v119, v16, s[12:15], s37 offen {uflag}')
    a(f's_branch {name}_fin')
    a.label(f'{name}_short')
    a('s_waitcnt lgkmcnt(0)')
    a(f'buffer_store_short v118, v16, s[12:15], s36 offen {uflag}')
    a(f'buffer_store_short v119, v16, s[12:15], s37 offen {uflag}')
    a(f's_branch {name}_fin')

    a.label(f'{name}_pack_lo')
    a.reset_hist()
    a('s_sub_u32 s26, s25, 20'); a('s_mul_i32 s26, s26, 7'); a('s_add_u32 s26, s26, s24'); a('s_sub_u32 s26, s26, 1')
    a(f's_branch {name}_pack')
    a.label(f'{name}_pack_hi')
    a('s_sub_u32 s26, s2, 165')
    a.label(f'{name}_pack')
    a('s_cmp_eq_u32 s26, 80')
    a(f's_cbranch_scc1 {name}_zero')
    if pf:
        a('s_cmp_gt_u32 s26, 80')
        a(f's_cbranch_scc1 {name}_pf')
    a(f's_cmp_ge_u32 s26, {80 if pack_w2 else 48}')
    a(f's_cbranch_scc1 {name}_end')
    a('v_lshrrev_b32 v9, 2, v7')
    a('v_and_b32 v4, 3, v2')
    a('v_lshlrev_b32 v3, 4, v2')
    a('v_lshl_add_u32 v9, v8, 2, v9')
    a('s_waitcnt lgkmcnt(0)')
    srd(a, 12, 12, 13, ws_size(stamps))
    if pack_w2:
        a('s_cmp_ge_u32 s26, 48')
        a(f's_cbranch_scc1 {name}_pack_w2')
    a('s_cmp_ge_u32 s22, 10')
    a(f's_cbranch_scc1 {name}_end')
    srd(a, 8, 16, 17, D*F*2)
    a('v_lshrrev_b32 v5, 3, v2')
    a('v_mul_u32_u24 v5, 3072, v5')
    a('v_and_b32 v6, 7, v2')
    a('v_lshl_add_u32 v5, v6, 4, v5')
    a('s_lshr_b32 s27, s26, 1'); a('s_and_b32 s28, s26, 1')
    a('s_mul_i32 s29, s28, 10'); a('s_add_u32 s29, s29, s22')
    a(f's_mul_i32 s30, s29, {32*3072}'); a('s_lshl_b32 s31, s27, 7'); a('s_add_u32 s30, s30, s31')
    a('s_lshl_b32 s31, s22, 12')
    a('s_mov_b32 m0, s31')
    for i in range(4):
        a('buffer_load_dwordx4 v5, s[8:11], s30 offen lds')
        if i < 3:
            a(f's_add_u32 s30, s30, {8*3072}')
            a('s_add_u32 m0, m0, 1024')
    a('v_lshlrev_b32 v6, 7, v9')
    a('v_lshl_add_u32 v6, v4, 3, v6')
    a('v_add_u32 v6, s31, v6')
    for j in range(4): a(f'v_mov_b32 v{12+j}, 0x3f803f80')
    a('s_mul_i32 s33, s27, 43'); a('s_lshr_b32 s33, s33, 7')
    a('s_mul_i32 s34, s33, 3'); a('s_sub_u32 s34, s27, s34')
    a('s_mul_i32 s33, s33, 240')
    a('s_mul_i32 s35, s34, 120'); a('s_lshl_b32 s37, s29, 1'); a('s_add_u32 s35, s35, s37')
    for tl in range(4):
        a(f's_add_u32 s36, s35, {(tl//2)*60 + tl%2}')
        a(f's_add_u32 s37, s29, {tl*60+40}')
        a('s_cmp_eq_u32 s34, 2')
        a('s_cselect_b32 s36, s37, s36')
        a('s_add_u32 s36, s36, s33'); a('s_lshl_b32 s36, s36, 10'); a(f's_add_u32 s{40+tl}, s36, {W1P_OFF}')
    a('s_waitcnt vmcnt(0)')
    for tl in range(4):
        b = 20 + tl*4
        a(f'ds_read_b64_tr_b16 {vr(b,2)}, v6 offset:{tl*32}')
        a(f'ds_read_b64_tr_b16 {vr(b+2,2)}, v6 offset:{tl*32+2048}')
    for tl in range(4):
        b = 20 + tl*4
        a(f's_waitcnt lgkmcnt({6-2*tl})')
        a(f'buffer_store_dwordx4 {vr(b,4)}, v3, s[12:15], s{40+tl} offen {stflag}')
        a(f'v_mfma_f32_16x16x32_bf16 {vr(40+4*tl,4)}, {vr(b,4)}, v[12:15], 0')
    a('v_lshlrev_b32 v10, 4, v8')
    a('s_lshl_b32 s32, s22, 8'); a('s_add_u32 s32, s32, 40960')
    a('v_add_u32 v10, s32, v10')
    for tl in range(4):
        a(f'ds_write_b128 v10, {vr(40+4*tl,4)} offset:{64*tl}')
    a('s_waitcnt lgkmcnt(0)')
    a('s_barrier')
    a('s_cmp_lg_u32 s22, 0')
    a(f's_cbranch_scc1 {name}_fin')
    a('v_lshlrev_b32 v10, 2, v2')
    for w in range(10): a(f'ds_read_b32 v{20+w}, v10 offset:{40960+256*w}')
    a('s_mul_i32 s32, s28, 6144'); a('s_lshl_b32 s33, s27, 8'); a('s_add_u32 s32, s32, s33'); a(f's_add_u32 s32, s32, {CS_OFF}')
    a('s_waitcnt lgkmcnt(0)')
    for w in range(1, 10): a(f'v_add_f32 v20, v20, v{20+w}')
    a(f'buffer_store_dword v20, v10, s[12:15], s32 offen {stflag}')
    a(f's_branch {name}_fin')
    if pack_w2:
        a.label(f'{name}_pack_w2')
        a.reset_hist()
        a('s_cmp_ge_u32 s22, 12')
        a(f's_cbranch_scc1 {name}_end')
        srd(a, 8, 18, 19, D*F*2)
        a('s_sub_u32 s27, s26, 48'); a('s_mul_i32 s27, s27, 12'); a('s_add_u32 s32, s27, s22')
        a('s_lshr_b32 s33, s32, 3'); a('s_and_b32 s34, s32, 7')
        a(f's_mul_i32 s35, s33, {32*1280}'); a('s_mul_i32 s36, s34, 160'); a('s_add_u32 s35, s35, s36')
        a('s_mul_i32 s36, s34, 48'); a('s_add_u32 s36, s36, s33'); a('s_mul_i32 s36, s36, 5120'); a(f's_add_u32 s40, s36, {W2P_OFF}')
        a('s_mul_i32 s29, s22, 5120')
        a('s_mov_b32 m0, s29')
        for i in range(5):
            a(f'v_add_u32 v10, {64*i}, v2')
            a('v_mul_u32_u24 v11, 205, v10'); a('v_lshrrev_b32 v11, 11, v11')
            a('v_mul_u32_u24 v12, 10, v11'); a('v_sub_u32 v12, v10, v12')
            a('v_mul_u32_u24 v11, 1280, v11')
            a(f'v_lshl_add_u32 v{14+i}, v12, 4, v11')
            a(f'buffer_load_dwordx4 v{14+i}, s[8:11], s35 offen lds')
            if i < 4: a('s_add_u32 m0, m0, 1024')
        a('v_mul_u32_u24 v5, 160, v9')
        a('v_add_u32 v5, s29, v5')
        a('v_lshl_add_u32 v5, v4, 3, v5')
        a('v_add_u32 v13, 0x1000, v3')
        a('s_waitcnt vmcnt(0)')
        for i in range(5):
            b = 20 + i*4
            a(f'ds_read_b64_tr_b16 {vr(b,2)}, v5 offset:{32*i}')
            a(f'ds_read_b64_tr_b16 {vr(b+2,2)}, v5 offset:{32*i+16*160}')
        for i in range(5):
            b = 20 + i*4
            a(f's_waitcnt lgkmcnt({8-2*i})')
            if i < 4: a(f'buffer_store_dwordx4 {vr(b,4)}, v3, s[12:15], s40 offen offset:{1024*i} {stflag}')
            else: a(f'buffer_store_dwordx4 {vr(b,4)}, v13, s[12:15], s40 offen {stflag}')
    a(f's_branch {name}_fin')
    a.label(f'{name}_zero')
    a.reset_hist()
    a('s_cmp_ge_u32 s22, 8')
    a(f's_cbranch_scc1 {name}_end')
    a('s_waitcnt lgkmcnt(0)')
    srd(a, 12, 12, 13, ws_size(stamps))
    a('v_lshlrev_b32 v3, 4, v0')
    for j in range(4): a(f'v_mov_b32 v{4+j}, 0')
    a(f's_mov_b32 s30, {FLAG_OFF}')
    a('buffer_store_dwordx4 v[4:7], v3, s[12:15], s30 offen')
    if pf:
        a(f's_branch {name}_fin')
        a.label(f'{name}_pf')
        a.reset_hist()
        a('s_getpc_b64 s[30:31]')
        a.label(f'{name}_pfl')
        a(f's_add_u32 s30, s30, {pf}-{name}_pfl')
        a('s_addc_u32 s31, s31, 0')
        a('v_lshlrev_b32 v3, 4, v0')
        a(f'v_min_u32 v3, {pf}_end-{pf}-16, v3')
        a('v_mov_b32 v5, s31')
        a('v_add_co_u32 v4, vcc, s30, v3')
        a('v_addc_co_u32 v5, vcc, 0, v5, vcc')
        a('global_load_dwordx4 v[8:11], v[4:5], off')
        a('s_waitcnt vmcnt(0)')
        a(f's_branch {name}_end')
    a.label(f'{name}_fin')
    if stamps:
        a.reset_hist()
        a('s_nop 7')
        write_stamps(a, 6, 0, 22)
    a.label(f'{name}_end')
    a('s_endpgm')
    return dict(vgpr=120, sgpr=80, accum=120, lds=LDS_A, threads=1024)

if __name__ == '__main__':
    a = Asm()
    a.raw(f'; @launch kernel=ka_kernel grid=(256,1,1) block=(1024,1,1) lds={LDS_A}')
    a.raw('.amdgcn_target "amdgcn-amd-amdhsa--gfx950"\n.text')
    info = gen_kA(a, 'ka_kernel', stamps=True)
    a.raw('.section .rodata,"a"\n.p2align 6')
    a.raw(kernel_desc('ka_kernel', info['vgpr'], info['sgpr'], info['accum']))
    open('ka.s', 'w').write(a.text())
    print('instrs', a.count, 'nops', a.nops)
```

```python
from common import *
from sched import Sched

ST_OFF = 81920
RED_OFF = ST_OFF + 4096
LDS_CD = RED_OFF + 61440

def gen_kCD(a, name, mapping='B', stamps=False, R=80, LAT=600, DEPTH=9, oflag='', pollpos=4, u0early=4, hpoll=36,
            hbars=(4, 10, 20), verbose=False, smode=0, R2=None, R3=None, w2early=40):
    def stamp(a_, idx, on, mode=0):
        if on and mode == smode: a_(f's_memrealtime s[{60+2*idx}:{61+2*idx}]')

    a.raw(f'.globl {name}\n.p2align 8\n.type {name},@function\n{name}:')
    a.reset_hist()
    a('s_cmp_ge_u32 s2, 256')
    a(f's_cbranch_scc1 {name}_end')
    stamp(a, 0, stamps)
    a('s_load_dwordx2 s[8:9], s[0:1], 0')
    a('s_load_dwordx2 s[12:13], s[0:1], 96')
    a('s_load_dwordx2 s[16:17], s[0:1], 56')
    a('s_load_dwordx4 s[4:7], s[0:1], 72')
    a('v_lshrrev_b32 v1, 6, v0')
    a('v_and_b32 v2, 63, v0')
    a('v_readfirstlane_b32 s26, v1')
    emit_map(a, mapping, 22, 23)
    emit_rho_t1(a, 22, 24, 25)
    a('v_and_b32 v3, 15, v2')
    a('v_lshrrev_b32 v4, 4, v2')
    a('v_lshlrev_b32 v5, 4, v2')
    a('v_lshrrev_b32 v6, 2, v2')
    a('v_lshrrev_b32 v7, 3, v2')
    a('v_xor_b32 v7, v7, v2')
    a('v_and_b32 v7, 3, v7')
    a('v_mul_u32_u24 v6, 0xa000, v6')
    a('v_lshl_add_u32 v6, v7, 4, v6')
    a('s_mul_i32 s29, s23, 5'); a('s_lshr_b32 s29, s29, 1')
    a('s_lshl_b32 s32, s26, 9'); a('s_add_u32 s32, s32, s24'); a('s_mul_i32 s33, s32, 1280')
    a('s_lshl_b32 s34, s29, 6'); a('s_add_u32 s34, s34, s33')
    a('s_mul_i32 s27, s26, 3072'); a(f's_add_u32 s27, s27, {RED_OFF}')
    a('s_sub_u32 s25, 32, s24'); a('s_and_b32 s25, s25, 31')
    a('s_lshl_b32 s35, s29, 9')
    a(f's_add_u32 s36, s35, {U_OFF - 16}')
    a(f's_sub_u32 s35, {U_OFF + (639-15)*16}, s35')
    a('s_cmp_lt_u32 s23, 4')
    a('s_cselect_b64 vcc, -1, 0')
    a('s_cselect_b32 s28, 1, -1')
    a('s_cselect_b32 s30, s24, s25')
    a('s_cselect_b32 s38, 0, 0x80000000')
    a('s_cselect_b32 s39, 0, 1')
    a('s_cselect_b32 s35, s36, s35')
    a('s_lshl_b32 s28, s28, 8')
    a(f's_or_b32 s38, s38, {fbits(1/2048)}')
    a('s_cmp_eq_u32 s24, 0'); a('s_cselect_b32 s39, 0, s39')
    a(f's_mul_i32 s31, s30, {U_T1}'); a('s_add_u32 s31, s31, s35')
    a('v_sub_u32 v11, 15, v3')
    a('v_cndmask_b32 v10, v11, v3, vcc')
    a('v_mul_u32_u24 v11, 5120, v4')
    a('v_lshl_add_u32 v10, v10, 4, v11')
    a('v_add_u32 v11, 0x5000, v10')
    a('v_or_b32 v12, s23, v3')
    a('v_cmp_eq_u32 vcc, 0, v12')
    a('v_mov_b32 v14, 0x7ff00000')
    a('s_lshl_b32 s36, s23, 2'); a('s_add_u32 s36, s36, s26')
    a('v_cndmask_b32 v12, v10, v14, vcc')
    a('v_cndmask_b32 v13, v11, v14, vcc')
    a(f's_mul_i32 s37, s36, {60*1024}'); a(f's_add_u32 s58, s37, {W2P_OFF}'); a(f's_add_u32 s37, s37, {W1P_OFF}')
    a('s_waitcnt lgkmcnt(0)')
    srd(a, 8, 8, 9, S*D*2)
    srd(a, 12, 12, 13, ws_size(stamps))
    Sx = Sched(a, R=R, LAT=LAT, DEPTH=DEPTH)
    t = Sx
    for kk in range(3):
        Sx.q([f's_add_u32 m0, s27, {kk*1024 - 64*kk}', f'buffer_load_dwordx4 v6, s[8:11], s34 offen offset:{64*kk} lds'], 'x')
    UF = 160
    for tl in range(6):
        for ks2 in range(2):
            vo = (12 if tl == 0 else 10) + ks2
            L = [f'buffer_load_dwordx4 {vr(UF+(tl*2+ks2)*4,4)}, v{vo}, s[12:15], s31 offen']
            if ks2 == 1 and tl < 5: L.append('s_add_u32 s31, s31, s28')
            Sx.q(L, ('u', tl//2), cost=0.6)
    def WA(fr): return fr*4
    def q_w1(fr):
        L = [f'buffer_load_dwordx4 {ar(WA(fr),4)}, v5, s[12:15], s37 offen offset:{1024*(fr%4)}']
        if fr % 4 == 3: L.append('s_add_u32 s37, s37, 4096')
        Sx.q(L, ('w', fr//2 if fr < 40 else fr - 20))
    nw1 = min(60, hpoll + 8)
    for fr in range(nw1):
        if fr == hpoll:
            Sx.q(['buffer_load_dword v22, v23, s[12:15], s59 offen offset:32 sc1'], 'pollh', gate='sigh', cost=0.3)
        q_w1(fr)
    for _ in range(15): Sx.pop()
    for l in (f's_mov_b32 s18, {F*2}', 's_mov_b32 s19, 0x20000',
              's_mov_b32 s80, s4', 's_mov_b32 s81, s5', f's_mov_b32 s82, {D*2}', 's_mov_b32 s83, 0x20000',
              's_mov_b32 s84, s6', 's_mov_b32 s85, s7', f's_mov_b32 s86, {S*D*2}', 's_mov_b32 s87, 0x20000'): t(l)
    t('v_lshrrev_b32 v7, 1, v3'); t('v_xor_b32 v7, v7, v4'); t('v_and_b32 v7, 3, v7'); t('v_lshl_add_u32 v7, v3, 2, v7'); t('v_lshlrev_b32 v7, 4, v7'); t('v_add_u32 v7, s27, v7')
    t('v_and_b32 v28, 1, v3'); t('v_lshlrev_b32 v28, 4, v28'); t('v_mov_b32 v29, 0x3f80'); t('v_lshlrev_b32 v28, v28, v29')
    t('v_lshrrev_b32 v29, 1, v3')
    t('v_lshlrev_b32 v30, 2, v4'); t('v_sub_u32 v29, v29, v30')
    for q in range(4):
        t(f'v_cmp_eq_u32 vcc, {q}, v29'); t(f'v_cmp_eq_u32 s[44:45], {q-8}, v29')
        t(f'v_cndmask_b32 v{16+q}, 0, v28, vcc'); t(f'v_cndmask_b32 v{20+q}, 0, v28, s[44:45]')
    M = 32; T = 64
    t('v_lshlrev_b32 v14, 5, v3'); t('v_add_u32 v14, s32, v14')
    t('v_lshlrev_b32 v15, 1, v4'); t('v_cvt_f32_u32 v15, v15')
    t('v_xor_b32 v28, s39, v3'); t('v_lshlrev_b32 v28, 31, v28'); t('v_or_b32 v28, 0x38003800, v28')
    t('v_cmp_eq_u32 vcc, 0, v4')
    t('v_cvt_f32_u32 v29, v14')
    t('v_mul_f32 v29, s38, v29')
    t(f'v_mul_f32 v{T}, v29, v15')
    t(f'v_sub_f32 v30, 0, v{T}')
    for ks2 in range(2):
        for j in range(4):
            if ks2 == 0 and j == 0: continue
            c = [8*ks2, 32-8*ks2, 8*ks2+1, 31-8*ks2][j]
            t(f'v_fmamk_f32 v{T+ks2*4+j}, v29, {fbits(float(c))}, v{T if j%2==0 else 30}')
    t(f'v_mul_f32 v31, {fbits(16.0)}, v29')
    t(f'v_cndmask_b32 v{T+1}, v{T+1}, v31, vcc')
    for j in range(8): t(f'v_sin_f32 v{T+8+j}, v{T+j}')
    for j in range(8): t(f'v_cos_f32 v{T+j}, v{T+j}')
    for j in range(8): t(f'v_cvt_pk_f16_f32 v{M+j}, v{T+j}, v{T+8+j}')
    t(f'v_cndmask_b32 v{M}, v{M}, v28, vcc')
    for j in range(4): t(f'v_mov_b32 v{40+j}, 0x3f803f80')
    t('v_and_b32 v24, 3, v3'); t('v_cmp_eq_u32 s[52:53], 1, v24'); t('v_cmp_eq_u32 s[54:55], 2, v24'); t('v_cmp_eq_u32 s[56:57], 3, v24')
    t('s_mul_i32 s40, s22, 20'); t('s_add_u32 s41, s40, s29'); t('s_lshl_b32 s41, s41, 2'); t('s_add_u32 s41, s41, s26'); t('s_lshl_b32 s41, s41, 10'); t(f's_add_u32 s41, s41, {H_OFF}')
    t('s_add_u32 s42, s41, 4096'); t('s_add_u32 s43, s41, 8192')
    t('s_lshl_b32 s44, s22, 12'); t(f's_add_u32 s44, s44, {SG_OFF}')
    t('s_lshl_b32 s45, s36, 7'); t('s_add_u32 s45, s45, s44')
    t('v_lshlrev_b32 v25, 3, v3')
    t('s_lshl_b32 s59, s22, 8'); t(f's_add_u32 s59, s59, {FLAG_OFF}')
    t('s_lshl_b32 s46, s23, 2'); t('s_add_u32 s46, s46, s59')
    t('v_mov_b32 v9, 0'); t('v_mov_b32 v28, 1')
    if verbose: print('setup done', Sx.clock)
    Y = 64; XF = 96
    Sx.vwait('x', 3)
    for kk in range(3): Sx.ds(f'ds_read_b128 {vr(XF+4*kk,4)}, v7 offset:{1024*kk}', ('xr', kk))
    for kk in range(3):
        Sx.lwait(('xr', kk), 100 if kk == 0 else 0)
        for i in range(2): t(f'v_mfma_f32_16x16x32_bf16 {vr(Y+kk*8+4*i,4)}, {vr(16+4*i,4)}, {vr(XF+4*kk,4)}, 0')
    for kk in range(3):
        Sx.vwait(('u', kk), 4)
        for ks2 in range(2):
            for i in range(2):
                d = vr(Y+kk*8+4*i, 4)
                t(f'v_mfma_f32_16x16x32_f16 {d}, {vr(UF+((2*kk+i)*2+ks2)*4,4)}, {vr(M+ks2*4,4)}, {d}')
    Sx.hold += 1
    for kk in range(3):
        b = Y + kk*8
        for j in range(4): t(f'v_cvt_pk_bf16_f32 v{b+j}, v{b+2*j}, v{b+2*j+1}')
        Sx.mem(f'buffer_store_dwordx4 {vr(b,4)}, v5, s[12:15], s{41+kk} offen sc1', 'hst')
    SS = 112; SG = 116
    for kk in (1, 2):
        h = vr(Y+kk*8, 4)
        t(f'v_mfma_f32_16x16x32_bf16 {vr(SS,4)}, v[40:43], {h}, {"0" if kk == 1 else vr(SS,4)}')
        t(f'v_mfma_f32_16x16x32_bf16 {vr(SG,4)}, {h}, {h}, {"0" if kk == 1 else vr(SG,4)}')
    t('s_bitcmp1_b32 s23, 0')
    t(f's_cbranch_scc1 {name}_odd')
    t(f'v_mfma_f32_16x16x32_bf16 {vr(SS,4)}, v[40:43], {vr(Y,4)}, {vr(SS,4)}')
    t(f'v_mfma_f32_16x16x32_bf16 {vr(SG,4)}, {vr(Y,4)}, {vr(Y,4)}, {vr(SG,4)}')
    a.label(f'{name}_odd')
    t('v_and_b32 v23, 7, v2'); t('v_lshlrev_b32 v23, 2, v23')
    t(f'v_cndmask_b32 v{SS+1}, v{SG}, v{SG+1}, s[52:53]')
    t(f'v_cndmask_b32 v{SS+1}, v{SS+1}, v{SG+2}, s[54:55]')
    t(f'v_cndmask_b32 v{SS+1}, v{SS+1}, v{SG+3}, s[56:57]')
    t('s_mov_b32 exec_lo, 0x00f0000f'); t('s_mov_b32 exec_hi, 0xf0000f00')
    Sx.mem(f'buffer_store_dwordx2 {vr(SS,2)}, v25, s[12:15], s45 offen sc1', 'hst', 0.3)
    t('s_mov_b64 exec, -1')
    Sx.hold -= 1
    stamp(a, 1, stamps)
    if verbose: print('h stored', Sx.clock)
    def signal(tag, lab, off, sreg):
        Sx.vwait(tag)
        a('s_barrier')
        Sx.hold += 1
        t('s_cmp_lg_u32 s26, 0')
        t(f's_cbranch_scc1 {name}_nosig{lab}')
        t('s_mov_b64 exec, 1')
        t(f'buffer_store_dword v28, v9, s[12:15], s{sreg} offen offset:{off} sc1')
        t('s_mov_b64 exec, -1')
        a.label(f'{name}_nosig{lab}')
        Sx.hold -= 1
        Sx.gate(f'sig{lab}')
    def GR(gi): return 64 + gi*8
    def AC(i, tt): return GR(i*4+tt) + 4
    def CSR(p, i): return 160 + (p*3+i)*4
    def B1R(i): return 184 + 2*i
    OP = 192
    SA = 224; ST = SA + 16
    t('s_mul_i32 s42, s23, 12'); t('s_lshl_b32 s43, s26, 1'); t('s_add_u32 s43, s43, s42')
    t('s_add_u32 s47, s42, 8'); t('s_add_u32 s47, s47, s26')
    t('s_lshl_b32 s88, s43, 5'); t('s_lshl_b32 s89, s47, 5')
    t('s_lshl_b32 s90, s43, 6'); t(f's_add_u32 s90, s90, {CS_OFF}')
    t('s_lshl_b32 s91, s47, 6'); t(f's_add_u32 s91, s91, {CS_OFF}')
    t('s_add_u32 s92, s90, 6144'); t('s_add_u32 s93, s91, 6144')
    t('v_lshlrev_b32 v20, 3, v4'); t('v_lshlrev_b32 v21, 4, v4')
    t('v_lshlrev_b32 v26, 3, v2')
    t('v_add_u32 v8, 0xa000, v5')
    t('s_lshl_b32 s40, s40, 2'); t('s_add_u32 s40, s40, s26'); t('s_lshl_b32 s40, s40, 10'); t(f's_add_u32 s40, s40, {H_OFF}')
    t('s_lshl_b32 s27, s26, 10')
    t('s_lshl_b32 s47, s26, 9'); t(f's_add_u32 s47, s47, {ST_OFF}')
    t('v_add_u32 v30, s47, v25'); t('v_add_u32 v31, s47, v26')
    extra = []
    for i in range(3):
        so, off = (88, 32*i) if i < 2 else (89, 0)
        extra.append(([f'buffer_load_dwordx2 {vr(B1R(i),2)}, v20, s[16:19], s{so} offen offset:{off}'], 'bc', None, 0.3))
    for p in range(2):
        for i in range(3):
            so, off = (90+2*p, 64*i) if i < 2 else (91+2*p, 0)
            extra.append(([f'buffer_load_dwordx4 {vr(CSR(p,i),4)}, v21, s[12:15], s{so} offen offset:{off}'], 'bc', None, 0.3))
    Sx.Q[0:0] = extra
    signal('hst', 'h', 32, 46)
    if verbose: print('sigh', Sx.clock)
    Sx.vwait('bc', 9)
    for i in range(3):
        for h in range(2): t(f'v_pk_add_f32 {vr(CSR(0,i)+2*h,2)}, {vr(CSR(0,i)+2*h,2)}, {vr(CSR(1,i)+2*h,2)}')
    for i in range(3):
        for h in range(2):
            t(f'v_lshlrev_b32 v{CSR(1,i)+2*h}, 16, v{B1R(i)+h}'); t(f'v_and_b32 v{CSR(1,i)+2*h+1}, 0xffff0000, v{B1R(i)+h}')
    for l in ['s_mul_i32 s41, s22, 48', 's_mul_i32 s42, s23, 6', 's_add_u32 s51, s41, s42',
              's_add_u32 s42, s51, s26', 's_lshl_b32 s42, s42, 12', f's_add_u32 s42, s42, {R_OFF}',
              's_lshr_b32 s43, s26, 1', 's_lshl_b32 s49, s43, 12', f's_add_u32 s49, s49, {RED_OFF}',
              's_add_u32 s43, s43, s51', 's_add_u32 s43, s43, 4', 's_lshl_b32 s43, s43, 12',
              's_and_b32 s47, s26, 1', 's_lshl_b32 s50, s47, 3', 's_add_u32 s50, s50, s49',
              's_lshl_b32 s47, s47, 11', 's_add_u32 s43, s43, s47', f's_add_u32 s43, s43, {R_OFF}', 's_add_u32 s49, s49, s47',
              'v_add_u32 v18, s50, v5', 'v_add_u32 v19, s49, v5',
              's_lshr_b32 s47, s23, 1', 's_lshl_b32 s47, s47, 6', 's_add_u32 s46, s59, s47',
              's_and_b32 s47, s23, 1', 's_lshl_b32 s47, s47, 2', 's_add_u32 s46, s46, s47',
              's_lshl_b32 s94, s26, 6', 's_add_u32 s94, s94, s59', 's_mul_i32 s45, s23, 160',
              's_mul_i32 s48, s26, 12', 's_add_u32 s48, s48, s41', 's_lshl_b32 s48, s48, 12', f's_add_u32 s48, s48, {R_OFF}']: t(l)
    for u in range(4):
        for l in [f'v_add_u32 v{10+u}, {u}, v1', f'v_and_b32 v{10+u}, 3, v{10+u}', f'v_mul_u32_u24 v{14+u}, 15360, v{10+u}',
                  f'v_lshl_add_u32 v{10+u}, v{10+u}, 10, v5', f'v_add_u32 v{14+u}, v{14+u}, v5', f'v_add_u32 v{14+u}, {RED_OFF}, v{14+u}']: t(l)
    Sx.need('pollh', 1)
    Sx.flush(); assert not Sx.Q
    Sx.vwait('pollh')
    a('s_mov_b32 s47, 0')
    a.label(f'{name}_chkh')
    a('v_cmp_eq_u32 vcc, 1, v22')
    a('s_cmp_eq_u64 vcc, -1')
    a(f's_cbranch_scc1 {name}_goh')
    a('s_add_u32 s47, s47, 1')
    a('s_cmp_gt_u32 s47, 0x100000')
    a(f's_cbranch_scc1 {name}_goh')
    a('buffer_load_dword v22, v23, s[12:15], s59 offen offset:32 sc1')
    a('s_waitcnt vmcnt(0)')
    a(f's_branch {name}_chkh')
    a.label(f'{name}_goh')
    stamp(a, 2, stamps); stamp(a, 0, stamps, 2)
    if verbose: print('goh', Sx.clock)
    def hstage(ks): return min(i for i, b in enumerate(hbars) if ks < b)
    for ks in range(20):
        Sx.q([f's_add_u32 m0, s27, {ks*4096}', 'buffer_load_dwordx4 v5, s[12:15], s40 offen sc1 lds', 's_add_u32 s40, s40, 4096'], ('h', hstage(ks)))
        if ks == hbars[0] + 1:
            for jj in range(8): Sx.q([f'buffer_load_dwordx2 {vr(SA+2*jj,2)}, v26, s[12:15], s44 offen offset:{512*jj} sc1'], 'sg', cost=0.5)
    for fr in range(nw1, 60): q_w1(fr)
    kA_ = [0,1,2,3,6,7,8,9]; kB_ = [4,5,10,11]
    w2order = [(ks, i) for ks in kA_ + kB_ for i in range(5)]
    def W2slot(q): return 240 + 4*q if q < 4 else WA(q-4)
    def W2A(f): return W2slot(w2order.index(divmod(f, 5)))
    POLL = 22
    w2cur = [0]
    def q_w2(q):
        ks, i = w2order[q]
        off = (ks*5+i)*1024
        L = []
        base = off // 4096 * 4096
        if base != w2cur[0]:
            dlt = base - w2cur[0]
            L.append(f's_add_u32 s58, s58, {dlt}' if dlt > 0 else f's_sub_u32 s58, s58, {-dlt}')
            w2cur[0] = base
        L.append(f'buffer_load_dwordx4 {ar(W2slot(q),4)}, v5, s[12:15], s58 offen offset:{off-base}')
        fr = q - 4
        Sx.q(L, ('w2', ks), gate=None if q < 4 else ('st', fr//2 if fr < 40 else fr - 20))
    for q in range(w2early): q_w2(q)
    Sx.q([f'buffer_load_dwordx2 {vr(POLL,2)}, v9, s[12:15], s94 offen sc1'], 'poll0', gate='sig0', cost=0.3)
    nw2 = min(60, w2early + pollpos)
    for q in range(w2early, nw2): q_w2(q)
    BF = 32
    def bread(st, tts=range(4)):
        ks = st % 20
        for tt in tts:
            off = ks*4096 + tt*1024
            va = 5
            if off >= 40960: va = 8; off -= 40960
            Sx.ds(f'ds_read_b128 {vr(BF+(st&1)*16+tt*4,4)}, v{va} offset:{off}', ('b', st, tt))
    def hbar(stage):
        n = hbars[stage] - (hbars[stage-1] if stage else 0)
        Sx.vwait(('h', stage), n)
        a('s_barrier')
    side = []
    def do_side(n):
        for _ in range(n):
            if not side: return
            x = side.pop(0)
            if callable(x): x()
            elif x.startswith('ds_'): Sx.ds(x, 'red'); return
            else: t(x)
    def tmp_list(i, tt): return [f'v_fma_f32 v{AC(i,tt)-4+r}, -v{ST+2*tt}, v{CSR(0,i)+r}, v{CSR(1,i)+r}' for r in range(4)]
    def epi(i, tt, plain):
        L = []
        ac = AC(i, tt); tm = ac - 4
        if plain:
            for r in range(4): L.append(f'v_fma_f32 v{ac+r}, v{ac+r}, v{ST+2*tt+1}, v{tm+r}')
            for r in range(4): L.append(f'v_max_f32 v{ac+r}, 0, v{ac+r}')
            for r in range(4): L.append(f'v_mul_f32 v{ac+r}, v{ac+r}, v{ac+r}')
        else:
            for h in range(2): L.append(f'v_pk_fma_f32 {vr(ac+2*h,2)}, {vr(ac+2*h,2)}, {vr(ST+2*tt,2)}, {vr(tm+2*h,2)} op_sel:[0,1,0] op_sel_hi:[1,1,1]')
            for r in range(4): L.append(f'v_max_f32 v{ac+r}, 0, v{ac+r}')
            for h in range(2): L.append(f'v_pk_mul_f32 {vr(ac+2*h,2)}, {vr(ac+2*h,2)}, {vr(ac+2*h,2)}')
        dst = OP + 4*tt + 2*i if i < 2 else OP + 16 + 2*tt
        for h in range(2): L.append(f'v_cvt_pk_bf16_f32 v{dst+h}, v{ac+2*h}, v{ac+2*h+1}')
        return L
    def stA(tt): return lambda: Sx.mem(f'buffer_store_dwordx4 {vr(OP+4*tt,4)}, v5, s[12:15], s42 offen offset:{1024*tt} sc1', ('rst', 0))
    hbar(0)
    bread(0)
    if R2: Sx.R = R2; Sx.LAT = 450
    for st in range(40):
        ps, ks = divmod(st, 20)
        if ps == 0 and ks + 1 in hbars[:-1]: hbar(hbars.index(ks + 1) + 1)
        Sx.vwait(('w', st), 2 if ps == 0 else 1)
        if st in (0, 5, 10, 15, 20, 30): stamp(a, 1 + (0, 5, 10, 15, 20, 30).index(st), stamps, 2)
        c = 0
        for i in ((0, 1) if ps == 0 else (2,)):
            for tt in range(4):
                if c in (0, 2): Sx.lwait(('b', st, c+1))
                d = vr(AC(i,tt), 4)
                fr = ks*2+i if ps == 0 else 40 + ks
                t(f'v_mfma_f32_16x16x32_bf16 {d}, {ar(WA(fr),4)}, {vr(BF+(st&1)*16+tt*4,4)}, {"0" if ks == 0 else d}')
                c += 1
                if c <= 4 and st + 1 < 40: bread(st + 1, [c-1])
                if ps == 1 or c > 4: do_side(2)
        Sx.gate(('st', st))
        if st == 9:
            side.append(lambda: Sx.vwait('sg', 8))
            for k in (8, 4, 2):
                for q in range(k): side.append(f'v_add_f32 v{SA+q}, v{SA+q}, v{SA+k+q}')
            side += [f'v_mul_f32 v{SA}, {fbits(1/640)}, v{SA}', f'v_mul_f32 v{SA+1}, {fbits(1/640)}, v{SA+1}',
                     f'v_fma_f32 v{SA+1}, -v{SA}, v{SA}, v{SA+1}', f'v_max_f32 v{SA+1}, 0, v{SA+1}',
                     f'v_add_f32 v{SA+1}, {fbits(1e-5)}, v{SA+1}', f'v_rsq_f32 v{SA+1}, v{SA+1}', 's_nop 0',
                     f'v_mul_f32 v{SA}, v{SA}, v{SA+1}',
                     lambda: Sx.ds(f'ds_write_b64 v31, {vr(SA,2)}', 'stw2')]
            for tt in range(4): side.append((lambda tt=tt: Sx.ds(f'ds_read_b64 {vr(ST+2*tt,2)}, v30 offset:{tt*128}', 'str2')))
        if st == 13:
            assert not side
            Sx.lwait('str2')
            for i in range(3):
                for tt in range(4): side += tmp_list(i, tt)
        if st == 19:
            assert not side
            stamp(a, 3, stamps)
            if verbose: print('passA done', Sx.clock)
            side += ['s_nop 0'] * 4
            for tt in range(4): side += epi(0, tt, True) + epi(1, tt, True) + [stA(tt)]
    do_side(1000)
    if verbose: print('ffn1 done', Sx.clock)
    stamp(a, 4, stamps)
    for tt in range(4):
        for x in epi(2, tt, False): t(x)
        Sx.ds(f'ds_write_b64 v18, {vr(OP+16+2*tt,2)} offset:{1024*tt}', 'xw')
    Sx.lwait('xw')
    signal(('rst', 0), '0', 0, 46)
    for j in range(2): Sx.ds(f'ds_read_b128 {vr(OP+24+4*j,4)}, v19 offset:{1024*j}', 'xr2')
    ACC = 32
    def acc(u, i): return ACC + (u*5+i)*4
    B2 = 112
    t('s_mul_i32 s47, s23, 5')
    for i in range(5):
        t(f's_add_u32 s49, s47, {i}'); t('s_lshr_b32 s50, s49, 1'); t('s_lshl_b32 s50, s50, 12'); t('s_add_u32 s50, s50, s27')
        t('s_and_b32 s49, s49, 1'); t('s_lshl_b32 s49, s49, 3'); t('s_add_u32 s50, s50, s49')
        t('v_add_u32 v29, s50, v5')
        if i == 0:
            Sx.lwait('xr2')
            for j in range(2): Sx.mem(f'buffer_store_dwordx4 {vr(OP+24+4*j,4)}, v5, s[12:15], s43 offen offset:{1024*j} sc1', ('rst', 1))
            for k in range(5): Sx.mem(f'buffer_load_dwordx2 {vr(B2+2*k,2)}, v20, s[80:83], s45 offen offset:{32*k}', 'b2', 0.3)
        Sx.ds(f'ds_read_b64 {vr(B2+10+2*i,2)}, v29', 'hres')
    t('s_lshl_b32 s49, s26, 12')
    t('v_mul_u32_u24 v18, 176, v3'); t('v_add_u32 v18, v18, v20'); t('v_add_u32 v18, s49, v18')
    t('s_add_u32 s50, s33, s45')
    for q in range(3):
        t(f'v_add_u32 v30, {64*q}, v2')
        t('v_mul_u32_u24 v31, 205, v30'); t('v_lshrrev_b32 v31, 11, v31')
        t('v_mul_u32_u24 v19, 10, v31'); t('v_sub_u32 v30, v30, v19'); t('v_lshlrev_b32 v30, 4, v30')
        t(f'v_mul_u32_u24 v{24+q}, 176, v31'); t(f'v_add_u32 v{24+q}, v{24+q}, v30'); t(f'v_add_u32 v{24+q}, s49, v{24+q}')
        t(f'v_mul_u32_u24 v{6+q}, 0xa000, v31'); t(f'v_add_u32 v{6+q}, v{6+q}, v30')
    t('v_cmp_gt_u32 vcc, 32, v2'); t('v_mov_b32 v30, 0x7ff00000'); t('v_cndmask_b32 v8, v30, v8, vcc')
    def poll(half):
        Sx.vwait(f'poll{half}')
        a('s_mov_b32 s44, 0')
        a.label(f'{name}_chk{half}')
        a(f'v_and_b32 v{POLL}, v{POLL}, v{POLL+1}')
        a(f'v_readfirstlane_b32 s47, v{POLL}')
        a('s_cmp_eq_u32 s47, 1')
        a(f's_cbranch_scc1 {name}_go{half}')
        a('s_add_u32 s44, s44, 1')
        a('s_cmp_gt_u32 s44, 0x100000')
        a(f's_cbranch_scc1 {name}_go{half}')
        a(f'buffer_load_dwordx2 {vr(POLL,2)}, v9, s[12:15], s94 offen offset:{8*half} sc1')
        a('s_waitcnt vmcnt(0)')
        a(f's_branch {name}_chk{half}')
        a.label(f'{name}_go{half}')
    Sx.need('poll0', 1)
    Sx.flush(); assert not Sx.Q
    stamp(a, 5, stamps)
    poll(0)
    stamp(a, 6, stamps); stamp(a, 0, stamps, 1)
    if verbose: print('go0', Sx.clock)
    slots = [136+4*i for i in range(20)] + [224+4*i for i in range(8)] + [216, 220]
    NRF = len(slots)
    seq = []
    for n_, ks in enumerate(kA_):
        seq += [(ks, u) for u in (1, 2, 3)]
        if n_ >= 8 - u0early: seq.append((ks, 0))
    nA = len(seq)
    for u in (1, 2, 3): seq += [(ks, u) for ks in kB_]
    seq += [(ks, 0) for ks in kA_[:8-u0early] + kB_]
    assert len(seq) == 48 and nA <= 28
    cur = [0]
    def q_r(li):
        ks, u = seq[li]
        L = []
        if ks != cur[0]:
            dlt = (ks - cur[0]) * 4096
            L.append(f's_add_u32 s48, s48, {dlt}' if dlt > 0 else f's_sub_u32 s48, s48, {-dlt}')
            cur[0] = ks
        L.append(f'buffer_load_dwordx4 {vr(slots[li%NRF],4)}, v{10+u}, s[12:15], s48 offen sc1')
        Sx.q(L, ('r', li), gate=None if li < NRF else ('rc', li - NRF))
    pp1 = nA - 8
    for li in range(nA):
        if li == pp1: Sx.q([f'buffer_load_dwordx2 {vr(POLL,2)}, v9, s[12:15], s94 offen offset:8 sc1'], 'poll1', cost=0.3)
        q_r(li)
        if li >= 6 and nw2 < 60: q_w2(nw2); nw2 += 1
    while nw2 < 60: q_w2(nw2); nw2 += 1
    if R3: Sx.R = R3
    for _ in range(6): Sx.pop()
    signal(('rst', 1), '1', 8, 46)
    Sx.lwait('hres'); Sx.vwait('b2')
    for q in range(10):
        side += [f'v_lshlrev_b32 v{ACC+2*q}, 16, v{B2+q}', f'v_and_b32 v{ACC+2*q+1}, 0xffff0000, v{B2+q}',
                 f'v_lshlrev_b32 v132, 16, v{B2+10+q}', f'v_and_b32 v133, 0xffff0000, v{B2+10+q}',
                 f'v_add_f32 v{ACC+2*q}, v{ACC+2*q}, v132', f'v_add_f32 v{ACC+2*q+1}, v{ACC+2*q+1}, v133']
    seen = set()
    lastB = {u: nA + 4*(u-1) + 3 for u in (1, 2, 3)}
    for li in range(48):
        ks, u = seq[li]
        if u == 0 and 0 not in seen: assert not side
        if li == pp1:
            Sx.need('poll1', 1)
            Sx.hold += 1
            poll(1)
            Sx.hold -= 1
            if verbose: print('go1', Sx.clock)
            for l2 in range(nA, 48): q_r(l2)
        Sx.vwait(('w2', ks), 5)
        Sx.vwait(('r', li), 1)
        if li in (0, 10, 20, 30, 40): stamp(a, 1 + li//10, stamps, 1)
        for i in range(5):
            d = vr(acc(u,i), 4)
            cc = '0' if (u not in seen and u != 0) else d
            t(f'v_mfma_f32_16x16x32_bf16 {d}, {ar(W2A(ks*5+i),4)}, {vr(slots[li%NRF],4)}, {cc}')
            do_side(2)
        seen.add(u)
        Sx.gate(('rc', li))
        for up in (1, 2, 3):
            if li == lastB[up] + 1:
                for i in range(5): side.append(f'ds_write_b128 v{14+up}, {vr(acc(up,i),4)} offset:{((up-1)*5+i)*1024}')
        if li == lastB[3] + 3:
            assert not side
            Sx.lwait_all(0)
            a('s_barrier')
            for s_ in range(3):
                for i in range(5): t(f'ds_read_b128 {vr(acc(1+s_,i),4)}, v14 offset:{(s_*5+i)*1024}')
        if li == lastB[3] + 5:
            Sx.lwait_all(0)
            for q in range(20): side.append(f'v_add_f32 v{acc(1,0)+q}, v{acc(1,0)+q}, v{acc(2,0)+q}')
            for q in range(20): side.append(f'v_add_f32 v{acc(1,0)+q}, v{acc(1,0)+q}, v{acc(3,0)+q}')
    stamp(a, 6, stamps, 1)
    if verbose: print('ffn2 done', Sx.clock, 'side left', len(side))
    do_side(1000)
    for i in range(5):
        for h in range(2):
            t(f'v_pk_add_f32 {vr(acc(0,i)+2*h,2)}, {vr(acc(0,i)+2*h,2)}, {vr(acc(1,i)+2*h,2)}')
        for h in range(2):
            t(f'v_cvt_pk_bf16_f32 v{B2+2*i+h}, v{acc(0,i)+2*h}, v{acc(0,i)+2*h+1}')
        t(f'ds_write_b64 v18, {vr(B2+2*i,2)} offset:{32*i}')
    for q in range(3): t(f'ds_read_b128 {vr(136+4*q,4)}, v{24+q}')
    for q in range(3):
        a(f's_waitcnt lgkmcnt({2-q})')
        a(f'buffer_store_dwordx4 {vr(136+4*q,4)}, v{6+q}, s[84:87], s50 offen {oflag}')
    if stamps:
        write_stamps(a, 8, 1, 26)
    a.label(f'{name}_end')
    a('s_endpgm')
    return dict(vgpr=512, sgpr=100, accum=256, lds=LDS_CD, threads=256)
```

```python
import build2, kCD5, kA2, kCD4, kA4
from build2 import *
build2.gen_kCD = kCD5.gen_kCD
build2.gen_kA = kA2.gen_kA
build(f'v14c.s', akw=dict(stflag='sc1'), ckw=dict(hpoll=36, R2=80, w2early=30, pollpos=6))
build(f'v14e.s', akw=dict(stflag='sc1'), ckw=dict(hpoll=28, R2=60, w2early=59, pollpos=1))
build2.gen_kCD = kCD4.gen_kCD
build(f'v11a.s', akw=dict(stflag='sc1'))
build2.gen_kA = kA4.gen_kA
build(f'v10_5.s', akw=dict(stflag='sc1', nfirst=5))
```

```python
from common import *

XP = 1280
G_OFF = 64 * XP
G_E1 = 4112
T_OFF = 0
TP = 260
LDS_A = G_OFF + 8 * G_E1
NW_A = 16

def gen_kA(a, name, stamps=False, stflag='', uflag='', pack_w2=True, staged=True):
    a.raw(f'.globl {name}\n.p2align 8\n.type {name},@function\n{name}:')
    a.reset_hist()
    a('s_cmp_ge_u32 s2, 256')
    a(f's_cbranch_scc1 {name}_end')
    stamp(a, 0, stamps)
    a('s_load_dwordx2 s[8:9], s[0:1], 0')
    a('s_load_dwordx2 s[12:13], s[0:1], 96')
    a('s_load_dwordx2 s[16:17], s[0:1], 48')
    a('s_load_dwordx2 s[18:19], s[0:1], 64')
    a('v_lshrrev_b32 v1, 6, v0')
    a('v_and_b32 v2, 63, v0')
    a('v_readfirstlane_b32 s22, v1')
    a('v_and_b32 v7, 15, v2')
    a('v_lshrrev_b32 v8, 4, v2')
    a('s_and_b32 s24, s2, 7')
    a('s_lshr_b32 s25, s2, 3')
    a('s_cmp_lt_u32 s25, 20')
    a(f's_cbranch_scc1 {name}_fft_norm')
    a('s_cmp_ge_u32 s25, 25')
    a(f's_cbranch_scc1 {name}_pack_hi')
    a('s_cmp_eq_u32 s24, 0')
    a(f's_cbranch_scc0 {name}_pack_lo')
    a('s_mov_b32 s20, 32')
    a('s_sub_u32 s21, s25, 20')
    a('s_mov_b32 s23, 2')
    a(f's_branch {name}_fft')
    a.label(f'{name}_fft_norm')
    a('s_mul_i32 s26, s25, 52')
    a('s_lshr_b32 s26, s26, 8')
    a('s_mul_i32 s27, s26, 5')
    a('s_sub_u32 s21, s25, s27')
    a('s_lshl_b32 s27, s24, 2')
    a('s_add_u32 s27, s27, s26')
    emit_rho_t1(a, 27, 20, 28)
    a('s_lshl_b32 s23, s26, 2')
    a.label(f'{name}_fft')
    a.reset_hist()
    vm = Cnt(a, 'vmcnt', 63); lg = Cnt(a, 'lgkmcnt', 15)
    a('v_lshl_add_u32 v3, v1, 2, v8')
    a('v_and_b32 v5, 31, v3')
    a('v_lshlrev_b32 v5, 6, v5')
    a('v_add_u32 v5, s20, v5')
    a('v_sub_u32 v6, 0x800, v5')
    a('v_and_b32 v6, 0x7ff, v6')
    a('v_cmp_gt_u32 vcc, 32, v3')
    a('v_lshlrev_b32 v4, 4, v7')
    a('v_cndmask_b32 v5, v6, v5, vcc')
    a('v_mul_u32_u24 v5, 1280, v5')
    a('v_add_u32 v5, v5, v4')
    a(f'v_mul_u32_u24 v6, {XP}, v3')
    a('v_add_u32 v6, v6, v4')
    X = 64
    for jj in range(5):
        a(f's_add_u32 s{38+jj}, s21, {jj}')
        a(f's_cmp_ge_u32 s{38+jj}, 5')
        a('s_cselect_b32 s43, 5, 0')
        a(f's_sub_u32 s{38+jj}, s{38+jj}, s43')
        a(f's_lshl_b32 s{38+jj}, s{38+jj}, 8')
    a('s_waitcnt lgkmcnt(0)')
    srd(a, 8, 8, 9, S*D*2)
    def xload(jj):
        a(f'buffer_load_dwordx4 {vr(X+4*jj,4)}, v5, s[8:11], s{38+jj} offen')
        vm.issue(('x', jj))
    xload(0); xload(1)
    if not staged: xload(2); xload(3); xload(4)
    srd(a, 12, 12, 13, ws_size(stamps))
    a('v_lshlrev_b32 v9, 2, v8')
    a('v_cvt_f32_u32 v9, v9')
    BA = 20; BA2 = 24; CSUM = 26; BB = 28; BM = 32; BCc = 36; BCs = 40; T = 44
    a('s_lshl_b32 s26, s21, 3')
    a('s_add_u32 s26, s26, 1')
    a('v_and_b32 v10, 7, v7')
    a('v_add_u32 v10, s26, v10')
    a('v_cvt_f32_u32 v10, v10')
    a(f'v_mul_f32 v10, {fbits(1/40)}, v10')
    a('v_lshrrev_b32 v11, 3, v7')
    a('v_cvt_f32_u32 v11, v11')
    a(f'v_mul_f32 v11, {fbits(0.25)}, v11')
    a('v_fma_f32 v11, v10, v9, v11')
    cj = [0,1,2,3,16,17,18,19,32,33,34,35]
    for j, c in enumerate(cj):
        a(f'v_fmamk_f32 v{T+j}, v10, {fbits(float(c))}, v11')
    for j in range(12):
        a(f'v_cos_f32 v{T+j}, v{T+j}')
    for j in range(6):
        a(f'v_cvt_pk_bf16_f32 v{BA+j}, v{T+2*j}, v{T+2*j+1}')
    a('v_cmp_gt_u32 vcc, 2, v8')
    ONES = 60
    for j in range(4): a(f'v_mov_b32 v{ONES+j}, 0x3f803f80')
    a(f'v_cndmask_b32 v{BA2}, 0, v{BA2}, vcc')
    a(f'v_cndmask_b32 v{BA2+1}, 0, v{BA2+1}, vcc')
    a(f'v_mfma_f32_16x16x32_bf16 v[84:87], {vr(ONES,4)}, {vr(BA,4)}, 0')
    a(f'v_mfma_f32_16x16x16_bf16 v[88:91], {vr(ONES,2)}, {vr(BA2,2)}, 0')
    if staged: xload(2); xload(3)
    a('s_and_b32 s27, s22, 7')
    a('s_add_u32 s28, s27, s26')
    a('v_lshrrev_b32 v10, 1, v7')
    a('v_mul_u32_u24 v10, 40, v10')
    a('v_add_u32 v10, s28, v10')
    a('v_and_b32 v11, 1, v7')
    a('v_cvt_f32_u32 v12, v11')
    a(f'v_mul_f32 v12, {fbits(0.25)}, v12')
    a('v_mov_b32 v13, 0x80008000')
    a('v_mul_lo_u32 v13, v13, v11')
    a('v_cvt_f32_u32 v14, v10')
    a(f'v_mul_f32 v14, {fbits(1/640)}, v14')
    a(f'v_fma_f32 v{T}, v14, v9, v12')
    for r in range(1, 4): a(f'v_fmamk_f32 v{T+r}, v14, {fbits(float(r))}, v{T}')
    a(f'v_add_f32 v{CSUM}, v84, v88')
    for r in range(4): a(f'v_sin_f32 v{T+4+r}, v{T+r}')
    for r in range(4): a(f'v_cos_f32 v{T+r}, v{T+r}')
    for j in range(4): a(f'v_cvt_pk_f16_f32 v{BB+j}, v{T+2*j}, v{T+2*j+1}')
    for j in range(4): a(f'v_xor_b32 v{BM+j}, v13, v{BB+j}')
    if staged: xload(4)
    a('s_lshr_b32 s29, s22, 3')
    a('s_lshl_b32 s30, s29, 4')
    a('v_add_u32 v15, s30, v7')
    a('v_cvt_f32_u32 v10, v15')
    a(f'v_mul_f32 v10, {fbits(1/32)}, v10')
    a('s_cmp_eq_u32 s20, 32')
    a(f's_cselect_b32 s31, {fbits(0.5)}, 0')
    a('v_add_f32 v11, s31, v9')
    a('v_mul_f32 v11, v10, v11')
    for j, c in enumerate(cj[:8]):
        a(f'v_fmamk_f32 v{T+j}, v10, {fbits(float(c))}, v11')
    for j in range(8): a(f'v_sin_f32 v{T+8+j}, v{T+j}')
    for j in range(8): a(f'v_cos_f32 v{T+j}, v{T+j}')
    for j in range(4):
        a(f'v_cvt_pk_f16_f32 v{BCc+j}, v{T+2*j}, v{T+2*j+1}')
        a(f'v_cvt_pk_f16_f32 v{BCs+j}, v{T+8+2*j}, v{T+8+2*j+1}')
    a(f's_mul_i32 s32, s22, {4*XP}')
    a('v_lshlrev_b32 v10, 3, v2')
    a('v_add_u32 v10, s32, v10')
    a('v_and_b32 v11, 31, v2')
    a('v_lshlrev_b32 v11, 3, v11')
    a('v_add_u32 v11, s32, v11')
    a('v_and_b32 v12, 7, v7')
    a(f'v_mul_u32_u24 v12, {G_E1}, v12')
    a('v_lshl_add_u32 v12, v8, 8, v12')
    a('v_lshrrev_b32 v13, 3, v7')
    a('v_lshl_add_u32 v12, v13, 3, v12')
    a('s_lshr_b32 s33, s22, 2'); a('s_lshl_b32 s33, s33, 10'); a('s_and_b32 s34, s22, 3'); a('s_lshl_b32 s34, s34, 6'); a('s_add_u32 s33, s33, s34'); a(f's_add_u32 s33, s33, {G_OFF}')
    a('v_add_u32 v12, s33, v12')
    a(f's_mul_i32 s34, s27, {G_E1}'); a(f's_add_u32 s34, s34, {G_OFF}')
    a('v_lshlrev_b32 v13, 4, v2')
    a('v_add_u32 v13, s34, v13')
    a(f'v_mul_u32_u24 v14, {TP}, v15')
    a('v_lshl_add_u32 v14, v8, 6, v14')
    a('s_lshl_b32 s34, s27, 2')
    a('v_add_u32 v14, s34, v14')
    a(f's_mul_i32 s34, s22, {2*TP}')
    a('v_lshlrev_b32 v15, 2, v2')
    a('v_add_u32 v15, s34, v15')
    a('v_lshrrev_b32 v16, 3, v2')
    a('v_mul_u32_u24 v16, 40, v16')
    a('v_and_b32 v17, 7, v2')
    a('v_add_lshl_u32 v16, v16, v17, 4')
    a(f's_mul_i32 s36, s22, {2*U_T1}')
    a('s_mul_i32 s37, s24, 5120'); a('s_add_u32 s36, s36, s37')
    a('s_lshl_b32 s37, s21, 7'); a('s_add_u32 s36, s36, s37')
    a('s_add_u32 s36, s36, s23'); a(f's_add_u32 s36, s36, {U_OFF}')
    a(f's_add_u32 s37, s36, {U_T1}')
    a('s_and_b32 s35, s20, 31')
    for jj in range(5): a(f'v_add_u32 v{91+jj}, s{38+jj}, v6')
    SA = 56
    for j in range(4): a(f'v_mov_b32 v{SA+j}, 0')
    stamp(a, 1, stamps)
    for jj in range(5):
        vm.wait(('x', jj))
        a(f'ds_write_b128 v{91+jj}, {vr(X+4*jj,4)}')
        lg.issue('xw')
        if jj == 4:
            FR = 96
            for rho in range(4):
                b = FR + rho * 6
                a(f'ds_read_b64_tr_b16 {vr(b,2)}, v10 offset:{rho*XP}')
                a(f'ds_read_b64_tr_b16 {vr(b+2,2)}, v10 offset:{rho*XP+512}')
                a(f'ds_read_b64_tr_b16 {vr(b+4,2)}, v11 offset:{rho*XP+1024}')
                lg.issue(('tr', rho), 3)
        for r in range(4):
            a(f'v_dot2c_f32_bf16 v{SA+(r&1)}, v{X+4*jj+r}, v{ONES}')
            a(f'v_dot2c_f32_bf16 v{SA+2+(r&1)}, v{X+4*jj+r}, v{X+4*jj+r}')
    stamp(a, 2, stamps)
    a(f'v_add_f32 v{SA}, v{SA}, v{SA+1}')
    a(f'v_add_f32 v{SA+2}, v{SA+2}, v{SA+3}')
    D1 = 44
    D1r = [84, 88, 92, 44]
    for rho in range(4):
        lg.wait(('tr', rho))
        a(f'v_mfma_f32_16x16x32_bf16 {vr(D1r[rho],4)}, {vr(FR+rho*6,4)}, {vr(BA,4)}, 0')
        rot = [8, 4, 2, 1][rho]
        a(f'v_add_f32_dpp v{SA}, v{SA}, v{SA} row_ror:{rot} row_mask:0xf bank_mask:0xf')
        a(f'v_add_f32_dpp v{SA+2}, v{SA+2}, v{SA+2} row_ror:{rot} row_mask:0xf bank_mask:0xf')
    sts = [f'v_mul_f32 v{SA}, {fbits(1/640)}, v{SA}',
           f'v_mul_f32 v{SA+2}, {fbits(1/640)}, v{SA+2}',
           f'v_fma_f32 v{SA+2}, -v{SA}, v{SA}, v{SA+2}',
           f'v_max_f32 v{SA+2}, 0, v{SA+2}',
           f'v_add_f32 v{SA+2}, {fbits(1e-5)}, v{SA+2}',
           f'v_rsq_f32 v{SA+2}, v{SA+2}',
           's_nop 0',
           f'v_mul_f32 v{SA}, v{SA}, v{SA+2}']
    for rho in range(4):
        a(f'v_mfma_f32_16x16x16_bf16 {vr(D1r[rho],4)}, {vr(FR+rho*6+4,2)}, {vr(BA2,2)}, {vr(D1r[rho],4)}')
        a(sts[2*rho]); a(sts[2*rho+1])
    for rho in range(4):
        a(f'v_readlane_b32 s{44+2*rho}, v{SA+2}, {16*rho}')
        a(f'v_readlane_b32 s{45+2*rho}, v{SA}, {16*rho}')
    for rho in range(4):
        a(f'v_mul_f32 v{48+2*rho}, s{45+2*rho}, v{CSUM}')
    for rho in range(4):
        d = D1r[rho]; sp = 44 + 2*rho; tb = 48 + 2*rho
        a(f'v_pk_fma_f32 {vr(d,2)}, {vr(d,2)}, {sr(sp,2)}, {vr(tb,2)} op_sel_hi:[1,0,0] neg_lo:[0,0,1] neg_hi:[0,0,1]')
        a(f'v_pk_fma_f32 {vr(d+2,2)}, {vr(d+2,2)}, {sr(sp,2)}, {vr(tb,2)} op_sel_hi:[1,0,0] neg_lo:[0,0,1] neg_hi:[0,0,1]')
    for rho in range(4):
        d = D1r[rho]
        a(f'v_cvt_pk_f16_f32 v{d}, v{d}, v{d+1}')
        a(f'v_cvt_pk_f16_f32 v{d+1}, v{d+2}, v{d+3}')
        a(f'ds_write_b64 v12, {vr(d,2)} offset:{16*rho}')
    lg.wait_all()
    stamp(a, 3, stamps)
    a('s_barrier')
    AF = 64
    for rt in (0, 2, 1, 3):
        a(f'ds_read_b128 {vr(AF+rt*4,4)}, v13 offset:{rt*1024}')
    D2 = 96
    for h in range(2):
        a(f's_waitcnt lgkmcnt({3-2*h})')
        a(f'v_mfma_f32_16x16x32_f16 {vr(D2+h*4,4)}, {vr(AF+h*4,4)}, {vr(BB,4)}, 0')
        a(f's_waitcnt lgkmcnt({2-2*h})')
        a(f'v_mfma_f32_16x16x32_f16 {vr(D2+h*4,4)}, {vr(AF+(2+h)*4,4)}, {vr(BM,4)}, {vr(D2+h*4,4)}')
    ZF = 104
    for j in range(4): a(f'v_cvt_pk_f16_f32 v{ZF+j}, v{D2+2*j}, v{D2+2*j+1}')
    D3 = 108
    a(f'v_mfma_f32_16x16x32_f16 {vr(D3,4)}, {vr(ZF,4)}, {vr(BCc,4)}, 0')
    a(f'v_mfma_f32_16x16x32_f16 {vr(D3+4,4)}, {vr(ZF,4)}, {vr(BCs,4)}, 0')
    c = D3; s_ = D3 + 4
    for e in range(2):
        a(f'v_add_f32 v{c+2*e}, v{c+2*e}, v{s_+2*e+1}')
        a(f'v_sub_f32 v{c+2*e+1}, v{c+2*e+1}, v{s_+2*e}')
    for e in range(2):
        a(f'v_cvt_pk_f16_f32 v{116+e}, v{c+2*e}, v{c+2*e+1}')
    a('ds_write2_b32 v14, v116, v117 offset0:0 offset1:8')
    a('s_waitcnt lgkmcnt(0)')
    a('s_barrier')
    a(f'ds_read_b32 v118, v15')
    a(f'ds_read_b32 v119, v15 offset:{TP}')
    stamp(a, 4, stamps)
    a('s_cmp_eq_u32 s35, 0')
    a(f's_cbranch_scc1 {name}_short')
    a('s_waitcnt lgkmcnt(0)')
    a(f'buffer_store_dword v118, v16, s[12:15], s36 offen {uflag}')
    a(f'buffer_store_dword v119, v16, s[12:15], s37 offen {uflag}')
    a(f's_branch {name}_fin')
    a.label(f'{name}_short')
    a('s_waitcnt lgkmcnt(0)')
    a(f'buffer_store_short v118, v16, s[12:15], s36 offen {uflag}')
    a(f'buffer_store_short v119, v16, s[12:15], s37 offen {uflag}')
    a(f's_branch {name}_fin')

    a.label(f'{name}_pack_lo')
    a.reset_hist()
    a('s_sub_u32 s26, s25, 20'); a('s_mul_i32 s26, s26, 7'); a('s_add_u32 s26, s26, s24'); a('s_sub_u32 s26, s26, 1')
    a(f's_branch {name}_pack')
    a.label(f'{name}_pack_hi')
    a('s_sub_u32 s26, s2, 165')
    a.label(f'{name}_pack')
    a('s_cmp_eq_u32 s26, 80')
    a(f's_cbranch_scc1 {name}_zero')
    a(f's_cmp_ge_u32 s26, {80 if pack_w2 else 48}')
    a(f's_cbranch_scc1 {name}_end')
    a('v_lshrrev_b32 v9, 2, v7')
    a('v_and_b32 v4, 3, v2')
    a('v_lshlrev_b32 v3, 4, v2')
    a('v_lshl_add_u32 v9, v8, 2, v9')
    a('s_waitcnt lgkmcnt(0)')
    srd(a, 12, 12, 13, ws_size(stamps))
    if pack_w2:
        a('s_cmp_ge_u32 s26, 48')
        a(f's_cbranch_scc1 {name}_pack_w2')
    a('s_cmp_ge_u32 s22, 10')
    a(f's_cbranch_scc1 {name}_end')
    srd(a, 8, 16, 17, D*F*2)
    a('v_lshrrev_b32 v5, 3, v2')
    a('v_mul_u32_u24 v5, 3072, v5')
    a('v_and_b32 v6, 7, v2')
    a('v_lshl_add_u32 v5, v6, 4, v5')
    a('s_lshr_b32 s27, s26, 1'); a('s_and_b32 s28, s26, 1')
    a('s_mul_i32 s29, s28, 10'); a('s_add_u32 s29, s29, s22')
    a(f's_mul_i32 s30, s29, {32*3072}'); a('s_lshl_b32 s31, s27, 7'); a('s_add_u32 s30, s30, s31')
    a('s_lshl_b32 s31, s22, 12')
    a('s_mov_b32 m0, s31')
    for i in range(4):
        a('buffer_load_dwordx4 v5, s[8:11], s30 offen lds')
        if i < 3:
            a(f's_add_u32 s30, s30, {8*3072}')
            a('s_add_u32 m0, m0, 1024')
    a('v_lshlrev_b32 v6, 7, v9')
    a('v_lshl_add_u32 v6, v4, 3, v6')
    a('v_add_u32 v6, s31, v6')
    for j in range(4): a(f'v_mov_b32 v{12+j}, 0x3f803f80')
    a('s_mul_i32 s33, s27, 43'); a('s_lshr_b32 s33, s33, 7')
    a('s_mul_i32 s34, s33, 3'); a('s_sub_u32 s34, s27, s34')
    a('s_mul_i32 s33, s33, 240')
    a('s_mul_i32 s35, s34, 120'); a('s_lshl_b32 s37, s29, 1'); a('s_add_u32 s35, s35, s37')
    for tl in range(4):
        a(f's_add_u32 s36, s35, {(tl//2)*60 + tl%2}')
        a(f's_add_u32 s37, s29, {tl*60+40}')
        a('s_cmp_eq_u32 s34, 2')
        a('s_cselect_b32 s36, s37, s36')
        a('s_add_u32 s36, s36, s33'); a('s_lshl_b32 s36, s36, 10'); a(f's_add_u32 s{40+tl}, s36, {W1P_OFF}')
    a('s_waitcnt vmcnt(0)')
    for tl in range(4):
        b = 20 + tl*4
        a(f'ds_read_b64_tr_b16 {vr(b,2)}, v6 offset:{tl*32}')
        a(f'ds_read_b64_tr_b16 {vr(b+2,2)}, v6 offset:{tl*32+2048}')
    for tl in range(4):
        b = 20 + tl*4
        a(f's_waitcnt lgkmcnt({6-2*tl})')
        a(f'buffer_store_dwordx4 {vr(b,4)}, v3, s[12:15], s{40+tl} offen {stflag}')
        a(f'v_mfma_f32_16x16x32_bf16 {vr(40+4*tl,4)}, {vr(b,4)}, v[12:15], 0')
    a('v_lshlrev_b32 v10, 4, v8')
    a('s_lshl_b32 s32, s22, 8'); a('s_add_u32 s32, s32, 40960')
    a('v_add_u32 v10, s32, v10')
    for tl in range(4):
        a(f'ds_write_b128 v10, {vr(40+4*tl,4)} offset:{64*tl}')
    a('s_waitcnt lgkmcnt(0)')
    a('s_barrier')
    a('s_cmp_lg_u32 s22, 0')
    a(f's_cbranch_scc1 {name}_fin')
    a('v_lshlrev_b32 v10, 2, v2')
    for w in range(10): a(f'ds_read_b32 v{20+w}, v10 offset:{40960+256*w}')
    a('s_mul_i32 s32, s28, 6144'); a('s_lshl_b32 s33, s27, 8'); a('s_add_u32 s32, s32, s33'); a(f's_add_u32 s32, s32, {CS_OFF}')
    a('s_waitcnt lgkmcnt(0)')
    for w in range(1, 10): a(f'v_add_f32 v20, v20, v{20+w}')
    a(f'buffer_store_dword v20, v10, s[12:15], s32 offen {stflag}')
    a(f's_branch {name}_fin')
    if pack_w2:
        a.label(f'{name}_pack_w2')
        a.reset_hist()
        a('s_cmp_ge_u32 s22, 12')
        a(f's_cbranch_scc1 {name}_end')
        srd(a, 8, 18, 19, D*F*2)
        a('s_sub_u32 s27, s26, 48'); a('s_mul_i32 s27, s27, 12'); a('s_add_u32 s32, s27, s22')
        a('s_lshr_b32 s33, s32, 3'); a('s_and_b32 s34, s32, 7')
        a(f's_mul_i32 s35, s33, {32*1280}'); a('s_mul_i32 s36, s34, 160'); a('s_add_u32 s35, s35, s36')
        a('s_mul_i32 s36, s34, 48'); a('s_add_u32 s36, s36, s33'); a('s_mul_i32 s36, s36, 5120'); a(f's_add_u32 s40, s36, {W2P_OFF}')
        a('s_mul_i32 s29, s22, 5120')
        a('s_mov_b32 m0, s29')
        for i in range(5):
            a(f'v_add_u32 v10, {64*i}, v2')
            a('v_mul_u32_u24 v11, 205, v10'); a('v_lshrrev_b32 v11, 11, v11')
            a('v_mul_u32_u24 v12, 10, v11'); a('v_sub_u32 v12, v10, v12')
            a('v_mul_u32_u24 v11, 1280, v11')
            a(f'v_lshl_add_u32 v{14+i}, v12, 4, v11')
            a(f'buffer_load_dwordx4 v{14+i}, s[8:11], s35 offen lds')
            if i < 4: a('s_add_u32 m0, m0, 1024')
        a('v_mul_u32_u24 v5, 160, v9')
        a('v_add_u32 v5, s29, v5')
        a('v_lshl_add_u32 v5, v4, 3, v5')
        a('v_add_u32 v13, 0x1000, v3')
        a('s_waitcnt vmcnt(0)')
        for i in range(5):
            b = 20 + i*4
            a(f'ds_read_b64_tr_b16 {vr(b,2)}, v5 offset:{32*i}')
            a(f'ds_read_b64_tr_b16 {vr(b+2,2)}, v5 offset:{32*i+16*160}')
        for i in range(5):
            b = 20 + i*4
            a(f's_waitcnt lgkmcnt({8-2*i})')
            if i < 4: a(f'buffer_store_dwordx4 {vr(b,4)}, v3, s[12:15], s40 offen offset:{1024*i} {stflag}')
            else: a(f'buffer_store_dwordx4 {vr(b,4)}, v13, s[12:15], s40 offen {stflag}')
    a(f's_branch {name}_fin')
    a.label(f'{name}_zero')
    a.reset_hist()
    a('s_cmp_ge_u32 s22, 8')
    a(f's_cbranch_scc1 {name}_end')
    a('s_waitcnt lgkmcnt(0)')
    srd(a, 12, 12, 13, ws_size(stamps))
    a('v_lshlrev_b32 v3, 4, v0')
    for j in range(4): a(f'v_mov_b32 v{4+j}, 0')
    a(f's_mov_b32 s30, {FLAG_OFF}')
    a('buffer_store_dwordx4 v[4:7], v3, s[12:15], s30 offen')
    a.label(f'{name}_fin')
    if stamps:
        a.reset_hist()
        a('s_nop 7')
        write_stamps(a, 6, 0, 22)
    a.label(f'{name}_end')
    a('s_endpgm')
    return dict(vgpr=120, sgpr=80, accum=120, lds=LDS_A, threads=1024)

if __name__ == '__main__':
    a = Asm()
    a.raw(f'; @launch kernel=ka_kernel grid=(256,1,1) block=(1024,1,1) lds={LDS_A}')
    a.raw('.amdgcn_target "amdgcn-amd-amdhsa--gfx950"\n.text')
    info = gen_kA(a, 'ka_kernel', stamps=True)
    a.raw('.section .rodata,"a"\n.p2align 6')
    a.raw(kernel_desc('ka_kernel', info['vgpr'], info['sgpr'], info['accum']))
    open('ka.s', 'w').write(a.text())
    print('instrs', a.count, 'nops', a.nops)
```

```python
from common import *

XP = 1280
G_OFF = 64 * XP
G_E1 = 4112
T_OFF = 0
TP = 260
CO_OFF = G_OFF + 8 * G_E1
LDS_A = CO_OFF + 12 * 1024
NW_A = 16

def gen_kA(a, name, stamps=False, stflag='', uflag='', pack_w2=True, pf=None):
    a.raw(f'.globl {name}\n.p2align 8\n.type {name},@function\n{name}:')
    a.reset_hist()
    a('s_cmp_ge_u32 s2, 256')
    a(f's_cbranch_scc1 {name}_end')
    stamp(a, 0, stamps)
    a('s_load_dwordx2 s[8:9], s[0:1], 0')
    a('s_load_dwordx2 s[12:13], s[0:1], 96')
    a('s_load_dwordx2 s[16:17], s[0:1], 48')
    a('s_load_dwordx2 s[18:19], s[0:1], 64')
    a('v_lshrrev_b32 v1, 6, v0')
    a('v_and_b32 v2, 63, v0')
    a('v_readfirstlane_b32 s22, v1')
    a('v_and_b32 v7, 15, v2')
    a('v_lshrrev_b32 v8, 4, v2')
    a('s_and_b32 s24, s2, 7')
    a('s_lshr_b32 s25, s2, 3')
    a('s_cmp_lt_u32 s25, 20')
    a(f's_cbranch_scc1 {name}_fft_norm')
    a('s_cmp_ge_u32 s25, 25')
    a(f's_cbranch_scc1 {name}_pack_hi')
    a('s_cmp_eq_u32 s24, 0')
    a(f's_cbranch_scc0 {name}_pack_lo')
    a('s_mov_b32 s20, 32')
    a('s_sub_u32 s21, s25, 20')
    a('s_mov_b32 s23, 2')
    a(f's_branch {name}_fft')
    a.label(f'{name}_fft_norm')
    a('s_mul_i32 s26, s25, 52')
    a('s_lshr_b32 s26, s26, 8')
    a('s_mul_i32 s27, s26, 5')
    a('s_sub_u32 s21, s25, s27')
    a('s_lshl_b32 s27, s24, 2')
    a('s_add_u32 s27, s27, s26')
    emit_rho_t1(a, 27, 20, 28)
    a('s_lshl_b32 s23, s26, 2')
    a.label(f'{name}_fft')
    a.reset_hist()
    vm = Cnt(a, 'vmcnt', 63); lg = Cnt(a, 'lgkmcnt', 15)
    a('v_lshl_add_u32 v3, v1, 2, v8')
    a('v_and_b32 v5, 31, v3')
    a('v_lshlrev_b32 v5, 6, v5')
    a('v_add_u32 v5, s20, v5')
    a('v_sub_u32 v6, 0x800, v5')
    a('v_and_b32 v6, 0x7ff, v6')
    a('v_cmp_gt_u32 vcc, 32, v3')
    a('v_lshlrev_b32 v4, 4, v7')
    a('v_cndmask_b32 v5, v6, v5, vcc')
    a('v_mul_u32_u24 v5, 1280, v5')
    a('v_add_u32 v5, v5, v4')
    a(f'v_mul_u32_u24 v6, {XP}, v3')
    a('v_add_u32 v6, v6, v4')
    a('s_waitcnt lgkmcnt(0)')
    srd(a, 8, 8, 9, S*D*2)
    X = 64
    for jj in range(5):
        a(f'buffer_load_dwordx4 {vr(X+4*jj,4)}, v5, s[8:11], 0 offen offset:{256*jj}')
        vm.issue(('x', jj))
    srd(a, 12, 12, 13, ws_size(stamps))
    a('v_lshlrev_b32 v9, 2, v8')
    a('v_cvt_f32_u32 v9, v9')
    BA = 20; BA2 = 24; CSUM = 26; BB = 28; BM = 32; BCc = 36; BCs = 40; T = 44
    a('s_lshl_b32 s26, s21, 3')
    a('s_add_u32 s26, s26, 1')
    a('v_and_b32 v10, 7, v7')
    a('v_add_u32 v10, s26, v10')
    a('v_cvt_f32_u32 v10, v10')
    a(f'v_mul_f32 v10, {fbits(1/40)}, v10')
    a('v_lshrrev_b32 v11, 3, v7')
    a('v_cvt_f32_u32 v11, v11')
    a(f'v_mul_f32 v11, {fbits(0.25)}, v11')
    a('v_fma_f32 v11, v10, v9, v11')
    cj = [0,1,2,3,16,17,18,19,32,33,34,35]
    for j, c in enumerate(cj):
        a(f'v_fmamk_f32 v{T+j}, v10, {fbits(float(c))}, v11')
    for j in range(12):
        a(f'v_cos_f32 v{T+j}, v{T+j}')
    for j in range(6):
        a(f'v_cvt_pk_bf16_f32 v{BA+j}, v{T+2*j}, v{T+2*j+1}')
    a('v_cmp_gt_u32 vcc, 2, v8')
    ONES = 60
    for j in range(4): a(f'v_mov_b32 v{ONES+j}, 0x3f803f80')
    a(f'v_cndmask_b32 v{BA2}, 0, v{BA2}, vcc')
    a(f'v_cndmask_b32 v{BA2+1}, 0, v{BA2+1}, vcc')
    a(f'v_mfma_f32_16x16x32_bf16 v[84:87], {vr(ONES,4)}, {vr(BA,4)}, 0')
    a(f'v_mfma_f32_16x16x16_bf16 v[88:91], {vr(ONES,2)}, {vr(BA2,2)}, 0')
    a('s_and_b32 s27, s22, 7')
    a('v_lshlrev_b32 v13, 4, v2')
    a('s_cmp_ge_u32 s22, 12')
    a(f's_cbranch_scc1 {name}_cdone')
    a('s_cmp_ge_u32 s22, 8')
    a(f's_cbranch_scc1 {name}_cc')
    a('s_add_u32 s28, s27, s26')
    a('v_lshrrev_b32 v10, 1, v7')
    a('v_mul_u32_u24 v10, 40, v10')
    a('v_add_u32 v10, s28, v10')
    a('v_cvt_f32_u32 v10, v10')
    a(f'v_mul_f32 v10, {fbits(1/640)}, v10')
    a('v_and_b32 v11, 1, v7')
    a('v_cvt_f32_u32 v11, v11')
    a(f'v_mul_f32 v11, {fbits(0.25)}, v11')
    a(f'v_mov_b32 v12, {fbits(-0.25)}')
    a(f's_branch {name}_cgen')
    a.label(f'{name}_cc')
    a('s_lshl_b32 s30, s22, 3'); a('s_and_b32 s30, s30, 16')
    a('v_add_u32 v10, s30, v7')
    a('v_cvt_f32_u32 v10, v10')
    a(f'v_mul_f32 v10, {fbits(1/32)}, v10')
    a('s_bitcmp1_b32 s22, 0')
    a(f's_cselect_b32 s31, {fbits(-0.25)}, 0')
    a('v_mov_b32 v11, s31')
    a('s_cmp_eq_u32 s20, 32')
    a(f's_cselect_b32 s31, {fbits(0.5)}, 0')
    a('v_add_f32 v9, s31, v9')
    a(f'v_mul_f32 v12, {fbits(16.0)}, v10')
    a.label(f'{name}_cgen')
    a(f'v_fma_f32 v{T}, v10, v9, v11')
    for r in range(1, 4): a(f'v_fmamk_f32 v{T+r}, v10, {fbits(float(r))}, v{T}')
    for r in range(4): a(f'v_add_f32 v{T+4+r}, v{T+r}, v12')
    for r in range(8): a(f'v_cos_f32 v{T+r}, v{T+r}')
    a('s_lshl_b32 s31, s22, 10'); a(f's_add_u32 s31, s31, {CO_OFF}')
    a('v_add_u32 v14, s31, v13')
    for j in range(4): a(f'v_cvt_pk_f16_f32 v{T+8+j}, v{T+2*j}, v{T+2*j+1}')
    a(f'ds_write_b128 v14, {vr(T+8,4)}')
    a.label(f'{name}_cdone')
    a('s_nop 7')
    a(f'v_add_f32 v{CSUM}, v84, v88')
    a('s_lshr_b32 s29, s22, 3')
    a('s_lshl_b32 s30, s29, 4')
    a('v_add_u32 v15, s30, v7')
    a('s_lshl_b32 s31, s27, 10'); a(f's_add_u32 s31, s31, {CO_OFF}'); a('v_add_u32 v19, s31, v13')
    a('s_lshl_b32 s31, s29, 11'); a(f's_add_u32 s31, s31, {CO_OFF}'); a('v_add_u32 v17, s31, v13')
    a('v_and_b32 v18, 1, v7')
    a('v_mov_b32 v3, 0x80008000')
    a('v_mul_lo_u32 v18, v3, v18')
    a(f's_mul_i32 s32, s22, {4*XP}')
    a('v_lshlrev_b32 v10, 3, v2')
    a('v_add_u32 v10, s32, v10')
    a('v_and_b32 v11, 31, v2')
    a('v_lshlrev_b32 v11, 3, v11')
    a('v_add_u32 v11, s32, v11')
    a('v_and_b32 v12, 7, v7')
    a(f'v_mul_u32_u24 v12, {G_E1}, v12')
    a('v_lshl_add_u32 v12, v8, 8, v12')
    a('v_lshrrev_b32 v9, 3, v7')
    a('v_lshl_add_u32 v12, v9, 3, v12')
    a('s_lshr_b32 s33, s22, 2'); a('s_lshl_b32 s33, s33, 10'); a('s_and_b32 s34, s22, 3'); a('s_lshl_b32 s34, s34, 6'); a('s_add_u32 s33, s33, s34'); a(f's_add_u32 s33, s33, {G_OFF}')
    a('v_add_u32 v12, s33, v12')
    a(f's_mul_i32 s34, s27, {G_E1}'); a(f's_add_u32 s34, s34, {G_OFF}')
    a('v_add_u32 v13, s34, v13')
    a(f'v_mul_u32_u24 v14, {TP}, v15')
    a('v_lshl_add_u32 v14, v8, 6, v14')
    a('s_lshl_b32 s34, s27, 2')
    a('v_add_u32 v14, s34, v14')
    a(f's_mul_i32 s34, s22, {2*TP}')
    a('v_lshlrev_b32 v15, 2, v2')
    a('v_add_u32 v15, s34, v15')
    a('v_lshrrev_b32 v16, 3, v2')
    a('v_mul_u32_u24 v16, 40, v16')
    a('v_and_b32 v9, 7, v2')
    a('v_add_lshl_u32 v16, v16, v9, 4')
    a(f's_mul_i32 s36, s22, {2*U_T1}')
    a('s_mul_i32 s37, s24, 5120'); a('s_add_u32 s36, s36, s37')
    a('s_lshl_b32 s37, s21, 7'); a('s_add_u32 s36, s36, s37')
    a('s_add_u32 s36, s36, s23'); a(f's_add_u32 s36, s36, {U_OFF}')
    a(f's_add_u32 s37, s36, {U_T1}')
    a('s_and_b32 s35, s20, 31')
    SA = 56
    for j in range(4): a(f'v_mov_b32 v{SA+j}, 0')
    stamp(a, 1, stamps)
    for jj in range(5):
        vm.wait(('x', jj))
        a(f'ds_write_b128 v6, {vr(X+4*jj,4)} offset:{256*jj}')
        lg.issue('xw')
        if jj == 4:
            FR = 96
            for rho in range(4):
                b = FR + rho * 6
                a(f'ds_read_b64_tr_b16 {vr(b,2)}, v10 offset:{rho*XP}')
                a(f'ds_read_b64_tr_b16 {vr(b+2,2)}, v10 offset:{rho*XP+512}')
                a(f'ds_read_b64_tr_b16 {vr(b+4,2)}, v11 offset:{rho*XP+1024}')
                lg.issue(('tr', rho), 3)
        for r in range(4):
            a(f'v_dot2c_f32_bf16 v{SA+(r&1)}, v{X+4*jj+r}, v{ONES}')
            a(f'v_dot2c_f32_bf16 v{SA+2+(r&1)}, v{X+4*jj+r}, v{X+4*jj+r}')
    stamp(a, 2, stamps)
    a(f'v_add_f32 v{SA}, v{SA}, v{SA+1}')
    a(f'v_add_f32 v{SA+2}, v{SA+2}, v{SA+3}')
    D1 = 44
    D1r = [84, 88, 92, 44]
    for rho in range(4):
        lg.wait(('tr', rho))
        a(f'v_mfma_f32_16x16x32_bf16 {vr(D1r[rho],4)}, {vr(FR+rho*6,4)}, {vr(BA,4)}, 0')
        rot = [8, 4, 2, 1][rho]
        a(f'v_add_f32_dpp v{SA}, v{SA}, v{SA} row_ror:{rot} row_mask:0xf bank_mask:0xf')
        a(f'v_add_f32_dpp v{SA+2}, v{SA+2}, v{SA+2} row_ror:{rot} row_mask:0xf bank_mask:0xf')
    sts = [f'v_mul_f32 v{SA}, {fbits(1/640)}, v{SA}',
           f'v_mul_f32 v{SA+2}, {fbits(1/640)}, v{SA+2}',
           f'v_fma_f32 v{SA+2}, -v{SA}, v{SA}, v{SA+2}',
           f'v_max_f32 v{SA+2}, 0, v{SA+2}',
           f'v_add_f32 v{SA+2}, {fbits(1e-5)}, v{SA+2}',
           f'v_rsq_f32 v{SA+2}, v{SA+2}',
           's_nop 0',
           f'v_mul_f32 v{SA}, v{SA}, v{SA+2}']
    for rho in range(4):
        a(f'v_mfma_f32_16x16x16_bf16 {vr(D1r[rho],4)}, {vr(FR+rho*6+4,2)}, {vr(BA2,2)}, {vr(D1r[rho],4)}')
        a(sts[2*rho]); a(sts[2*rho+1])
    for rho in range(4):
        a(f'v_readlane_b32 s{44+2*rho}, v{SA+2}, {16*rho}')
        a(f'v_readlane_b32 s{45+2*rho}, v{SA}, {16*rho}')
    for rho in range(4):
        a(f'v_mul_f32 v{48+2*rho}, s{45+2*rho}, v{CSUM}')
    for rho in range(4):
        d = D1r[rho]; sp = 44 + 2*rho; tb = 48 + 2*rho
        a(f'v_pk_fma_f32 {vr(d,2)}, {vr(d,2)}, {sr(sp,2)}, {vr(tb,2)} op_sel_hi:[1,0,0] neg_lo:[0,0,1] neg_hi:[0,0,1]')
        a(f'v_pk_fma_f32 {vr(d+2,2)}, {vr(d+2,2)}, {sr(sp,2)}, {vr(tb,2)} op_sel_hi:[1,0,0] neg_lo:[0,0,1] neg_hi:[0,0,1]')
    for rho in range(4):
        d = D1r[rho]
        a(f'v_cvt_pk_f16_f32 v{d}, v{d}, v{d+1}')
        a(f'v_cvt_pk_f16_f32 v{d+1}, v{d+2}, v{d+3}')
        a(f'ds_write_b64 v12, {vr(d,2)} offset:{16*rho}')
    lg.wait_all()
    stamp(a, 3, stamps)
    a('s_barrier')
    AF = 64
    a(f'ds_read_b128 {vr(BB,4)}, v19')
    for rt in (0, 1, 2, 3):
        a(f'ds_read_b128 {vr(AF+rt*4,4)}, v13 offset:{rt*1024}')
    a(f'ds_read_b128 {vr(BCc,4)}, v17 offset:8192')
    a(f'ds_read_b128 {vr(BCs,4)}, v17 offset:9216')
    D2 = 96
    a('s_waitcnt lgkmcnt(6)')
    for j in range(4): a(f'v_xor_b32 v{BM+j}, v18, v{BB+j}')
    for h in range(2):
        a(f's_waitcnt lgkmcnt({5-h})')
        a(f'v_mfma_f32_16x16x32_f16 {vr(D2+h*4,4)}, {vr(AF+h*4,4)}, {vr(BB,4)}, 0')
    for h in range(2):
        a(f's_waitcnt lgkmcnt({3-h})')
        a(f'v_mfma_f32_16x16x32_f16 {vr(D2+h*4,4)}, {vr(AF+(2+h)*4,4)}, {vr(BM,4)}, {vr(D2+h*4,4)}')
    a('s_waitcnt lgkmcnt(0)')
    ZF = 104
    for j in range(4): a(f'v_cvt_pk_f16_f32 v{ZF+j}, v{D2+2*j}, v{D2+2*j+1}')
    D3 = 108
    a(f'v_mfma_f32_16x16x32_f16 {vr(D3,4)}, {vr(ZF,4)}, {vr(BCc,4)}, 0')
    a(f'v_mfma_f32_16x16x32_f16 {vr(D3+4,4)}, {vr(ZF,4)}, {vr(BCs,4)}, 0')
    c = D3; s_ = D3 + 4
    for e in range(2):
        a(f'v_add_f32 v{c+2*e}, v{c+2*e}, v{s_+2*e+1}')
        a(f'v_sub_f32 v{c+2*e+1}, v{c+2*e+1}, v{s_+2*e}')
    for e in range(2):
        a(f'v_cvt_pk_f16_f32 v{116+e}, v{c+2*e}, v{c+2*e+1}')
    a('ds_write2_b32 v14, v116, v117 offset0:0 offset1:8')
    a('s_waitcnt lgkmcnt(0)')
    a('s_barrier')
    a(f'ds_read_b32 v118, v15')
    a(f'ds_read_b32 v119, v15 offset:{TP}')
    stamp(a, 4, stamps)
    a('s_cmp_eq_u32 s35, 0')
    a(f's_cbranch_scc1 {name}_short')
    a('s_waitcnt lgkmcnt(0)')
    a(f'buffer_store_dword v118, v16, s[12:15], s36 offen {uflag}')
    a(f'buffer_store_dword v119, v16, s[12:15], s37 offen {uflag}')
    a(f's_branch {name}_fin')
    a.label(f'{name}_short')
    a('s_waitcnt lgkmcnt(0)')
    a(f'buffer_store_short v118, v16, s[12:15], s36 offen {uflag}')
    a(f'buffer_store_short v119, v16, s[12:15], s37 offen {uflag}')
    a(f's_branch {name}_fin')

    a.label(f'{name}_pack_lo')
    a.reset_hist()
    a('s_sub_u32 s26, s25, 20'); a('s_mul_i32 s26, s26, 7'); a('s_add_u32 s26, s26, s24'); a('s_sub_u32 s26, s26, 1')
    a(f's_branch {name}_pack')
    a.label(f'{name}_pack_hi')
    if pf:
        a('s_cmp_ge_u32 s22, 12')
        a(f's_cbranch_scc1 {name}_pf')
    a('s_sub_u32 s26, s2, 165')
    a.label(f'{name}_pack')
    a('s_cmp_eq_u32 s26, 80')
    a(f's_cbranch_scc1 {name}_zero')
    a(f's_cmp_ge_u32 s26, {80 if pack_w2 else 48}')
    a(f's_cbranch_scc1 {name}_end')
    a('v_lshrrev_b32 v9, 2, v7')
    a('v_and_b32 v4, 3, v2')
    a('v_lshlrev_b32 v3, 4, v2')
    a('v_lshl_add_u32 v9, v8, 2, v9')
    a('s_waitcnt lgkmcnt(0)')
    srd(a, 12, 12, 13, ws_size(stamps))
    if pack_w2:
        a('s_cmp_ge_u32 s26, 48')
        a(f's_cbranch_scc1 {name}_pack_w2')
    a('s_cmp_ge_u32 s22, 10')
    a(f's_cbranch_scc1 {name}_end')
    srd(a, 8, 16, 17, D*F*2)
    a('v_lshrrev_b32 v5, 3, v2')
    a('v_mul_u32_u24 v5, 3072, v5')
    a('v_and_b32 v6, 7, v2')
    a('v_lshl_add_u32 v5, v6, 4, v5')
    a('s_lshr_b32 s27, s26, 1'); a('s_and_b32 s28, s26, 1')
    a('s_mul_i32 s29, s28, 10'); a('s_add_u32 s29, s29, s22')
    a(f's_mul_i32 s30, s29, {32*3072}'); a('s_lshl_b32 s31, s27, 7'); a('s_add_u32 s30, s30, s31')
    a('s_lshl_b32 s31, s22, 12')
    a('s_mov_b32 m0, s31')
    for i in range(4):
        a('buffer_load_dwordx4 v5, s[8:11], s30 offen lds')
        if i < 3:
            a(f's_add_u32 s30, s30, {8*3072}')
            a('s_add_u32 m0, m0, 1024')
    a('v_lshlrev_b32 v6, 7, v9')
    a('v_lshl_add_u32 v6, v4, 3, v6')
    a('v_add_u32 v6, s31, v6')
    for j in range(4): a(f'v_mov_b32 v{12+j}, 0x3f803f80')
    a('s_mul_i32 s33, s27, 43'); a('s_lshr_b32 s33, s33, 7')
    a('s_mul_i32 s34, s33, 3'); a('s_sub_u32 s34, s27, s34')
    a('s_mul_i32 s33, s33, 240')
    a('s_mul_i32 s35, s34, 120'); a('s_lshl_b32 s37, s29, 1'); a('s_add_u32 s35, s35, s37')
    for tl in range(4):
        a(f's_add_u32 s36, s35, {(tl//2)*60 + tl%2}')
        a(f's_add_u32 s37, s29, {tl*60+40}')
        a('s_cmp_eq_u32 s34, 2')
        a('s_cselect_b32 s36, s37, s36')
        a('s_add_u32 s36, s36, s33'); a('s_lshl_b32 s36, s36, 10'); a(f's_add_u32 s{40+tl}, s36, {W1P_OFF}')
    a('s_waitcnt vmcnt(0)')
    for tl in range(4):
        b = 20 + tl*4
        a(f'ds_read_b64_tr_b16 {vr(b,2)}, v6 offset:{tl*32}')
        a(f'ds_read_b64_tr_b16 {vr(b+2,2)}, v6 offset:{tl*32+2048}')
    for tl in range(4):
        b = 20 + tl*4
        a(f's_waitcnt lgkmcnt({6-2*tl})')
        a(f'buffer_store_dwordx4 {vr(b,4)}, v3, s[12:15], s{40+tl} offen {stflag}')
        a(f'v_mfma_f32_16x16x32_bf16 {vr(40+4*tl,4)}, {vr(b,4)}, v[12:15], 0')
    a('v_lshlrev_b32 v10, 4, v8')
    a('s_lshl_b32 s32, s22, 8'); a('s_add_u32 s32, s32, 40960')
    a('v_add_u32 v10, s32, v10')
    for tl in range(4):
        a(f'ds_write_b128 v10, {vr(40+4*tl,4)} offset:{64*tl}')
    a('s_waitcnt lgkmcnt(0)')
    a('s_barrier')
    a('s_cmp_lg_u32 s22, 0')
    a(f's_cbranch_scc1 {name}_fin')
    a('v_lshlrev_b32 v10, 2, v2')
    for w in range(10): a(f'ds_read_b32 v{20+w}, v10 offset:{40960+256*w}')
    a('s_mul_i32 s32, s28, 6144'); a('s_lshl_b32 s33, s27, 8'); a('s_add_u32 s32, s32, s33'); a(f's_add_u32 s32, s32, {CS_OFF}')
    a('s_waitcnt lgkmcnt(0)')
    for w in range(1, 10): a(f'v_add_f32 v20, v20, v{20+w}')
    a(f'buffer_store_dword v20, v10, s[12:15], s32 offen {stflag}')
    a(f's_branch {name}_fin')
    if pack_w2:
        a.label(f'{name}_pack_w2')
        a.reset_hist()
        a('s_cmp_ge_u32 s22, 12')
        a(f's_cbranch_scc1 {name}_end')
        srd(a, 8, 18, 19, D*F*2)
        a('s_sub_u32 s27, s26, 48'); a('s_mul_i32 s27, s27, 12'); a('s_add_u32 s32, s27, s22')
        a('s_lshr_b32 s33, s32, 3'); a('s_and_b32 s34, s32, 7')
        a(f's_mul_i32 s35, s33, {32*1280}'); a('s_mul_i32 s36, s34, 160'); a('s_add_u32 s35, s35, s36')
        a('s_mul_i32 s36, s34, 48'); a('s_add_u32 s36, s36, s33'); a('s_mul_i32 s36, s36, 5120'); a(f's_add_u32 s40, s36, {W2P_OFF}')
        a('s_mul_i32 s29, s22, 5120')
        a('s_mov_b32 m0, s29')
        for i in range(5):
            a(f'v_add_u32 v10, {64*i}, v2')
            a('v_mul_u32_u24 v11, 205, v10'); a('v_lshrrev_b32 v11, 11, v11')
            a('v_mul_u32_u24 v12, 10, v11'); a('v_sub_u32 v12, v10, v12')
            a('v_mul_u32_u24 v11, 1280, v11')
            a(f'v_lshl_add_u32 v{14+i}, v12, 4, v11')
            a(f'buffer_load_dwordx4 v{14+i}, s[8:11], s35 offen lds')
            if i < 4: a('s_add_u32 m0, m0, 1024')
        a('v_mul_u32_u24 v5, 160, v9')
        a('v_add_u32 v5, s29, v5')
        a('v_lshl_add_u32 v5, v4, 3, v5')
        a('v_add_u32 v13, 0x1000, v3')
        a('s_waitcnt vmcnt(0)')
        for i in range(5):
            b = 20 + i*4
            a(f'ds_read_b64_tr_b16 {vr(b,2)}, v5 offset:{32*i}')
            a(f'ds_read_b64_tr_b16 {vr(b+2,2)}, v5 offset:{32*i+16*160}')
        for i in range(5):
            b = 20 + i*4
            a(f's_waitcnt lgkmcnt({8-2*i})')
            if i < 4: a(f'buffer_store_dwordx4 {vr(b,4)}, v3, s[12:15], s40 offen offset:{1024*i} {stflag}')
            else: a(f'buffer_store_dwordx4 {vr(b,4)}, v13, s[12:15], s40 offen {stflag}')
    a(f's_branch {name}_fin')
    a.label(f'{name}_zero')
    a.reset_hist()
    a('s_cmp_ge_u32 s22, 8')
    a(f's_cbranch_scc1 {name}_end')
    a('s_waitcnt lgkmcnt(0)')
    srd(a, 12, 12, 13, ws_size(stamps))
    a('v_lshlrev_b32 v3, 4, v0')
    for j in range(4): a(f'v_mov_b32 v{4+j}, 0')
    a(f's_mov_b32 s30, {FLAG_OFF}')
    a('buffer_store_dwordx4 v[4:7], v3, s[12:15], s30 offen')
    if pf:
        a(f's_branch {name}_fin')
        a.label(f'{name}_pf')
        a.reset_hist()
        a('s_cmp_lt_u32 s25, 27')
        a(f's_cbranch_scc1 {name}_end')
        a('s_xor_b32 s27, s24, 1'); a('s_lshl_b32 s27, s27, 2'); a('s_add_u32 s27, s27, s22'); a('s_sub_u32 s27, s27, 12')
        emit_rho_t1(a, 27, 20, 28)
        a('s_mul_i32 s28, s20, 1280'); a('s_sub_u32 s29, s25, 27'); a('s_lshl_b32 s29, s29, 8'); a('s_add_u32 s28, s28, s29')
        a('v_mul_u32_u24 v3, 0xa000, v8')
        a('v_lshl_add_u32 v3, v7, 4, v3')
        a('s_waitcnt lgkmcnt(0)')
        srd(a, 8, 8, 9, S*D*2)
        for q in range(16):
            a(f'buffer_load_dwordx4 {vr(20+4*q,4)}, v3, s[8:11], s28 offen')
            if q < 15: a(f's_add_u32 s28, s28, {4*40960}')
        a('s_waitcnt vmcnt(0)')
        a(f's_branch {name}_end')
    a.label(f'{name}_fin')
    if stamps:
        a.reset_hist()
        a('s_nop 7')
        write_stamps(a, 6, 0, 22)
    a.label(f'{name}_end')
    a('s_endpgm')
    return dict(vgpr=120, sgpr=80, accum=120, lds=LDS_A, threads=1024)

if __name__ == '__main__':
    a = Asm()
    a.raw(f'; @launch kernel=ka_kernel grid=(256,1,1) block=(1024,1,1) lds={LDS_A}')
    a.raw('.amdgcn_target "amdgcn-amd-amdhsa--gfx950"\n.text')
    info = gen_kA(a, 'ka_kernel', stamps=True)
    a.raw('.section .rodata,"a"\n.p2align 6')
    a.raw(kernel_desc('ka_kernel', info['vgpr'], info['sgpr'], info['accum']))
    open('ka.s', 'w').write(a.text())
    print('instrs', a.count, 'nops', a.nops)
```

```python
import build2, kCD4, kA3, kA5
from build2 import *
build2.gen_kCD = kCD4.gen_kCD
build2.gen_kA = kA3.gen_kA
build(f'v8a.s', akw=dict(stflag='sc1'))
build(f'v8b.s', akw=dict(stflag='sc1', staged=False))
build2.gen_kA = kA5.gen_kA
build(f'v15a.s', akw=dict(stflag='sc1'))
```

```python
from common import *

XW = 10240
G_OFF = 8 * XW
G_E1 = 4112
CO_OFF = G_OFF + 8 * G_E1
TP = 260
LDS_A = CO_OFF + 4 * 1024

def gen_kA(a, name, stamps=False, stflag='', uflag='', qrot=0, stage=1):
    a.raw(f'.globl {name}\n.p2align 8\n.type {name},@function\n{name}:')
    a.reset_hist()
    a('s_cmp_ge_u32 s2, 256')
    a(f's_cbranch_scc1 {name}_end')
    stamp(a, 0, stamps)
    a('s_load_dwordx2 s[8:9], s[0:1], 0')
    a('s_load_dwordx2 s[12:13], s[0:1], 96')
    a('s_load_dwordx2 s[16:17], s[0:1], 48')
    a('s_load_dwordx2 s[18:19], s[0:1], 64')
    a('v_lshrrev_b32 v1, 6, v0')
    a('v_and_b32 v2, 63, v0')
    a('v_readfirstlane_b32 s22, v1')
    a('v_and_b32 v7, 15, v2')
    a('v_lshrrev_b32 v8, 4, v2')
    if qrot:
        a(f's_add_u32 s2, s2, {8*qrot}'); a('s_and_b32 s2, s2, 255')
    a('s_and_b32 s24, s2, 7')
    a('s_lshr_b32 s25, s2, 3')
    a('s_cmp_eq_u32 s24, 0'); a('s_cselect_b32 s26, 25, 20')
    a('s_cmp_ge_u32 s25, s26')
    a(f's_cbranch_scc1 {name}_packers')
    a('s_mul_i32 s26, s25, 52'); a('s_lshr_b32 s26, s26, 8')
    a('s_mul_i32 s27, s26, 5'); a('s_sub_u32 s21, s25, s27')
    a('s_lshl_b32 s27, s24, 2'); a('s_add_u32 s27, s27, s26')
    emit_rho_t1(a, 27, 20, 28)
    a('s_lshl_b32 s23, s26, 2')
    a('s_cmp_eq_u32 s26, 4')
    a('s_cselect_b32 s20, 32, s20')
    a('s_cselect_b32 s23, 2, s23')
    a(f's_cselect_b32 s31, {fbits(0.5)}, 0')
    a('s_lshl_b32 s28, s22, 9'); a('s_add_u32 s28, s28, s20')
    a('s_sub_u32 s29, 0x1000, s28')
    a('s_cmp_lt_u32 s22, 4')
    a('s_cselect_b32 s28, s28, s29')
    a('s_cselect_b32 s29, 64, -64')
    a('v_lshrrev_b32 v3, 5, v2')
    a('v_mul_i32_i24 v3, s29, v3')
    a('v_add_u32 v3, s28, v3')
    a('v_mul_i32_i24 v4, s29, v8')
    a('v_add_u32 v4, s28, v4')
    a('v_and_b32 v5, 31, v2'); a('v_lshlrev_b32 v5, 4, v5')
    a('v_lshlrev_b32 v6, 4, v7')
    a('s_lshl_b32 s30, s29, 1')
    a('s_movk_i32 s33, 1280')
    XA = 64
    for p in range(4):
        a(f'v_and_b32 v{XA+p}, 0x7ff, v3')
        a(f'v_mad_u32_u24 v{XA+p}, v{XA+p}, s33, v5')
        if p < 3: a('v_add_u32 v3, s30, v3')
    a('s_lshl_b32 s30, s29, 2')
    for q in range(2):
        a(f'v_and_b32 v{XA+4+q}, 0x7ff, v4')
        a(f'v_mad_u32_u24 v{XA+4+q}, v{XA+4+q}, s33, v6')
        if q < 1: a('v_add_u32 v4, s30, v4')
    a(f's_mul_i32 s32, s22, {XW}')
    a('s_mov_b32 m0, s32')
    a('s_waitcnt lgkmcnt(0)')
    srd(a, 8, 8, 9, S*D*2)
    vm = Cnt(a, 'vmcnt', 63); lg = Cnt(a, 'lgkmcnt', 15)
    for p in range(4):
        if p: a(f's_add_u32 m0, s32, {p*1024}')
        a(f'buffer_load_dwordx4 v{XA+p}, s[8:11], 0 offen lds'); vm.issue('xa')
    def ld_b():
        for p in range(4):
            a(f's_add_u32 m0, s32, {4096 + p*1024 - 512}')
            a(f'buffer_load_dwordx4 v{XA+p}, s[8:11], 0 offen offset:512 lds'); vm.issue('xb')
    def ld_c():
        for q in range(2):
            a(f's_add_u32 m0, s32, {8192 + q*1024 - 1024}')
            a(f'buffer_load_dwordx4 v{XA+4+q}, s[8:11], 0 offen offset:1024 lds'); vm.issue('xc')
    if stage == 0: ld_b(); ld_c()
    srd(a, 12, 12, 13, ws_size(stamps))
    BA = 20; BA2 = 24; CSUM = 26; BB = 28; BM = 32; BC = 36; T = 72; ONES = 52
    a('v_lshlrev_b32 v9, 2, v8')
    a('v_cvt_f32_u32 v9, v9')
    a('s_lshl_b32 s26, s21, 3')
    a('s_add_u32 s26, s26, 1')
    a('v_and_b32 v10, 7, v7')
    a('v_add_u32 v11, s26, v10')
    a('v_cvt_f32_u32 v11, v11')
    a(f'v_mul_f32 v11, {fbits(1/40)}, v11')
    a('v_lshrrev_b32 v12, 3, v7')
    a('v_cvt_f32_u32 v13, v12')
    a(f'v_mul_f32 v13, {fbits(0.25)}, v13')
    a(f'v_fma_f32 v{T}, v11, v9, v13')
    cj = [0,1,2,3,16,17,18,19,32,33,34,35]
    for j, c in enumerate(cj):
        if j: a(f'v_fmamk_f32 v{T+j}, v11, {fbits(float(c))}, v{T}')
    for j in range(12): a(f'v_cos_f32 v{T+j}, v{T+j}')
    for j in range(4): a(f'v_mov_b32 v{ONES+j}, 0x3f803f80')
    a('v_cmp_gt_u32 vcc, 2, v8')
    for j in range(6): a(f'v_cvt_pk_bf16_f32 v{BA+j}, v{T+2*j}, v{T+2*j+1}')
    a(f'v_cndmask_b32 v{BA2}, 0, v{BA2}, vcc')
    a(f'v_cndmask_b32 v{BA2+1}, 0, v{BA2+1}, vcc')
    if stage == 1: ld_b(); ld_c()
    if stage == 3: ld_b()
    a(f'v_mul_u32_u24 v14, {G_E1}, v10')
    a('v_lshl_add_u32 v14, v8, 8, v14')
    a('v_lshl_add_u32 v12, v12, 3, v14')
    a(f'v_mfma_f32_16x16x32_bf16 v[56:59], {vr(ONES,4)}, {vr(BA,4)}, 0')
    a(f'v_mfma_f32_16x16x16_bf16 v[60:63], {vr(ONES,2)}, {vr(BA2,2)}, 0')
    a('s_lshr_b32 s34, s22, 1'); a('s_lshl_b32 s34, s34, 10'); a('s_and_b32 s35, s22, 1'); a('s_lshl_b32 s35, s35, 7'); a('s_add_u32 s34, s34, s35'); a(f's_add_u32 s34, s34, {G_OFF}')
    a('v_add_u32 v12, s34, v12')
    a('v_lshrrev_b32 v14, 1, v8'); a('v_lshlrev_b32 v14, 2, v14'); a('v_xor_b32 v14, v14, v7')
    a('v_and_b32 v15, 1, v8')
    a('v_lshlrev_b32 v18, 1, v15'); a('v_xor_b32 v18, v18, v14'); a('v_lshlrev_b32 v18, 4, v18'); a('v_lshl_add_u32 v18, v10, 8, v18'); a('v_add_u32 v18, s32, v18')
    a('v_lshl_add_u32 v14, v15, 4, v14'); a('v_lshlrev_b32 v14, 4, v14'); a('v_lshl_add_u32 v14, v10, 9, v14'); a('v_add_u32 v14, s32, v14')
    a('v_xor_b32 v15, 16, v14'); a('v_xor_b32 v16, 32, v14'); a('v_xor_b32 v17, 48, v14'); a('v_xor_b32 v19, 16, v18')
    a(f'v_add_f32 v{CSUM}, v56, v60')
    a('v_lshlrev_b32 v10, 3, v2'); a('v_add_u32 v10, s32, v10')
    a('v_lshrrev_b32 v11, 1, v5'); a('v_add_u32 v11, s32, v11')
    if stage == 2: ld_b(); ld_c()
    if stage == 3: ld_c()
    a('s_add_u32 s28, s22, s26')
    a('v_lshrrev_b32 v3, 1, v7')
    a('v_mul_u32_u24 v3, 40, v3')
    a('v_add_u32 v3, s28, v3')
    a('v_cvt_f32_u32 v3, v3')
    a(f'v_mul_f32 v3, {fbits(1/640)}, v3')
    a('v_and_b32 v4, 1, v7')
    a('v_cvt_f32_u32 v13, v4')
    a(f'v_mul_f32 v13, {fbits(0.25)}, v13')
    a(f'v_fma_f32 v{T}, v3, v9, v13')
    for r in range(1, 4): a(f'v_fmamk_f32 v{T+r}, v3, {fbits(float(r))}, v{T}')
    for r in range(4): a(f'v_sin_f32 v{T+4+r}, v{T+r}')
    for r in range(4): a(f'v_cos_f32 v{T+r}, v{T+r}')
    a('v_mov_b32 v13, 0x80008000')
    a('v_mul_lo_u32 v4, v13, v4')
    for j in range(4): a(f'v_cvt_pk_f16_f32 v{BB+j}, v{T+2*j}, v{T+2*j+1}')
    for j in range(4): a(f'v_xor_b32 v{BM+j}, v4, v{BB+j}')
    a('s_lshl_b32 s30, s22, 2'); a('s_and_b32 s30, s30, 16')
    a('v_add_u32 v3, s30, v7')
    a('v_cvt_f32_u32 v3, v3')
    a(f'v_mul_f32 v3, {fbits(1/32)}, v3')
    a('v_add_f32 v4, s31, v9')
    a('s_bitcmp1_b32 s22, 0'); a(f's_cselect_b32 s30, {fbits(16.0)}, 0')
    a('v_add_f32 v4, s30, v4')
    a('s_bitcmp1_b32 s22, 1'); a(f's_cselect_b32 s30, {fbits(-0.25)}, 0')
    a(f'v_fma_f32 v{T}, v3, v4, s30')
    for r in range(1, 4): a(f'v_fmamk_f32 v{T+r}, v3, {fbits(float(r))}, v{T}')
    for r in range(4): a(f'v_cos_f32 v{T+r}, v{T+r}')
    a('v_lshlrev_b32 v13, 4, v2')
    a('s_lshr_b32 s30, s22, 1'); a('s_lshl_b32 s30, s30, 10'); a('s_lshr_b32 s35, s35, 4'); a('s_add_u32 s30, s30, s35'); a(f's_add_u32 s30, s30, {CO_OFF}')
    a('v_add_u32 v3, s30, v13')
    for j in range(2): a(f'v_cvt_pk_f16_f32 v{T+4+j}, v{T+2*j}, v{T+2*j+1}')
    a(f'ds_write_b64 v3, {vr(T+4,2)}')
    a(f'v_add_u32 v5, {CO_OFF}, v13')
    a(f's_mul_i32 s34, s22, {G_E1}'); a(f's_add_u32 s34, s34, {G_OFF}')
    a('v_add_u32 v13, s34, v13')
    a(f'v_mul_u32_u24 v6, {TP}, v7'); a('v_lshl_add_u32 v6, v8, 6, v6'); a('s_lshl_b32 s34, s22, 2'); a('v_add_u32 v6, s34, v6')
    a(f's_mul_i32 s34, s22, {4*TP}'); a('v_lshlrev_b32 v9, 2, v2'); a('v_add_u32 v9, s34, v9')
    a('v_lshrrev_b32 v3, 3, v2'); a('v_mul_u32_u24 v3, 40, v3'); a('v_and_b32 v4, 7, v2'); a('v_add_lshl_u32 v3, v3, v4, 4')
    a(f's_mul_i32 s36, s22, {4*U_T1}')
    a('s_mul_i32 s37, s24, 5120'); a('s_add_u32 s36, s36, s37')
    a('s_lshl_b32 s37, s21, 7'); a('s_add_u32 s36, s36, s37')
    a('s_add_u32 s36, s36, s23'); a(f's_add_u32 s36, s36, {U_OFF}')
    for i in range(1, 4): a(f's_add_u32 s{36+i}, s36, {i*U_T1}')
    a('s_and_b32 s35, s20, 31')
    a('v_and_b32 v4, 3, v7'); a('v_cmp_eq_u32 s[40:41], 1, v4'); a('v_cmp_eq_u32 s[42:43], 2, v4'); a('v_cmp_eq_u32 vcc, 3, v4')
    stamp(a, 1, stamps)
    SF = 64
    FR = 104
    D1 = 152
    SS = 56; SG = 60
    def smm(i):
        f = vr(SF+4*i, 4)
        a(f'v_mfma_f32_16x16x32_bf16 {vr(SS,4)}, {vr(ONES,4)}, {f}, {"0" if i == 0 else vr(SS,4)}')
        a(f'v_mfma_f32_16x16x32_bf16 {vr(SG,4)}, {f}, {f}, {"0" if i == 0 else vr(SG,4)}')
    vm.wait('xa')
    for s_ in range(4): a(f'ds_read_b128 {vr(SF+4*s_,4)}, v{14+s_}'); lg.issue(('sf', s_))
    for rho in range(8): a(f'ds_read_b64_tr_b16 {vr(FR+rho*6,2)}, v10 offset:{rho*512}'); lg.issue('tra')
    for s_ in range(4): lg.wait(('sf', s_)); smm(s_)
    vm.wait('xb')
    for s_ in range(4): a(f'ds_read_b128 {vr(SF+16+4*s_,4)}, v{14+s_} offset:4096'); lg.issue(('sf', 4+s_))
    vm.wait('xc')
    for s_ in range(2): a(f'ds_read_b128 {vr(SF+32+4*s_,4)}, v{18+s_} offset:8192'); lg.issue(('sf', 8+s_))
    for rho in range(8): a(f'ds_read_b64_tr_b16 {vr(FR+rho*6+2,2)}, v10 offset:{4096+rho*512}'); lg.issue(('trb', rho))
    stamp(a, 2, stamps)
    for s_ in range(4, 10):
        lg.wait(('sf', s_)); smm(s_)
        if s_ >= 6:
            for rho in (2*(s_-6), 2*(s_-6)+1): a(f'ds_read_b64_tr_b16 {vr(FR+rho*6+4,2)}, v11 offset:{8192+rho*256}'); lg.issue(('trc', rho))
    fin = [f'v_cndmask_b32 v{SS+1}, v{SG}, v{SG+1}, s[40:41]',
           f'v_cndmask_b32 v{SS+1}, v{SS+1}, v{SG+2}, s[42:43]',
           f'v_cndmask_b32 v{SS+1}, v{SS+1}, v{SG+3}, vcc',
           's_mov_b32 s44, 0x00f0000f', 's_mov_b32 s45, 0xf0000f00',
           f'v_cndmask_b32 v{SS+1}, 0, v{SS+1}, s[44:45]',
           f'v_mov_b32 v{SS+2}, v{SS+1}',
           f'v_permlane32_swap_b32 v{SS+1}, v{SS+2}',
           f'v_add_f32 v{SS+1}, v{SS+1}, v{SS+2}',
           f'v_mov_b32 v{SS+2}, v{SS+1}',
           f'v_permlane16_swap_b32 v{SS+1}, v{SS+2}',
           f'v_add_f32 v{SS+1}, v{SS+1}, v{SS+2}',
           f'v_add_f32_dpp v{SS}, v{SS}, v{SS} row_ror:8 row_mask:0xf bank_mask:0xf',
           f'v_add_f32_dpp v{SS+1}, v{SS+1}, v{SS+1} row_ror:8 row_mask:0xf bank_mask:0xf',
           f'v_mul_f32 v{SS}, {fbits(1/640)}, v{SS}',
           f'v_mul_f32 v{SS+1}, {fbits(1/640)}, v{SS+1}',
           f'v_fma_f32 v{SS+1}, -v{SS}, v{SS}, v{SS+1}',
           f'v_max_f32 v{SS+1}, 0, v{SS+1}',
           f'v_add_f32 v{SS+1}, {fbits(1e-5)}, v{SS+1}',
           f'v_rsq_f32 v{SS+1}, v{SS+1}',
           's_nop 0',
           f'v_mul_f32 v{SS}, v{SS}, v{SS+1}']
    for rho in range(8):
        lg.wait(('trb', rho))
        a(f'v_mfma_f32_16x16x32_bf16 {vr(D1+4*rho,4)}, {vr(FR+rho*6,4)}, {vr(BA,4)}, 0')
        if rho >= 4:
            for _ in range(2): a(fin.pop(0))
    for rho in range(8):
        lg.wait(('trc', rho))
        a(f'v_mfma_f32_16x16x16_bf16 {vr(D1+4*rho,4)}, {vr(FR+rho*6+4,2)}, {vr(BA2,2)}, {vr(D1+4*rho,4)}')
        for _ in range(2):
            if fin: a(fin.pop(0))
    assert not fin
    for rho in range(8):
        a(f'v_readlane_b32 s{76+2*rho}, v{SS+1}, {rho}')
        a(f'v_readlane_b32 s{77+2*rho}, v{SS}, {rho}')
    for rho in range(8): a(f'v_mul_f32 v{SF+2*rho}, s{77+2*rho}, v{CSUM}')
    for rho in range(8):
        d = D1 + 4*rho; sp = 76 + 2*rho; tb = SF + 2*rho
        a(f'v_pk_fma_f32 {vr(d,2)}, {vr(d,2)}, {sr(sp,2)}, {vr(tb,2)} op_sel_hi:[1,0,0] neg_lo:[0,0,1] neg_hi:[0,0,1]')
        a(f'v_pk_fma_f32 {vr(d+2,2)}, {vr(d+2,2)}, {sr(sp,2)}, {vr(tb,2)} op_sel_hi:[1,0,0] neg_lo:[0,0,1] neg_hi:[0,0,1]')
        if rho:
            e = d - 4
            a(f'v_cvt_pk_f16_f32 v{e}, v{e}, v{e+1}'); a(f'v_cvt_pk_f16_f32 v{e+1}, v{e+2}, v{e+3}')
            a(f'ds_write_b64 v12, {vr(e,2)} offset:{16*(rho-1)}')
    e = D1 + 28
    a(f'v_cvt_pk_f16_f32 v{e}, v{e}, v{e+1}'); a(f'v_cvt_pk_f16_f32 v{e+1}, v{e+2}, v{e+3}')
    a(f'ds_write_b64 v12, {vr(e,2)} offset:{16*7}')
    lg.wait_all()
    stamp(a, 3, stamps)
    a('s_barrier')
    AF = 64
    for rt in range(4): a(f'ds_read_b128 {vr(AF+rt*4,4)}, v13 offset:{rt*1024}')
    for f in range(4): a(f'ds_read_b128 {vr(BC+4*f,4)}, v5 offset:{f*1024}')
    D2 = 96
    for h in range(2):
        a(f's_waitcnt lgkmcnt({7-h})')
        a(f'v_mfma_f32_16x16x32_f16 {vr(D2+h*4,4)}, {vr(AF+h*4,4)}, {vr(BB,4)}, 0')
    for h in range(2):
        a(f's_waitcnt lgkmcnt({5-h})')
        a(f'v_mfma_f32_16x16x32_f16 {vr(D2+h*4,4)}, {vr(AF+(2+h)*4,4)}, {vr(BM,4)}, {vr(D2+h*4,4)}')
    a('s_waitcnt lgkmcnt(0)')
    ZF = 104
    for j in range(4): a(f'v_cvt_pk_f16_f32 v{ZF+j}, v{D2+2*j}, v{D2+2*j+1}')
    D3 = 108
    for f in range(4): a(f'v_mfma_f32_16x16x32_f16 {vr(D3+4*f,4)}, {vr(ZF,4)}, {vr(BC+4*f,4)}, 0')
    for tt in range(2):
        c = D3 + 8*tt; s_ = c + 4
        for e in range(2):
            a(f'v_add_f32 v{c+2*e}, v{c+2*e}, v{s_+2*e+1}')
            a(f'v_sub_f32 v{c+2*e+1}, v{c+2*e+1}, v{s_+2*e}')
        for e in range(2): a(f'v_cvt_pk_f16_f32 v{124+2*tt+e}, v{c+2*e}, v{c+2*e+1}')
        if tt: a(f'v_add_u32 v6, {16*TP}, v6')
        a(f'ds_write2_b32 v6, v{124+2*tt}, v{125+2*tt} offset0:0 offset1:8')
    a('s_waitcnt lgkmcnt(0)')
    a('s_barrier')
    for i in range(4): a(f'ds_read_b32 v{128+i}, v9 offset:{i*TP}')
    stamp(a, 4, stamps)
    a('s_cmp_eq_u32 s35, 0')
    a(f's_cbranch_scc1 {name}_short')
    for i in range(4):
        a(f's_waitcnt lgkmcnt({3-i})')
        a(f'buffer_store_dword v{128+i}, v3, s[12:15], s{36+i} offen {uflag}')
    if stamps: a(f's_branch {name}_fin')
    else: a('s_endpgm')
    a.label(f'{name}_short')
    for i in range(4):
        a(f's_waitcnt lgkmcnt({3-i})')
        a(f'buffer_store_short v{128+i}, v3, s[12:15], s{36+i} offen {uflag}')
    a(f's_branch {name}_fin')

    a.label(f'{name}_packers')
    a.reset_hist()
    a('s_sub_u32 s26, s25, 20'); a('s_mul_i32 s26, s26, 7'); a('s_add_u32 s26, s26, s24'); a('s_sub_u32 s26, s26, 1')
    a('s_sub_u32 s27, s2, 165')
    a('s_cmp_ge_u32 s25, 25')
    a('s_cselect_b32 s26, s27, s26')
    a('s_cmp_gt_u32 s26, 80')
    a(f's_cbranch_scc1 {name}_end')
    a('v_lshrrev_b32 v9, 2, v7')
    a('v_and_b32 v4, 3, v2')
    a('v_lshlrev_b32 v3, 4, v2')
    a('v_lshl_add_u32 v9, v8, 2, v9')
    a('s_waitcnt lgkmcnt(0)')
    srd(a, 12, 12, 13, ws_size(stamps))
    a('s_cmp_ge_u32 s26, 48')
    a(f's_cbranch_scc1 {name}_pack_w2')
    a('s_cmp_ge_u32 s22, 5')
    a(f's_cbranch_scc1 {name}_end')
    srd(a, 8, 16, 17, D*F*2)
    a('v_lshrrev_b32 v5, 3, v2')
    a('v_mul_u32_u24 v5, 3072, v5')
    a('v_and_b32 v6, 7, v2')
    a('v_lshl_add_u32 v5, v6, 4, v5')
    a('s_lshr_b32 s27, s26, 1'); a('s_and_b32 s28, s26, 1')
    a('s_mul_i32 s29, s28, 10'); a('s_lshl_b32 s30, s22, 1'); a('s_add_u32 s29, s29, s30')
    a(f's_mul_i32 s30, s29, {32*3072}'); a('s_lshl_b32 s31, s27, 7'); a('s_add_u32 s30, s30, s31')
    a('s_lshl_b32 s31, s22, 13')
    a('s_mov_b32 m0, s31')
    for i in range(8):
        a('buffer_load_dwordx4 v5, s[8:11], s30 offen lds')
        if i < 7:
            a(f's_add_u32 s30, s30, {8*3072}')
            a('s_add_u32 m0, m0, 1024')
    a('v_lshlrev_b32 v6, 7, v9')
    a('v_lshl_add_u32 v6, v4, 3, v6')
    a('v_add_u32 v6, s31, v6')
    for j in range(4): a(f'v_mov_b32 v{12+j}, 0x3f803f80')
    a('s_mul_i32 s33, s27, 43'); a('s_lshr_b32 s33, s33, 7')
    a('s_mul_i32 s34, s33, 3'); a('s_sub_u32 s34, s27, s34')
    a('s_mul_i32 s33, s33, 240')
    a('s_mul_i32 s35, s34, 120'); a('s_lshl_b32 s37, s29, 1'); a('s_add_u32 s35, s35, s37')
    for tl in range(4):
        a(f's_add_u32 s36, s35, {(tl//2)*60 + tl%2}')
        a(f's_add_u32 s37, s29, {tl*60+40}')
        a('s_cmp_eq_u32 s34, 2')
        a('s_cselect_b32 s36, s37, s36')
        a('s_add_u32 s36, s36, s33'); a('s_lshl_b32 s36, s36, 10'); a(f's_add_u32 s{40+tl}, s36, {W1P_OFF}')
    a('s_cmp_eq_u32 s34, 2')
    a('s_cselect_b32 s38, 1, 2'); a('s_lshl_b32 s38, s38, 10')
    a('v_add_u32 v16, s38, v3')
    for k2 in range(2):
        a(f's_waitcnt vmcnt({4-4*k2})')
        for tl in range(4):
            b = 20 + (k2*4+tl)*4
            a(f'ds_read_b64_tr_b16 {vr(b,2)}, v6 offset:{k2*4096+tl*32}')
            a(f'ds_read_b64_tr_b16 {vr(b+2,2)}, v6 offset:{k2*4096+tl*32+2048}')
    for k2 in range(2):
        for tl in range(4):
            b = 20 + (k2*4+tl)*4
            a(f's_waitcnt lgkmcnt({14-2*(k2*4+tl)})')
            a(f'buffer_store_dwordx4 {vr(b,4)}, v{3 if k2 == 0 else 16}, s[12:15], s{40+tl} offen {stflag}')
            a(f'v_mfma_f32_16x16x32_bf16 {vr(56+4*tl,4)}, {vr(b,4)}, v[12:15], {"0" if k2 == 0 else vr(56+4*tl,4)}')
    a('v_lshlrev_b32 v10, 4, v8')
    a('s_lshl_b32 s32, s22, 8'); a('s_add_u32 s32, s32, 40960')
    a('v_add_u32 v10, s32, v10')
    for tl in range(4): a(f'ds_write_b128 v10, {vr(56+4*tl,4)} offset:{64*tl}')
    a('s_waitcnt lgkmcnt(0)')
    a('s_barrier')
    a('s_cmp_lg_u32 s22, 0')
    a(f's_cbranch_scc1 {name}_fin')
    a('v_lshlrev_b32 v10, 2, v2')
    for w in range(5): a(f'ds_read_b32 v{72+w}, v10 offset:{40960+256*w}')
    a('s_mul_i32 s32, s28, 6144'); a('s_lshl_b32 s33, s27, 8'); a('s_add_u32 s32, s32, s33'); a(f's_add_u32 s32, s32, {CS_OFF}')
    a('s_waitcnt lgkmcnt(0)')
    for w in range(1, 5): a(f'v_add_f32 v72, v72, v{72+w}')
    a(f'buffer_store_dword v72, v10, s[12:15], s32 offen {stflag}')
    a(f's_branch {name}_fin')
    a.label(f'{name}_pack_w2')
    a.reset_hist()
    a('s_cmp_eq_u32 s26, 80')
    a(f's_cbranch_scc1 {name}_zero')
    a('s_cmp_ge_u32 s22, 6')
    a(f's_cbranch_scc1 {name}_end')
    srd(a, 8, 18, 19, D*F*2)
    a('s_sub_u32 s27, s26, 48'); a('s_mul_i32 s27, s27, 12'); a('s_lshl_b32 s32, s22, 1'); a('s_add_u32 s32, s32, s27')
    a('s_lshr_b32 s33, s32, 3'); a('s_and_b32 s34, s32, 7')
    a(f's_mul_i32 s35, s33, {32*1280}'); a('s_mul_i32 s36, s34, 160'); a('s_add_u32 s35, s35, s36')
    a('s_mul_i32 s36, s34, 48'); a('s_add_u32 s36, s36, s33'); a('s_mul_i32 s36, s36, 5120'); a(f's_add_u32 s40, s36, {W2P_OFF}')
    a(f's_add_u32 s41, s40, {48*5120}')
    a('s_mul_i32 s29, s22, 10240')
    a('s_mov_b32 m0, s29')
    a(f's_add_u32 s37, s35, {16*1280}')
    for i in range(5):
        a(f'v_add_u32 v10, {64*i}, v2')
        a('v_mul_u32_u24 v11, 205, v10'); a('v_lshrrev_b32 v11, 12, v11')
        a('v_mul_u32_u24 v12, 20, v11'); a('v_sub_u32 v12, v10, v12')
        a('v_mul_u32_u24 v11, 1280, v11')
        a(f'v_lshl_add_u32 v{14+i}, v12, 4, v11')
        a(f'buffer_load_dwordx4 v{14+i}, s[8:11], s35 offen lds')
        a('s_add_u32 m0, m0, 1024')
    for i in range(5):
        a(f'buffer_load_dwordx4 v{14+i}, s[8:11], s37 offen lds')
        if i < 4: a('s_add_u32 m0, m0, 1024')
    a('v_mul_u32_u24 v5, 320, v9')
    a('v_add_u32 v5, s29, v5')
    a('v_lshl_add_u32 v5, v4, 3, v5')
    a('v_add_u32 v13, 0x1000, v3')
    a('s_waitcnt vmcnt(0)')
    for blk in range(2):
        for i in range(5):
            b = 20 + (blk*5+i)*4
            a(f'ds_read_b64_tr_b16 {vr(b,2)}, v5 offset:{160*blk+32*i}')
            a(f'ds_read_b64_tr_b16 {vr(b+2,2)}, v5 offset:{160*blk+32*i+16*320}')
        for i in range(5):
            b = 20 + (blk*5+i)*4
            a(f's_waitcnt lgkmcnt({8-2*i})')
            if i < 4: a(f'buffer_store_dwordx4 {vr(b,4)}, v3, s[12:15], s{40+blk} offen offset:{1024*i} {stflag}')
            else: a(f'buffer_store_dwordx4 {vr(b,4)}, v13, s[12:15], s{40+blk} offen {stflag}')
    a(f's_branch {name}_fin')
    a.label(f'{name}_zero')
    a.reset_hist()
    a('v_lshlrev_b32 v3, 4, v0')
    for j in range(4): a(f'v_mov_b32 v{4+j}, 0')
    a(f's_mov_b32 s30, {FLAG_OFF}')
    a('buffer_store_dwordx4 v[4:7], v3, s[12:15], s30 offen')
    a.label(f'{name}_fin')
    if stamps:
        a.reset_hist()
        a('s_nop 7')
        write_stamps(a, 6, 0, 22)
    a.label(f'{name}_end')
    a('s_endpgm')
    return dict(vgpr=184, sgpr=96, accum=184, lds=LDS_A, threads=512)
```

```python
from common import *
from sched import Sched

ST_OFF = 81920
RED_OFF = ST_OFF + 4096
LDS_CD = RED_OFF + 61440

def gen_kCD(a, name, mapping='B', stamps=False, R=80, LAT=600, DEPTH=9, oflag='', pollpos=50, pause=0, verbose=False, R2=None, R3=None, D3=None, s2mode=0):
    a.raw(f'.globl {name}\n.p2align 8\n.type {name},@function\n{name}:')
    a.reset_hist()
    a('s_cmp_ge_u32 s2, 256')
    a(f's_cbranch_scc1 {name}_end')
    stamp(a, 0, stamps)
    a('s_load_dwordx2 s[8:9], s[0:1], 0')
    a('s_load_dwordx2 s[12:13], s[0:1], 96')
    a('s_load_dwordx2 s[16:17], s[0:1], 56')
    a('s_load_dwordx4 s[4:7], s[0:1], 72')
    a('v_lshrrev_b32 v1, 6, v0')
    a('v_and_b32 v2, 63, v0')
    a('v_readfirstlane_b32 s26, v1')
    emit_map(a, mapping, 22, 23)
    emit_rho_t1(a, 22, 24, 25)
    a('v_lshrrev_b32 v6, 3, v2')
    a('v_xor_b32 v7, v6, v2')
    a('v_and_b32 v7, 7, v7')
    a('v_mul_u32_u24 v6, 0xa000, v6')
    a('v_lshl_add_u32 v6, v7, 4, v6')
    a('s_lshl_b32 s32, s26, 9'); a('s_add_u32 s32, s32, s24'); a('s_mul_i32 s32, s32, 1280')
    a(f's_add_u32 s33, s32, {256*1280}')
    a('s_lshl_b32 s27, s26, 11')
    a('s_sub_u32 s25, 32, s24'); a('s_and_b32 s25, s25, 31')
    a('s_mul_i32 s34, s26, 2560')
    a(f's_add_u32 s35, s34, {U_OFF - 16}')
    a(f's_sub_u32 s34, {U_OFF + (639-15)*16}, s34')
    a('s_cmp_lt_u32 s26, 2')
    a('s_cselect_b64 vcc, -1, 0')
    a('s_cselect_b32 s28, 1, -1')
    a('s_cselect_b32 s30, s24, s25')
    a('s_cselect_b32 s38, 0, 0x80000000')
    a('s_cselect_b32 s39, 0, 1')
    a('s_cselect_b32 s35, s35, s34')
    a('s_lshl_b32 s28, s28, 8')
    a(f's_or_b32 s38, s38, {fbits(1/2048)}')
    a('s_cmp_eq_u32 s24, 0'); a('s_cselect_b32 s39, 0, s39')
    a(f's_mul_i32 s31, s30, {U_T1}'); a('s_add_u32 s31, s31, s35')
    a('s_lshl_b32 s36, s23, 2'); a('s_add_u32 s36, s36, s26')
    a(f's_mul_i32 s37, s36, {60*1024}'); a(f's_add_u32 s58, s37, {W2P_OFF}'); a(f's_add_u32 s37, s37, {W1P_OFF}'); a('s_add_u32 s29, s37, 40960')
    a('s_waitcnt lgkmcnt(0)')
    srd(a, 8, 8, 9, S*D*2)
    Sx = Sched(a, R=R, LAT=LAT, DEPTH=DEPTH)
    t = Sx
    for ap in range(10):
        for o in range(2):
            Sx.q([f's_add_u32 m0, s27, {ap*8192 + o*1024 - 128*ap}', f'buffer_load_dwordx4 v6, s[8:11], s{32+o} offen offset:{128*ap} lds'], 'x')
    def UA(tl, ks2): return (tl*2+ks2)*4
    for tl in range(10):
        for ks2 in range(2):
            vo = (12 if tl == 0 else 10) + ks2
            L = [f'buffer_load_dwordx4 {ar(UA(tl,ks2),4)}, v{vo}, s[12:15], s31 offen']
            if ks2 == 1 and tl < 9: L.append('s_add_u32 s31, s31, s28')
            Sx.q(L, ('u', tl//2), gate='addr')
    def WA(fr): return 80 + fr*4 if fr < 44 else (fr-44)*4
    for fr in range(60):
        ks_, i_ = divmod(fr, 3)
        if i_ < 2:
            m = 2*ks_ + i_
            L = [f'buffer_load_dwordx4 {ar(WA(fr),4)}, v5, s[12:15], s37 offen offset:{1024*(m%4)}']
            if m % 4 == 3: L.append('s_add_u32 s37, s37, 4096')
        else:
            L = [f'buffer_load_dwordx4 {ar(WA(fr),4)}, v5, s[12:15], s29 offen offset:{1024*(ks_%4)}']
            if ks_ % 4 == 3: L.append('s_add_u32 s29, s29, 4096')
        Sx.q(L, ('w', fr//3), gate='s2done' if fr >= 44 else None)
    for _ in range(4): Sx.pop()
    for l in (f's_mov_b32 s14, {ws_size(stamps)}', 's_mov_b32 s15, 0x20000', f's_mov_b32 s18, {F*2}', 's_mov_b32 s19, 0x20000',
              's_mov_b32 s80, s4', 's_mov_b32 s81, s5', f's_mov_b32 s82, {D*2}', 's_mov_b32 s83, 0x20000',
              's_mov_b32 s84, s6', 's_mov_b32 s85, s7', f's_mov_b32 s86, {S*D*2}', 's_mov_b32 s87, 0x20000'): t(l)
    t('v_and_b32 v3, 15, v2')
    t('v_lshrrev_b32 v4, 4, v2')
    t('v_lshlrev_b32 v5, 4, v2')
    t('v_sub_u32 v11, 15, v3')
    t('v_cndmask_b32 v10, v11, v3, vcc')
    t('v_mul_u32_u24 v11, 5120, v4')
    t('v_lshl_add_u32 v10, v10, 4, v11')
    t('v_add_u32 v11, 0x5000, v10')
    t('v_and_b32 v12, 0xcf, v0')
    t('v_cmp_eq_u32 vcc, 0, v12')
    t('v_mov_b32 v14, 0x7ff00000')
    t('v_cndmask_b32 v12, v10, v14, vcc')
    t('v_cndmask_b32 v13, v11, v14, vcc')
    Sx.gate('addr')
    t('v_xor_b32 v7, v4, v3'); t('v_and_b32 v7, 7, v7'); t('v_lshlrev_b32 v7, 4, v7'); t('v_lshl_add_u32 v7, v3, 7, v7')
    t('v_xor_b32 v8, 64, v7')
    t('v_add_u32 v24, 0xa000, v7'); t('v_add_u32 v25, 0xa000, v8')
    t('s_mul_i32 s40, s26, 5'); t('s_lshr_b32 s41, s40, 1'); t('s_lshl_b32 s41, s41, 13')
    t('s_and_b32 s42, s26, 1'); t('s_lshl_b32 s43, s42, 6'); t('s_lshl_b32 s42, s42, 13'); t('s_add_u32 s42, s42, s41')
    t('v_xor_b32 v26, s43, v7'); t('v_add_u32 v26, s41, v26')
    t('v_xor_b32 v27, s43, v8'); t('v_add_u32 v27, s42, v27')
    def own(kk, tt): return (26 + (kk & 1), (kk//2)*8192 + tt*2048)
    t('v_and_b32 v28, 1, v3'); t('v_lshlrev_b32 v28, 4, v28'); t('v_mov_b32 v29, 0x3f80'); t('v_lshlrev_b32 v28, v28, v29')
    t('v_lshrrev_b32 v29, 1, v3')
    t('v_lshlrev_b32 v30, 2, v4'); t('v_sub_u32 v29, v29, v30')
    for q in range(4):
        t(f'v_cmp_eq_u32 vcc, {q}, v29'); t(f'v_cmp_eq_u32 s[44:45], {q-8}, v29')
        t(f'v_cndmask_b32 v{16+q}, 0, v28, vcc'); t(f'v_cndmask_b32 v{20+q}, 0, v28, s[44:45]')
    M = 32; T = 64
    t('v_lshlrev_b32 v14, 5, v3'); t('v_add_u32 v14, s24, v14')
    t('v_lshlrev_b32 v15, 1, v4'); t('v_cvt_f32_u32 v15, v15')
    t('v_xor_b32 v28, s39, v3'); t('v_lshlrev_b32 v28, 31, v28'); t('v_or_b32 v28, 0x38003800, v28')
    t('v_cmp_eq_u32 vcc, 0, v4')
    for tt in range(4):
        t(f'v_add_u32 v29, {512*tt}, v14')
        t('v_cvt_f32_u32 v29, v29')
        t('v_mul_f32 v29, s38, v29')
        t(f'v_mul_f32 v{T}, v29, v15')
        t(f'v_sub_f32 v30, 0, v{T}')
        for ks2 in range(2):
            for j in range(4):
                if ks2 == 0 and j == 0: continue
                c = [8*ks2, 32-8*ks2, 8*ks2+1, 31-8*ks2][j]
                t(f'v_fmamk_f32 v{T+ks2*4+j}, v29, {fbits(float(c))}, v{T if j%2==0 else 30}')
        t(f'v_mul_f32 v31, {fbits(16.0)}, v29')
        t(f'v_cndmask_b32 v{T+1}, v{T+1}, v31, vcc')
        for j in range(8): t(f'v_sin_f32 v{T+8+j}, v{T+j}')
        for j in range(8): t(f'v_cos_f32 v{T+j}, v{T+j}')
        for j in range(8): t(f'v_cvt_pk_f16_f32 v{M+tt*8+j}, v{T+j}, v{T+8+j}')
        t(f'v_cndmask_b32 v{M+tt*8}, v{M+tt*8}, v28, vcc')
    if verbose: print('Mgen done', Sx.clock)
    Sx.vwait('x', 20)
    a('s_barrier')
    stamp(a, 1, stamps)
    if verbose: print('x barrier', Sx.clock)
    Y = 64; XF = 224
    def YG(kk, tt): return Y + (kk*4+tt)*8
    def xread(kk):
        for tt in range(4):
            va, off = own(kk, tt)
            Sx.ds(f'ds_read_b128 {vr(XF+(kk&1)*16+tt*4,4)}, v{va} offset:{off}', ('xr', kk))
    def xadd(kk, pend=None):
        if kk + 1 < 5: xread(kk+1)
        Sx.lwait(('xr', kk), 100 if kk == 0 else 0)
        c = 0
        for tt in range(4):
            for i in range(2):
                t(f'v_mfma_f32_16x16x32_bf16 {vr(YG(kk,tt)+4*i,4)}, {vr(16+4*i,4)}, {vr(XF+(kk&1)*16+tt*4,4)}, 0')
                c += 1
                if pend and c >= 3:
                    x = pend.pop(0)
                    (Sx.ds(x, 'hw') if x.startswith('ds_') else t(x))
    xread(0)
    nx = {0: 5, 1: 1, 2: 2}[s2mode]
    for kk in range(nx): xadd(kk)
    def packlist(kk):
        L = []
        for tt in range(4):
            b = YG(kk, tt)
            for j in range(4): L.append(f'v_cvt_pk_bf16_f32 v{b+j}, v{b+2*j}, v{b+2*j+1}')
            va, off = own(kk, tt)
            L.append(f'ds_write_b128 v{va}, {vr(b,4)} offset:{off}')
        return L
    pend = []
    def emitp(x): (Sx.ds(x, 'hw') if x.startswith('ds_') else t(x))
    for kk in range(5):
        Sx.vwait(('u', kk), 4)
        c = 0
        order = [(ks2, tt, i) for ks2 in range(2) for tt in range(4) for i in range(2)]
        if kk == 4: order = [(ks2, tt, i) for tt in range(4) for ks2 in range(2) for i in range(2)]
        for ks2, tt, i in order:
            d = vr(YG(kk,tt)+4*i, 4)
            t(f'v_mfma_f32_16x16x32_f16 {d}, {ar(UA(2*kk+i,ks2),4)}, {vr(M+tt*8+ks2*4,4)}, {d}')
            c += 1
            if c >= 3 or s2mode:
                for _ in range(2 if not s2mode else 1):
                    if pend: emitp(pend.pop(0))
        while pend: emitp(pend.pop(0))
        pend = packlist(kk)
        if nx < 5: xadd(nx, pend); nx += 1
    Sx.gate('s2done')
    while pend: emitp(pend.pop(0))
    Sx.lwait_all()
    a('s_barrier')
    stamp(a, 2, stamps)
    if verbose: print('h barrier', Sx.clock)
    if R2: Sx.R = R2
    BF = 32
    def bread(ks, tts=range(4)):
        for tt in tts:
            off = (ks//2)*8192 + tt*2048
            va = 7 + (ks & 1)
            if off >= 40960: va = 24 + (ks & 1); off -= 40960
            Sx.ds(f'ds_read_b128 {vr(BF+(ks&1)*16+tt*4,4)}, v{va} offset:{off}', ('b', ks))
    def UP(gi): return YG(gi//4, gi%4) + 4
    def AC(i, tt): return UP(i*4+tt)
    bread(0)
    for j in range(4): t(f'v_mov_b32 v{16+j}, 0x3f803f80')
    SS = 224; SG = 240
    stat = []
    for kk in range(5):
        for tt in range(4):
            h = vr(YG(kk,tt), 4)
            stat.append(f'v_mfma_f32_16x16x32_bf16 {vr(SS+4*tt,4)}, v[16:19], {h}, {"0" if kk == 0 else vr(SS+4*tt,4)}')
            stat.append(f'v_mfma_f32_16x16x32_bf16 {vr(SG+4*tt,4)}, {h}, {h}, {"0" if kk == 0 else vr(SG+4*tt,4)}')
    def CSR(p, i): return UP(12 + p*3 + i)
    def B1R(i): return UP(18) + 2*i if i < 2 else UP(19)
    t('s_mul_i32 s42, s23, 12'); t('s_lshl_b32 s43, s26, 1'); t('s_add_u32 s43, s43, s42')
    t('s_add_u32 s44, s42, 8'); t('s_add_u32 s44, s44, s26')
    t('s_lshl_b32 s45, s43, 5'); t('s_lshl_b32 s46, s44, 5')
    t('s_lshl_b32 s47, s43, 6'); t(f's_add_u32 s47, s47, {CS_OFF}')
    t('s_lshl_b32 s48, s44, 6'); t(f's_add_u32 s48, s48, {CS_OFF}')
    t('s_add_u32 s49, s47, 6144'); t('s_add_u32 s50, s48, 6144')
    t('v_lshlrev_b32 v20, 3, v4')
    t('v_lshlrev_b32 v21, 4, v4')
    for _ in range(6): t(stat.pop(0))
    extra = []
    for i in range(3):
        so, off = (45, 32*i) if i < 2 else (46, 0)
        extra.append(([f'buffer_load_dwordx2 {vr(B1R(i),2)}, v20, s[16:19], s{so} offen offset:{off}'], 'bc', None, 0.3))
    for p in range(2):
        for i in range(3):
            so, off = (47+2*p, 64*i) if i < 2 else (48+2*p, 0)
            extra.append(([f'buffer_load_dwordx4 {vr(CSR(p,i),4)}, v21, s[12:15], s{so} offen offset:{off}'], 'bc', None, 0.3))
    pos = max(0, len(Sx.Q) - 15)
    Sx.Q[pos:pos] = extra
    def W2A(q): return 64 + 4*q if q < 4 else WA(q-4)
    POLL = 22
    for q in range(60):
        if q == pollpos:
            Sx.q([f'buffer_load_dwordx2 {vr(POLL,2)}, v9, s[12:15], s59 offen sc1'], 'poll', gate='signalled', cost=0.3)
        L = [f'buffer_load_dwordx4 {ar(W2A(q),4)}, v5, s[12:15], s58 offen offset:{1024*(q%4)}']
        if q % 4 == 3: L.append('s_add_u32 s58, s58, 4096')
        Sx.q(L, 'w2', gate=None if q < 4 else ('ks', (q-4)//3))
    SA = 224
    side = []
    for ks in range(20):
        Sx.vwait(('w', ks), 3)
        Sx.lwait(('b', ks))
        c = 0
        for i in range(3):
            for tt in range(4):
                d = vr(AC(i,tt), 4)
                t(f'v_mfma_f32_16x16x32_bf16 {d}, {ar(WA(ks*3+i),4)}, {vr(BF+(ks&1)*16+tt*4,4)}, {"0" if ks == 0 else d}')
                c += 1
                if c in (1, 2, 3, 4) and ks + 1 < 20: bread(ks + 1, [c-1])
                if c in (6, 9, 12) and stat: t(stat.pop(0))
                for _ in range(2):
                    if side: t(side.pop(0))
        Sx.gate(('ks', ks))
        if pause and ks == 19 - pause: Sx.hold += 1
        if ks == 12:
            assert not stat
            side += ['v_and_b32 v22, 3, v3', 'v_cmp_eq_u32 s[52:53], 1, v22', 'v_cmp_eq_u32 s[54:55], 2, v22', 'v_cmp_eq_u32 s[56:57], 3, v22',
                     'v_lshlrev_b32 v30, 3, v3', 's_lshl_b32 s40, s26, 9', f's_add_u32 s40, s40, {ST_OFF}', 'v_add_u32 v30, s40, v30']
            for tt in range(4):
                g = SG + 4*tt
                side += [f'v_cndmask_b32 v{SS+4*tt+1}, v{g}, v{g+1}, s[52:53]',
                         f'v_cndmask_b32 v{SS+4*tt+1}, v{SS+4*tt+1}, v{g+2}, s[54:55]',
                         f'v_cndmask_b32 v{SS+4*tt+1}, v{SS+4*tt+1}, v{g+3}, s[56:57]']
            side += ['v_lshlrev_b32 v29, 3, v2', f'v_add_u32 v29, {ST_OFF}, v29']
        if ks == 13:
            assert not side
            Sx.hold += 1
            t('s_mov_b32 exec_lo, 0x00f0000f'); t('s_mov_b32 exec_hi, 0xf0000f00')
            for tt in range(4): Sx.ds(f'ds_write_b64 v30, {vr(SS+4*tt,2)} offset:{128*tt}', 'stw')
            t('s_mov_b64 exec, -1')
            Sx.hold -= 1
        if ks == 14:
            Sx.lwait('stw')
            a('s_barrier')
            for w in range(4): Sx.ds(f'ds_read_b64 {vr(SA+2*w,2)}, v29 offset:{512*w}', 'str')
        if ks == 15:
            Sx.lwait('str')
            side += [f'v_add_f32 v{SA}, v{SA}, v{SA+2}', f'v_add_f32 v{SA+1}, v{SA+1}, v{SA+3}',
                     f'v_add_f32 v{SA+4}, v{SA+4}, v{SA+6}', f'v_add_f32 v{SA+5}, v{SA+5}, v{SA+7}',
                     f'v_add_f32 v{SA}, v{SA}, v{SA+4}', f'v_add_f32 v{SA+1}, v{SA+1}, v{SA+5}',
                     f'v_mul_f32 v{SA}, {fbits(1/640)}, v{SA}', f'v_mul_f32 v{SA+1}, {fbits(1/640)}, v{SA+1}',
                     f'v_fma_f32 v{SA+1}, -v{SA}, v{SA}, v{SA+1}', f'v_max_f32 v{SA+1}, 0, v{SA+1}',
                     f'v_add_f32 v{SA+1}, {fbits(1e-5)}, v{SA+1}', f'v_rsq_f32 v{SA+1}, v{SA+1}',
                     'v_lshlrev_b32 v31, 3, v2', 'v_add_u32 v31, s40, v31',
                     f'v_mul_f32 v{SA}, v{SA}, v{SA+1}']
        if ks == 16:
            assert not side
            Sx.ds(f'ds_write_b64 v31, {vr(SA,2)} offset:2048', 'stw2')
            for tt in range(4): Sx.ds(f'ds_read_b64 {vr(SA+8+2*tt,2)}, v30 offset:{2048+tt*128}', 'str2')
            Sx.vwait('bc', 9)
            for i in range(3):
                for r in range(4): side.append(f'v_add_f32 v{CSR(0,i)+r}, v{CSR(0,i)+r}, v{CSR(1,i)+r}')
            for i in range(3):
                for h in range(2):
                    side.append(f'v_lshlrev_b32 v{CSR(1,i)+2*h}, 16, v{B1R(i)+h}')
                    side.append(f'v_and_b32 v{CSR(1,i)+2*h+1}, 0xffff0000, v{B1R(i)+h}')
        if ks == 17:
            assert not side
            Sx.lwait('str2')
            for tt in range(4):
                for i in range(3):
                    for r in range(4):
                        side.append(f'v_fma_f32 v{AC(i,tt)-4+r}, -v{SA+8+2*tt}, v{CSR(0,i)+r}, v{CSR(1,i)+r}')
    assert not side
    stamp(a, 3, stamps)
    if verbose: print('ffn1 done', Sx.clock)
    ST = SA + 8
    t('s_mul_i32 s41, s22, 48'); t('s_mul_i32 s42, s23, 6'); t('s_add_u32 s51, s41, s42')
    t('s_add_u32 s42, s51, s26'); t('s_lshl_b32 s42, s42, 12'); t(f's_add_u32 s42, s42, {R_OFF}')
    t('s_lshr_b32 s43, s26, 1'); t('s_lshl_b32 s49, s43, 12'); t(f's_add_u32 s49, s49, {RED_OFF}')
    t('s_add_u32 s43, s43, s51'); t('s_add_u32 s43, s43, 4'); t('s_lshl_b32 s43, s43, 12')
    t('s_and_b32 s44, s26, 1'); t('s_lshl_b32 s50, s44, 3'); t('s_add_u32 s50, s50, s49')
    t('s_lshl_b32 s44, s44, 11'); t('s_add_u32 s43, s43, s44'); t(f's_add_u32 s43, s43, {R_OFF}'); t('s_add_u32 s49, s49, s44')
    t('v_add_u32 v10, s50, v5'); t('v_add_u32 v11, s49, v5')
    def epi(i, tt):
        ac = AC(i, tt); tm = ac - 4
        for h in range(2):
            t(f'v_pk_fma_f32 {vr(ac+2*h,2)}, {vr(ac+2*h,2)}, {vr(ST+2*tt,2)}, {vr(tm+2*h,2)} op_sel:[0,1,0] op_sel_hi:[1,1,1]')
        for r in range(4): t(f'v_max_f32 v{ac+r}, 0, v{ac+r}')
        for h in range(2): t(f'v_pk_mul_f32 {vr(ac+2*h,2)}, {vr(ac+2*h,2)}, {vr(ac+2*h,2)}')
        dst = YG(3, tt) + 2*i if i < 2 else YG(4, tt)
        for h in range(2): t(f'v_cvt_pk_bf16_f32 v{dst+h}, v{ac+2*h}, v{ac+2*h+1}')
    for i in range(2): epi(i, 0)
    Sx.mem(f'buffer_store_dwordx4 {vr(YG(3,0),4)}, v5, s[12:15], s42 offen sc1', 'rst')
    for tt in range(4):
        epi(2, tt)
        Sx.ds(f'ds_write_b64 v10, {vr(YG(4,tt),2)} offset:{1024*tt}', 'xw')
    for tt in range(1, 3):
        for i in range(2): epi(i, tt)
        Sx.mem(f'buffer_store_dwordx4 {vr(YG(3,tt),4)}, v5, s[12:15], s42 offen offset:{1024*tt} sc1', 'rst')
    Sx.lwait('xw')
    a('s_barrier')
    for j in range(2): Sx.ds(f'ds_read_b128 {vr(YG(4,j),4)}, v11 offset:{1024*j}', 'xr2')
    for i in range(2): epi(i, 3)
    Sx.mem(f'buffer_store_dwordx4 {vr(YG(3,3),4)}, v5, s[12:15], s42 offen offset:3072 sc1', 'rst')
    Sx.lwait('xr2')
    for j in range(2): Sx.mem(f'buffer_store_dwordx4 {vr(YG(4,j),4)}, v5, s[12:15], s43 offen offset:{1024*j} sc1', 'rst')
    if pause: Sx.hold -= 1
    if verbose: print('r stored', Sx.clock)
    ACC = 32
    def acc(u, i): return ACC + (u*5+i)*4
    B2 = 112
    t('s_mul_i32 s45, s23, 160')
    for i in range(5):
        Sx.mem(f'buffer_load_dwordx2 {vr(B2+2*i,2)}, v20, s[80:83], s45 offen offset:{32*i}', 'b2', 0.3)
    t('s_lshl_b32 s46, s22, 8'); t(f's_add_u32 s46, s46, {FLAG_OFF}')
    t('s_lshl_b32 s59, s26, 6'); t('s_add_u32 s59, s59, s46')
    t('s_lshr_b32 s47, s23, 1'); t('s_lshl_b32 s47, s47, 6'); t('s_add_u32 s46, s46, s47')
    t('s_and_b32 s47, s23, 1'); t('s_lshl_b32 s47, s47, 2'); t('s_add_u32 s46, s46, s47')
    t('v_mov_b32 v9, 0')
    t('v_mov_b32 v28, 1')
    t('s_mul_i32 s47, s23, 5')
    for i in range(5):
        t(f's_add_u32 s48, s47, {i}')
        t('s_lshr_b32 s49, s48, 2'); t('s_lshl_b32 s49, s49, 13'); t('s_add_u32 s49, s49, s27')
        t('s_and_b32 s50, s48, 1'); t('s_lshl_b32 s50, s50, 3'); t('s_add_u32 s49, s49, s50')
        t('s_and_b32 s50, s48, 2'); t('s_lshl_b32 s50, s50, 5')
        t('v_xor_b32 v29, s50, v7'); t('v_add_u32 v29, s49, v29')
        Sx.ds(f'ds_read_b64 {vr(B2+10+2*i,2)}, v29', 'hres')
    for u in range(4):
        t(f'v_add_u32 v{10+u}, {u}, v1'); t(f'v_and_b32 v{10+u}, 3, v{10+u}')
        t(f'v_mul_u32_u24 v{14+u}, 15360, v{10+u}')
        t(f'v_lshl_add_u32 v{10+u}, v{10+u}, 10, v5')
        t(f'v_add_u32 v{14+u}, v{14+u}, v5'); t(f'v_add_u32 v{14+u}, {RED_OFF}, v{14+u}')
    t('s_mul_i32 s48, s26, 12'); t('s_add_u32 s48, s48, s41'); t('s_lshl_b32 s48, s48, 12'); t(f's_add_u32 s48, s48, {R_OFF}')
    Sx.vwait('rst')
    a('s_barrier')
    Sx.hold += 1
    t('s_cmp_lg_u32 s26, 0')
    t(f's_cbranch_scc1 {name}_nosig')
    t('s_mov_b64 exec, 1')
    t('buffer_store_dword v28, v9, s[12:15], s46 offen sc1')
    t('s_mov_b64 exec, -1')
    a.label(f'{name}_nosig')
    Sx.hold -= 1
    Sx.gate('signalled')
    stamp(a, 4, stamps)
    if verbose: print('signalled', Sx.clock)
    Sx.lwait('hres'); Sx.vwait('b2')
    for q in range(10):
        t(f'v_lshlrev_b32 v{ACC+2*q}, 16, v{B2+q}'); t(f'v_and_b32 v{ACC+2*q+1}, 0xffff0000, v{B2+q}')
        t(f'v_lshlrev_b32 v132, 16, v{B2+10+q}'); t(f'v_and_b32 v133, 0xffff0000, v{B2+10+q}')
        t(f'v_pk_add_f32 {vr(ACC+2*q,2)}, {vr(ACC+2*q,2)}, v[132:133]')
    t('s_lshl_b32 s49, s26, 12')
    t('v_mul_u32_u24 v18, 176, v3'); t('v_add_u32 v18, v18, v20'); t('v_add_u32 v18, s49, v18')
    t('s_lshl_b32 s50, s26, 9'); t('s_add_u32 s50, s50, s24'); t('s_mul_i32 s50, s50, 1280'); t('s_add_u32 s50, s50, s45')
    for q in range(3):
        t(f'v_add_u32 v30, {64*q}, v2')
        t('v_mul_u32_u24 v31, 205, v30'); t('v_lshrrev_b32 v31, 11, v31')
        t('v_mul_u32_u24 v19, 10, v31'); t('v_sub_u32 v30, v30, v19'); t('v_lshlrev_b32 v30, 4, v30')
        t(f'v_mul_u32_u24 v{24+q}, 176, v31'); t(f'v_add_u32 v{24+q}, v{24+q}, v30'); t(f'v_add_u32 v{24+q}, s49, v{24+q}')
        t(f'v_mul_u32_u24 v{27+q}, 0xa000, v31'); t(f'v_add_u32 v{27+q}, v{27+q}, v30')
    t('v_cmp_gt_u32 vcc, 32, v2'); t('v_mov_b32 v30, 0x7ff00000'); t('v_cndmask_b32 v29, v30, v29, vcc')
    Sx.need('poll', 1)
    Sx.flush()
    assert not Sx.Q
    Sx.vwait('poll')
    a('s_mov_b32 s44, 0')
    a.label(f'{name}_chk')
    a(f'v_and_b32 v{POLL}, v{POLL}, v{POLL+1}')
    a(f'v_readfirstlane_b32 s47, v{POLL}')
    a('s_cmp_eq_u32 s47, 1')
    a(f's_cbranch_scc1 {name}_go')
    a('s_add_u32 s44, s44, 1')
    a('s_cmp_gt_u32 s44, 0x100000')
    a(f's_cbranch_scc1 {name}_go')
    a(f'buffer_load_dwordx2 {vr(POLL,2)}, v9, s[12:15], s59 offen sc1')
    a('s_waitcnt vmcnt(0)')
    a(f's_branch {name}_chk')
    a.label(f'{name}_go')
    stamp(a, 5, stamps)
    if verbose: print('go', Sx.clock)
    RF = 136; NRF = 30
    if R3: Sx.R = R3
    if D3: Sx.DEPTH = D3
    uorder = [1, 2, 3, 0]
    for li in range(48):
        u = uorder[li // 12]; ks = li % 12
        L = [f'buffer_load_dwordx4 {vr(RF+(li%NRF)*4,4)}, v{10+u}, s[12:15], s48 offen sc1']
        L.append('s_add_u32 s48, s48, 4096' if ks < 11 else f's_sub_u32 s48, s48, {11*4096}')
        Sx.q(L, ('r', li), gate=None if li < NRF else ('rc', li - NRF))
    for _ in range(4): Sx.pop()
    Sx.vwait('w2')
    side = []
    for li in range(48):
        u = uorder[li // 12]; ks = li % 12
        Sx.vwait(('r', li), 1)
        for i in range(5):
            d = vr(acc(u,i), 4)
            cc = '0' if (ks == 0 and u != 0) else d
            t(f'v_mfma_f32_16x16x32_bf16 {d}, {ar(W2A(ks*5+i),4)}, {vr(RF+(li%NRF)*4,4)}, {cc}')
            for _ in range(2):
                if side:
                    x = side.pop(0)
                    if x.startswith('ds_'): Sx.ds(x, 'red'); break
                    t(x)
        Sx.gate(('rc', li))
        if ks == 1 and li >= 12:
            up = uorder[li // 12 - 1]
            for i in range(5): side.append(f'ds_write_b128 v{14+up}, {vr(acc(up,i),4)} offset:{((up-1)*5+i)*1024}')
        if li == 36 + 4:
            assert not side
            Sx.lwait_all(0)
            a('s_barrier')
            for s_ in range(3):
                for i in range(5): side.append(f'ds_read_b128 {vr(acc(1+s_,i),4)}, v14 offset:{(s_*5+i)*1024}')
        if li == 36 + 8:
            assert not side
            Sx.lwait_all(0)
            for q in range(20): side.append(f'v_add_f32 v{acc(1,0)+q}, v{acc(1,0)+q}, v{acc(2,0)+q}')
            for q in range(10): side.append(f'v_add_f32 v{acc(1,0)+q}, v{acc(1,0)+q}, v{acc(3,0)+q}')
    assert not side
    for q in range(10, 20): t(f'v_add_f32 v{acc(1,0)+q}, v{acc(1,0)+q}, v{acc(3,0)+q}')
    stamp(a, 6, stamps)
    if verbose: print('ffn2 done', Sx.clock)
    for i in range(5):
        for h in range(2):
            t(f'v_pk_add_f32 {vr(acc(0,i)+2*h,2)}, {vr(acc(0,i)+2*h,2)}, {vr(acc(1,i)+2*h,2)}')
        for h in range(2):
            t(f'v_cvt_pk_bf16_f32 v{B2+2*i+h}, v{acc(0,i)+2*h}, v{acc(0,i)+2*h+1}')
        t(f'ds_write_b64 v18, {vr(B2+2*i,2)} offset:{32*i}')
    for q in range(3): t(f'ds_read_b128 {vr(RF+4*q,4)}, v{24+q}')
    for q in range(3):
        a(f's_waitcnt lgkmcnt({2-q})')
        a(f'buffer_store_dwordx4 {vr(RF+4*q,4)}, v{27+q}, s[84:87], s50 offen {oflag}')
    if stamps:
        write_stamps(a, 8, 1, 26)
    a.label(f'{name}_end')
    a('s_endpgm')
    return dict(vgpr=512, sgpr=96, accum=256, lds=LDS_CD, threads=256)
```

```python
import build2, kCD4, kA2, kA6
from build2 import *
build2.gen_kCD = kCD4.gen_kCD
build2.gen_kA = kA2.gen_kA
build(f'v18a.s', akw=dict(stflag='sc1'), ckw=dict(DEPTH=8))
build(f'v18b.s', akw=dict(stflag='sc1', qrot=20), ckw=dict(DEPTH=8))
build2.gen_kA = kA6.gen_kA
build(f'v18c.s', akw=dict(stflag='sc1', qrot=20, stage=2), ckw=dict(DEPTH=8))
```

```python
import sys
sys.path.insert(0, 'gen')
from layout import *
src = open(sys.argv[1]).read()
TS = CS_OFF + 0x7000
def patch(mode):
    s = src
    s = s.replace("    s_cbranch_scc1 fnet_a_kernel_end\n", "    s_cbranch_scc1 fnet_a_kernel_end\n    s_memrealtime s[60:61]\n", 1)
    i = s.index("    s_mov_b32 s15, 0x20000\n") + len("    s_mov_b32 s15, 0x20000\n")
    s = s[:i] + f"""    s_cmp_eq_u32 s2, 0
    s_cselect_b32 s62, {TS}, 0x7ff00000
    v_mov_b32 v118, s60
    v_mov_b32 v119, 0
    buffer_store_dword v118, v119, s[12:15], s62 offen
""" + s[i:]
    s = s.replace("    s_cbranch_scc1 fnet_cd_kernel_end\n", "    s_cbranch_scc1 fnet_cd_kernel_end\n    s_memrealtime s[60:61]\n", 1)
    tail = f"""    s_cmp_lg_u32 s2, 0
    s_cbranch_scc1 fnet_cd_kernel_end
    s_waitcnt vmcnt(0)
    s_memrealtime s[62:63]
    v_mov_b32 v1, 0
    s_mov_b32 s66, {TS}
    buffer_load_dword v2, v1, s[12:15], s66 offen
    s_waitcnt vmcnt(0) lgkmcnt(0)
    v_readfirstlane_b32 s64, v2
    s_nop 3
"""
    if mode == 1: tail += "    s_sub_u32 s65, s60, s64\n"
    elif mode == 2: tail += "    s_sub_u32 s65, s62, s60\n"
    else: tail += "    s_mov_b32 s65, 0\n"
    tail += """    s_min_u32 s65, s65, 5000
    s_lshl_b32 s65, s65, 2
diag_spin:
    s_memrealtime s[68:69]
    s_waitcnt lgkmcnt(0)
    s_sub_u32 s67, s68, s62
    s_cmp_lt_u32 s67, s65
    s_cbranch_scc1 diag_spin
fnet_cd_kernel_end:
"""
    s = s.replace("fnet_cd_kernel_end:\n", tail, 1)
    open(f'diag{mode}.s', 'w').write(s)
for m in (0, 1, 2): patch(m)
```

```python
from common import *
from sched import Sched

ST_OFF = 81920
RED_OFF = ST_OFF + 4096
LDS_CD = RED_OFF + 61440

def gen_kCD(a, name, mapping='B', stamps=False, R=80, LAT=600, DEPTH=9, oflag='', pollpos=50, pause=0, verbose=False, R2=None, R3=None, D3=None, s2mode=0, strict=0, smode=0):
    def stamp(a_, idx, on, mode=0):
        if on and mode == smode: a_(f's_memrealtime s[{60+2*idx}:{61+2*idx}]')

    a.raw(f'.globl {name}\n.p2align 8\n.type {name},@function\n{name}:')
    a.reset_hist()
    a('s_cmp_ge_u32 s2, 256')
    a(f's_cbranch_scc1 {name}_end')
    stamp(a, 0, stamps)
    a('s_load_dwordx2 s[8:9], s[0:1], 0')
    a('s_load_dwordx2 s[12:13], s[0:1], 96')
    a('s_load_dwordx2 s[16:17], s[0:1], 56')
    a('s_load_dwordx4 s[4:7], s[0:1], 72')
    a('v_lshrrev_b32 v1, 6, v0')
    a('v_and_b32 v2, 63, v0')
    a('v_readfirstlane_b32 s26, v1')
    emit_map(a, mapping, 22, 23)
    emit_rho_t1(a, 22, 24, 25)
    a('v_lshrrev_b32 v6, 3, v2')
    a('v_xor_b32 v7, v6, v2')
    a('v_and_b32 v7, 7, v7')
    a('v_mul_u32_u24 v6, 0xa000, v6')
    a('v_lshl_add_u32 v6, v7, 4, v6')
    a('s_lshl_b32 s32, s26, 9'); a('s_add_u32 s32, s32, s24'); a('s_mul_i32 s32, s32, 1280')
    a(f's_add_u32 s33, s32, {256*1280}')
    a('s_lshl_b32 s27, s26, 11')
    a('s_sub_u32 s25, 32, s24'); a('s_and_b32 s25, s25, 31')
    a('s_mul_i32 s34, s26, 2560')
    a(f's_add_u32 s35, s34, {U_OFF - 16}')
    a(f's_sub_u32 s34, {U_OFF + (639-15)*16}, s34')
    a('s_cmp_lt_u32 s26, 2')
    a('s_cselect_b64 vcc, -1, 0')
    a('s_cselect_b32 s28, 1, -1')
    a('s_cselect_b32 s30, s24, s25')
    a('s_cselect_b32 s38, 0, 0x80000000')
    a('s_cselect_b32 s39, 0, 1')
    a('s_cselect_b32 s35, s35, s34')
    a('s_lshl_b32 s28, s28, 8')
    a(f's_or_b32 s38, s38, {fbits(1/2048)}')
    a('s_cmp_eq_u32 s24, 0'); a('s_cselect_b32 s39, 0, s39')
    a(f's_mul_i32 s31, s30, {U_T1}'); a('s_add_u32 s31, s31, s35')
    a('s_lshl_b32 s36, s23, 2'); a('s_add_u32 s36, s36, s26')
    a(f's_mul_i32 s37, s36, {60*1024}'); a(f's_add_u32 s58, s37, {W2P_OFF}'); a(f's_add_u32 s37, s37, {W1P_OFF}'); a('s_add_u32 s29, s37, 40960')
    a('s_waitcnt lgkmcnt(0)')
    srd(a, 8, 8, 9, S*D*2)
    Sx = Sched(a, R=R, LAT=LAT, DEPTH=DEPTH)
    t = Sx
    for ap in range(10):
        for o in range(2):
            Sx.q([f's_add_u32 m0, s27, {ap*8192 + o*1024 - 128*ap}', f'buffer_load_dwordx4 v6, s[8:11], s{32+o} offen offset:{128*ap} lds'], 'x')
    def UA(tl, ks2): return (tl*2+ks2)*4
    for tl in range(10):
        for ks2 in range(2):
            vo = (12 if tl == 0 else 10) + ks2
            L = [f'buffer_load_dwordx4 {ar(UA(tl,ks2),4)}, v{vo}, s[12:15], s31 offen']
            if ks2 == 1 and tl < 9: L.append('s_add_u32 s31, s31, s28')
            Sx.q(L, ('u', tl//2), gate='addr')
    def WA(fr): return 80 + fr*4 if fr < 44 else (fr-44)*4
    for fr in range(60):
        ks_, i_ = divmod(fr, 3)
        if i_ < 2:
            m = 2*ks_ + i_
            L = [f'buffer_load_dwordx4 {ar(WA(fr),4)}, v5, s[12:15], s37 offen offset:{1024*(m%4)}']
            if m % 4 == 3: L.append('s_add_u32 s37, s37, 4096')
        else:
            L = [f'buffer_load_dwordx4 {ar(WA(fr),4)}, v5, s[12:15], s29 offen offset:{1024*(ks_%4)}']
            if ks_ % 4 == 3: L.append('s_add_u32 s29, s29, 4096')
        Sx.q(L, ('w', fr//3), gate='s2done' if fr >= 44 else None)
    for _ in range(4): Sx.pop()
    for l in (f's_mov_b32 s14, {ws_size(stamps)}', 's_mov_b32 s15, 0x20000', f's_mov_b32 s18, {F*2}', 's_mov_b32 s19, 0x20000',
              's_mov_b32 s80, s4', 's_mov_b32 s81, s5', f's_mov_b32 s82, {D*2}', 's_mov_b32 s83, 0x20000',
              's_mov_b32 s84, s6', 's_mov_b32 s85, s7', f's_mov_b32 s86, {S*D*2}', 's_mov_b32 s87, 0x20000'): t(l)
    t('v_and_b32 v3, 15, v2')
    t('v_lshrrev_b32 v4, 4, v2')
    t('v_lshlrev_b32 v5, 4, v2')
    t('v_sub_u32 v11, 15, v3')
    t('v_cndmask_b32 v10, v11, v3, vcc')
    t('v_mul_u32_u24 v11, 5120, v4')
    t('v_lshl_add_u32 v10, v10, 4, v11')
    t('v_add_u32 v11, 0x5000, v10')
    t('v_and_b32 v12, 0xcf, v0')
    t('v_cmp_eq_u32 vcc, 0, v12')
    t('v_mov_b32 v14, 0x7ff00000')
    t('v_cndmask_b32 v12, v10, v14, vcc')
    t('v_cndmask_b32 v13, v11, v14, vcc')
    Sx.gate('addr')
    t('v_xor_b32 v7, v4, v3'); t('v_and_b32 v7, 7, v7'); t('v_lshlrev_b32 v7, 4, v7'); t('v_lshl_add_u32 v7, v3, 7, v7')
    t('v_xor_b32 v8, 64, v7')
    t('v_add_u32 v24, 0xa000, v7'); t('v_add_u32 v25, 0xa000, v8')
    t('s_mul_i32 s40, s26, 5'); t('s_lshr_b32 s41, s40, 1'); t('s_lshl_b32 s41, s41, 13')
    t('s_and_b32 s42, s26, 1'); t('s_lshl_b32 s43, s42, 6'); t('s_lshl_b32 s42, s42, 13'); t('s_add_u32 s42, s42, s41')
    t('v_xor_b32 v26, s43, v7'); t('v_add_u32 v26, s41, v26')
    t('v_xor_b32 v27, s43, v8'); t('v_add_u32 v27, s42, v27')
    def own(kk, tt): return (26 + (kk & 1), (kk//2)*8192 + tt*2048)
    t('v_and_b32 v28, 1, v3'); t('v_lshlrev_b32 v28, 4, v28'); t('v_mov_b32 v29, 0x3f80'); t('v_lshlrev_b32 v28, v28, v29')
    t('v_lshrrev_b32 v29, 1, v3')
    t('v_lshlrev_b32 v30, 2, v4'); t('v_sub_u32 v29, v29, v30')
    for q in range(4):
        t(f'v_cmp_eq_u32 vcc, {q}, v29'); t(f'v_cmp_eq_u32 s[44:45], {q-8}, v29')
        t(f'v_cndmask_b32 v{16+q}, 0, v28, vcc'); t(f'v_cndmask_b32 v{20+q}, 0, v28, s[44:45]')
    M = 32; T = 64
    t('v_lshlrev_b32 v14, 5, v3'); t('v_add_u32 v14, s24, v14')
    t('v_lshlrev_b32 v15, 1, v4'); t('v_cvt_f32_u32 v15, v15')
    t('v_xor_b32 v28, s39, v3'); t('v_lshlrev_b32 v28, 31, v28'); t('v_or_b32 v28, 0x38003800, v28')
    t('v_cmp_eq_u32 vcc, 0, v4')
    for tt in range(4):
        t(f'v_add_u32 v29, {512*tt}, v14')
        t('v_cvt_f32_u32 v29, v29')
        t('v_mul_f32 v29, s38, v29')
        t(f'v_mul_f32 v{T}, v29, v15')
        t(f'v_sub_f32 v30, 0, v{T}')
        for ks2 in range(2):
            for j in range(4):
                if ks2 == 0 and j == 0: continue
                c = [8*ks2, 32-8*ks2, 8*ks2+1, 31-8*ks2][j]
                t(f'v_fmamk_f32 v{T+ks2*4+j}, v29, {fbits(float(c))}, v{T if j%2==0 else 30}')
        t(f'v_mul_f32 v31, {fbits(16.0)}, v29')
        t(f'v_cndmask_b32 v{T+1}, v{T+1}, v31, vcc')
        for j in range(8): t(f'v_sin_f32 v{T+8+j}, v{T+j}')
        for j in range(8): t(f'v_cos_f32 v{T+j}, v{T+j}')
        for j in range(8): t(f'v_cvt_pk_f16_f32 v{M+tt*8+j}, v{T+j}, v{T+8+j}')
        t(f'v_cndmask_b32 v{M+tt*8}, v{M+tt*8}, v28, vcc')
    if verbose: print('Mgen done', Sx.clock)
    Sx.vwait('x', 20)
    a('s_barrier')
    stamp(a, 1, stamps)
    if verbose: print('x barrier', Sx.clock)
    Y = 64; XF = 224
    def YG(kk, tt): return Y + (kk*4+tt)*8
    def xread(kk):
        for tt in range(4):
            va, off = own(kk, tt)
            Sx.ds(f'ds_read_b128 {vr(XF+(kk&1)*16+tt*4,4)}, v{va} offset:{off}', ('xr', kk))
    def xadd(kk, pend=None):
        if kk + 1 < 5: xread(kk+1)
        Sx.lwait(('xr', kk), 100 if kk == 0 else 0)
        c = 0
        for tt in range(4):
            for i in range(2):
                t(f'v_mfma_f32_16x16x32_bf16 {vr(YG(kk,tt)+4*i,4)}, {vr(16+4*i,4)}, {vr(XF+(kk&1)*16+tt*4,4)}, 0')
                c += 1
                if pend and c >= 3:
                    x = pend.pop(0)
                    (Sx.ds(x, 'hw') if x.startswith('ds_') else t(x))
    xread(0)
    nx = {0: 5, 1: 1, 2: 2}[s2mode]
    for kk in range(nx): xadd(kk)
    def packlist(kk):
        L = []
        for tt in range(4):
            b = YG(kk, tt)
            for j in range(4): L.append(f'v_cvt_pk_bf16_f32 v{b+j}, v{b+2*j}, v{b+2*j+1}')
            va, off = own(kk, tt)
            L.append(f'ds_write_b128 v{va}, {vr(b,4)} offset:{off}')
        return L
    pend = []
    def emitp(x): (Sx.ds(x, 'hw') if x.startswith('ds_') else t(x))
    for kk in range(5):
        Sx.vwait(('u', kk), 4)
        c = 0
        order = [(ks2, tt, i) for ks2 in range(2) for tt in range(4) for i in range(2)]
        if kk == 4: order = [(ks2, tt, i) for tt in range(4) for ks2 in range(2) for i in range(2)]
        for ks2, tt, i in order:
            d = vr(YG(kk,tt)+4*i, 4)
            t(f'v_mfma_f32_16x16x32_f16 {d}, {ar(UA(2*kk+i,ks2),4)}, {vr(M+tt*8+ks2*4,4)}, {d}')
            c += 1
            if c >= 3 or s2mode:
                for _ in range(2 if not s2mode else 1):
                    if pend: emitp(pend.pop(0))
        while pend: emitp(pend.pop(0))
        pend = packlist(kk)
        if nx < 5: xadd(nx, pend); nx += 1
    Sx.gate('s2done')
    while pend: emitp(pend.pop(0))
    Sx.lwait_all()
    a('s_barrier')
    stamp(a, 2, stamps)
    if verbose: print('h barrier', Sx.clock)
    if R2: Sx.R = R2
    BF = 32
    def bread(ks, tts=range(4)):
        for tt in tts:
            off = (ks//2)*8192 + tt*2048
            va = 7 + (ks & 1)
            if off >= 40960: va = 24 + (ks & 1); off -= 40960
            Sx.ds(f'ds_read_b128 {vr(BF+(ks&1)*16+tt*4,4)}, v{va} offset:{off}', ('b', ks))
    def UP(gi): return YG(gi//4, gi%4) + 4
    def AC(i, tt): return UP(i*4+tt)
    bread(0)
    for j in range(4): t(f'v_mov_b32 v{16+j}, 0x3f803f80')
    SS = 224; SG = 240
    stat = []
    for kk in range(5):
        for tt in range(4):
            h = vr(YG(kk,tt), 4)
            stat.append(f'v_mfma_f32_16x16x32_bf16 {vr(SS+4*tt,4)}, v[16:19], {h}, {"0" if kk == 0 else vr(SS+4*tt,4)}')
            stat.append(f'v_mfma_f32_16x16x32_bf16 {vr(SG+4*tt,4)}, {h}, {h}, {"0" if kk == 0 else vr(SG+4*tt,4)}')
    def CSR(p, i): return UP(12 + p*3 + i)
    def B1R(i): return UP(18) + 2*i if i < 2 else UP(19)
    t('s_mul_i32 s42, s23, 12'); t('s_lshl_b32 s43, s26, 1'); t('s_add_u32 s43, s43, s42')
    t('s_add_u32 s44, s42, 8'); t('s_add_u32 s44, s44, s26')
    t('s_lshl_b32 s45, s43, 5'); t('s_lshl_b32 s46, s44, 5')
    t('s_lshl_b32 s47, s43, 6'); t(f's_add_u32 s47, s47, {CS_OFF}')
    t('s_lshl_b32 s48, s44, 6'); t(f's_add_u32 s48, s48, {CS_OFF}')
    t('s_add_u32 s49, s47, 6144'); t('s_add_u32 s50, s48, 6144')
    t('v_lshlrev_b32 v20, 3, v4')
    t('v_lshlrev_b32 v21, 4, v4')
    for _ in range(6): t(stat.pop(0))
    extra = []
    for i in range(3):
        so, off = (45, 32*i) if i < 2 else (46, 0)
        extra.append(([f'buffer_load_dwordx2 {vr(B1R(i),2)}, v20, s[16:19], s{so} offen offset:{off}'], 'bc', None, 0.3))
    for p in range(2):
        for i in range(3):
            so, off = (47+2*p, 64*i) if i < 2 else (48+2*p, 0)
            extra.append(([f'buffer_load_dwordx4 {vr(CSR(p,i),4)}, v21, s[12:15], s{so} offen offset:{off}'], 'bc', None, 0.3))
    pos = max(0, len(Sx.Q) - 15)
    Sx.Q[pos:pos] = extra
    def W2A(q): return 64 + 4*q if q < 4 else WA(q-4)
    POLL = 22
    for q in range(60):
        if q == pollpos:
            Sx.q([f'buffer_load_dwordx2 {vr(POLL,2)}, v9, s[12:15], s59 offen sc1'], 'poll', gate='signalled', cost=0.3)
        L = [f'buffer_load_dwordx4 {ar(W2A(q),4)}, v5, s[12:15], s58 offen offset:{1024*(q%4)}']
        if q % 4 == 3: L.append('s_add_u32 s58, s58, 4096')
        Sx.q(L, 'w2', gate=None if q < 4 else ('ks', (q-4)//3))
    SA = 224
    side = []
    for ks in range(20):
        Sx.vwait(('w', ks), 3)
        Sx.lwait(('b', ks))
        c = 0
        for i in range(3):
            for tt in range(4):
                d = vr(AC(i,tt), 4)
                t(f'v_mfma_f32_16x16x32_bf16 {d}, {ar(WA(ks*3+i),4)}, {vr(BF+(ks&1)*16+tt*4,4)}, {"0" if ks == 0 else d}')
                c += 1
                if c in (1, 2, 3, 4) and ks + 1 < 20: bread(ks + 1, [c-1])
                if c in (6, 9, 12) and stat: t(stat.pop(0))
                for _ in range(2):
                    if side: t(side.pop(0))
        Sx.gate(('ks', ks))
        if pause and ks == 19 - pause: Sx.hold += 1
        if ks == 12:
            assert not stat
            side += ['v_and_b32 v22, 3, v3', 'v_cmp_eq_u32 s[52:53], 1, v22', 'v_cmp_eq_u32 s[54:55], 2, v22', 'v_cmp_eq_u32 s[56:57], 3, v22',
                     'v_lshlrev_b32 v30, 3, v3', 's_lshl_b32 s40, s26, 9', f's_add_u32 s40, s40, {ST_OFF}', 'v_add_u32 v30, s40, v30']
            for tt in range(4):
                g = SG + 4*tt
                side += [f'v_cndmask_b32 v{SS+4*tt+1}, v{g}, v{g+1}, s[52:53]',
                         f'v_cndmask_b32 v{SS+4*tt+1}, v{SS+4*tt+1}, v{g+2}, s[54:55]',
                         f'v_cndmask_b32 v{SS+4*tt+1}, v{SS+4*tt+1}, v{g+3}, s[56:57]']
            side += ['v_lshlrev_b32 v29, 3, v2', f'v_add_u32 v29, {ST_OFF}, v29']
        if ks == 13:
            assert not side
            Sx.hold += 1
            t('s_mov_b32 exec_lo, 0x00f0000f'); t('s_mov_b32 exec_hi, 0xf0000f00')
            for tt in range(4): Sx.ds(f'ds_write_b64 v30, {vr(SS+4*tt,2)} offset:{128*tt}', 'stw')
            t('s_mov_b64 exec, -1')
            Sx.hold -= 1
        if ks == 14:
            Sx.lwait('stw')
            a('s_barrier')
            for w in range(4): Sx.ds(f'ds_read_b64 {vr(SA+2*w,2)}, v29 offset:{512*w}', 'str')
        if ks == 15:
            Sx.lwait('str')
            side += [f'v_add_f32 v{SA}, v{SA}, v{SA+2}', f'v_add_f32 v{SA+1}, v{SA+1}, v{SA+3}',
                     f'v_add_f32 v{SA+4}, v{SA+4}, v{SA+6}', f'v_add_f32 v{SA+5}, v{SA+5}, v{SA+7}',
                     f'v_add_f32 v{SA}, v{SA}, v{SA+4}', f'v_add_f32 v{SA+1}, v{SA+1}, v{SA+5}',
                     f'v_mul_f32 v{SA}, {fbits(1/640)}, v{SA}', f'v_mul_f32 v{SA+1}, {fbits(1/640)}, v{SA+1}',
                     f'v_fma_f32 v{SA+1}, -v{SA}, v{SA}, v{SA+1}', f'v_max_f32 v{SA+1}, 0, v{SA+1}',
                     f'v_add_f32 v{SA+1}, {fbits(1e-5)}, v{SA+1}', f'v_rsq_f32 v{SA+1}, v{SA+1}',
                     'v_lshlrev_b32 v31, 3, v2', 'v_add_u32 v31, s40, v31',
                     f'v_mul_f32 v{SA}, v{SA}, v{SA+1}']
        if ks == 16:
            assert not side
            Sx.ds(f'ds_write_b64 v31, {vr(SA,2)} offset:2048', 'stw2')
            for tt in range(4): Sx.ds(f'ds_read_b64 {vr(SA+8+2*tt,2)}, v30 offset:{2048+tt*128}', 'str2')
            Sx.vwait('bc', 9)
            for i in range(3):
                for r in range(4): side.append(f'v_add_f32 v{CSR(0,i)+r}, v{CSR(0,i)+r}, v{CSR(1,i)+r}')
            for i in range(3):
                for h in range(2):
                    side.append(f'v_lshlrev_b32 v{CSR(1,i)+2*h}, 16, v{B1R(i)+h}')
                    side.append(f'v_and_b32 v{CSR(1,i)+2*h+1}, 0xffff0000, v{B1R(i)+h}')
        if ks == 17:
            assert not side
            Sx.lwait('str2')
            for tt in range(4):
                for i in range(3):
                    for r in range(4):
                        side.append(f'v_fma_f32 v{AC(i,tt)-4+r}, -v{SA+8+2*tt}, v{CSR(0,i)+r}, v{CSR(1,i)+r}')
    assert not side
    stamp(a, 3, stamps); stamp(a, 0, stamps, 1)
    if verbose: print('ffn1 done', Sx.clock)
    ST = SA + 8
    t('s_mul_i32 s41, s22, 48'); t('s_mul_i32 s42, s23, 6'); t('s_add_u32 s51, s41, s42')
    t('s_add_u32 s42, s51, s26'); t('s_lshl_b32 s42, s42, 12'); t(f's_add_u32 s42, s42, {R_OFF}')
    t('s_lshr_b32 s43, s26, 1'); t('s_lshl_b32 s49, s43, 12'); t(f's_add_u32 s49, s49, {RED_OFF}')
    t('s_add_u32 s43, s43, s51'); t('s_add_u32 s43, s43, 4'); t('s_lshl_b32 s43, s43, 12')
    t('s_and_b32 s44, s26, 1'); t('s_lshl_b32 s50, s44, 3'); t('s_add_u32 s50, s50, s49')
    t('s_lshl_b32 s44, s44, 11'); t('s_add_u32 s43, s43, s44'); t(f's_add_u32 s43, s43, {R_OFF}'); t('s_add_u32 s49, s49, s44')
    t('v_add_u32 v10, s50, v5'); t('v_add_u32 v11, s49, v5')
    def epi(i, tt):
        ac = AC(i, tt); tm = ac - 4
        for h in range(2):
            t(f'v_pk_fma_f32 {vr(ac+2*h,2)}, {vr(ac+2*h,2)}, {vr(ST+2*tt,2)}, {vr(tm+2*h,2)} op_sel:[0,1,0] op_sel_hi:[1,1,1]')
        for r in range(4): t(f'v_max_f32 v{ac+r}, 0, v{ac+r}')
        for h in range(2): t(f'v_pk_mul_f32 {vr(ac+2*h,2)}, {vr(ac+2*h,2)}, {vr(ac+2*h,2)}')
        dst = YG(3, tt) + 2*i if i < 2 else YG(4, tt)
        for h in range(2): t(f'v_cvt_pk_bf16_f32 v{dst+h}, v{ac+2*h}, v{ac+2*h+1}')
    for i in range(2): epi(i, 0)
    Sx.mem(f'buffer_store_dwordx4 {vr(YG(3,0),4)}, v5, s[12:15], s42 offen sc1', 'rst')
    for tt in range(4):
        epi(2, tt)
        Sx.ds(f'ds_write_b64 v10, {vr(YG(4,tt),2)} offset:{1024*tt}', 'xw')
    for tt in range(1, 3):
        for i in range(2): epi(i, tt)
        Sx.mem(f'buffer_store_dwordx4 {vr(YG(3,tt),4)}, v5, s[12:15], s42 offen offset:{1024*tt} sc1', 'rst')
    Sx.lwait('xw')
    a('s_barrier')
    for j in range(2): Sx.ds(f'ds_read_b128 {vr(YG(4,j),4)}, v11 offset:{1024*j}', 'xr2')
    for i in range(2): epi(i, 3)
    Sx.mem(f'buffer_store_dwordx4 {vr(YG(3,3),4)}, v5, s[12:15], s42 offen offset:3072 sc1', 'rst')
    Sx.lwait('xr2')
    for j in range(2): Sx.mem(f'buffer_store_dwordx4 {vr(YG(4,j),4)}, v5, s[12:15], s43 offen offset:{1024*j} sc1', 'rst')
    if pause: Sx.hold -= 1
    if strict == 1: Sx.hold += 1
    stamp(a, 1, stamps, 1)
    if verbose: print('r stored', Sx.clock)
    ACC = 32
    def acc(u, i): return ACC + (u*5+i)*4
    B2 = 112
    t('s_mul_i32 s45, s23, 160')
    for i in range(5):
        Sx.mem(f'buffer_load_dwordx2 {vr(B2+2*i,2)}, v20, s[80:83], s45 offen offset:{32*i}', 'b2', 0.3)
    t('s_lshl_b32 s46, s22, 8'); t(f's_add_u32 s46, s46, {FLAG_OFF}')
    t('s_lshl_b32 s59, s26, 6'); t('s_add_u32 s59, s59, s46')
    t('s_lshr_b32 s47, s23, 1'); t('s_lshl_b32 s47, s47, 6'); t('s_add_u32 s46, s46, s47')
    t('s_and_b32 s47, s23, 1'); t('s_lshl_b32 s47, s47, 2'); t('s_add_u32 s46, s46, s47')
    t('v_mov_b32 v9, 0')
    t('v_mov_b32 v28, 1')
    t('s_mul_i32 s47, s23, 5')
    for i in range(5):
        t(f's_add_u32 s48, s47, {i}')
        t('s_lshr_b32 s49, s48, 2'); t('s_lshl_b32 s49, s49, 13'); t('s_add_u32 s49, s49, s27')
        t('s_and_b32 s50, s48, 1'); t('s_lshl_b32 s50, s50, 3'); t('s_add_u32 s49, s49, s50')
        t('s_and_b32 s50, s48, 2'); t('s_lshl_b32 s50, s50, 5')
        t('v_xor_b32 v29, s50, v7'); t('v_add_u32 v29, s49, v29')
        Sx.ds(f'ds_read_b64 {vr(B2+10+2*i,2)}, v29', 'hres')
    for u in range(4):
        t(f'v_add_u32 v{10+u}, {u}, v1'); t(f'v_and_b32 v{10+u}, 3, v{10+u}')
        t(f'v_mul_u32_u24 v{14+u}, 15360, v{10+u}')
        t(f'v_lshl_add_u32 v{10+u}, v{10+u}, 10, v5')
        t(f'v_add_u32 v{14+u}, v{14+u}, v5'); t(f'v_add_u32 v{14+u}, {RED_OFF}, v{14+u}')
    t('s_mul_i32 s48, s26, 12'); t('s_add_u32 s48, s48, s41'); t('s_lshl_b32 s48, s48, 12'); t(f's_add_u32 s48, s48, {R_OFF}')
    stamp(a, 2, stamps, 1)
    if strict:
        Sx.hold += 1; Sx.vwait(Sx.tags[-1]); Sx.hold -= 1
        assert not Sx.vm.q
        if strict == 1: Sx.hold -= 1
    else: Sx.vwait('rst')
    stamp(a, 3, stamps, 1)
    a('s_barrier')
    Sx.hold += 1
    t('s_cmp_lg_u32 s26, 0')
    t(f's_cbranch_scc1 {name}_nosig')
    t('s_mov_b64 exec, 1')
    t('buffer_store_dword v28, v9, s[12:15], s46 offen sc1')
    t('s_mov_b64 exec, -1')
    a.label(f'{name}_nosig')
    Sx.hold -= 1
    Sx.gate('signalled')
    stamp(a, 4, stamps); stamp(a, 4, stamps, 1)
    if verbose: print('signalled', Sx.clock)
    Sx.lwait('hres'); Sx.vwait('b2')
    for q in range(10):
        t(f'v_lshlrev_b32 v{ACC+2*q}, 16, v{B2+q}'); t(f'v_and_b32 v{ACC+2*q+1}, 0xffff0000, v{B2+q}')
        t(f'v_lshlrev_b32 v132, 16, v{B2+10+q}'); t(f'v_and_b32 v133, 0xffff0000, v{B2+10+q}')
        t(f'v_pk_add_f32 {vr(ACC+2*q,2)}, {vr(ACC+2*q,2)}, v[132:133]')
    t('s_lshl_b32 s49, s26, 12')
    t('v_mul_u32_u24 v18, 176, v3'); t('v_add_u32 v18, v18, v20'); t('v_add_u32 v18, s49, v18')
    t('s_lshl_b32 s50, s26, 9'); t('s_add_u32 s50, s50, s24'); t('s_mul_i32 s50, s50, 1280'); t('s_add_u32 s50, s50, s45')
    for q in range(3):
        t(f'v_add_u32 v30, {64*q}, v2')
        t('v_mul_u32_u24 v31, 205, v30'); t('v_lshrrev_b32 v31, 11, v31')
        t('v_mul_u32_u24 v19, 10, v31'); t('v_sub_u32 v30, v30, v19'); t('v_lshlrev_b32 v30, 4, v30')
        t(f'v_mul_u32_u24 v{24+q}, 176, v31'); t(f'v_add_u32 v{24+q}, v{24+q}, v30'); t(f'v_add_u32 v{24+q}, s49, v{24+q}')
        t(f'v_mul_u32_u24 v{27+q}, 0xa000, v31'); t(f'v_add_u32 v{27+q}, v{27+q}, v30')
    t('v_cmp_gt_u32 vcc, 32, v2'); t('v_mov_b32 v30, 0x7ff00000'); t('v_cndmask_b32 v29, v30, v29, vcc')
    Sx.need('poll', 1)
    Sx.flush()
    assert not Sx.Q
    stamp(a, 5, stamps, 1)
    Sx.vwait('poll')
    a('s_mov_b32 s44, 0')
    a.label(f'{name}_chk')
    a(f'v_and_b32 v{POLL}, v{POLL}, v{POLL+1}')
    a(f'v_readfirstlane_b32 s47, v{POLL}')
    a('s_cmp_eq_u32 s47, 1')
    a(f's_cbranch_scc1 {name}_go')
    a('s_add_u32 s44, s44, 1')
    a('s_cmp_gt_u32 s44, 0x100000')
    a(f's_cbranch_scc1 {name}_go')
    a(f'buffer_load_dwordx2 {vr(POLL,2)}, v9, s[12:15], s59 offen sc1')
    a('s_waitcnt vmcnt(0)')
    a(f's_branch {name}_chk')
    a.label(f'{name}_go')
    stamp(a, 5, stamps); stamp(a, 6, stamps, 1)
    if verbose: print('go', Sx.clock)
    RF = 136; NRF = 30
    if R3: Sx.R = R3
    if D3: Sx.DEPTH = D3
    uorder = [1, 2, 3, 0]
    for li in range(48):
        u = uorder[li // 12]; ks = li % 12
        L = [f'buffer_load_dwordx4 {vr(RF+(li%NRF)*4,4)}, v{10+u}, s[12:15], s48 offen sc1']
        L.append('s_add_u32 s48, s48, 4096' if ks < 11 else f's_sub_u32 s48, s48, {11*4096}')
        Sx.q(L, ('r', li), gate=None if li < NRF else ('rc', li - NRF))
    for _ in range(4): Sx.pop()
    Sx.vwait('w2')
    side = []
    for li in range(48):
        u = uorder[li // 12]; ks = li % 12
        Sx.vwait(('r', li), 1)
        for i in range(5):
            d = vr(acc(u,i), 4)
            cc = '0' if (ks == 0 and u != 0) else d
            t(f'v_mfma_f32_16x16x32_bf16 {d}, {ar(W2A(ks*5+i),4)}, {vr(RF+(li%NRF)*4,4)}, {cc}')
            for _ in range(2):
                if side:
                    x = side.pop(0)
                    if x.startswith('ds_'): Sx.ds(x, 'red'); break
                    t(x)
        Sx.gate(('rc', li))
        if ks == 1 and li >= 12:
            up = uorder[li // 12 - 1]
            for i in range(5): side.append(f'ds_write_b128 v{14+up}, {vr(acc(up,i),4)} offset:{((up-1)*5+i)*1024}')
        if li == 36 + 4:
            assert not side
            Sx.lwait_all(0)
            a('s_barrier')
            for s_ in range(3):
                for i in range(5): side.append(f'ds_read_b128 {vr(acc(1+s_,i),4)}, v14 offset:{(s_*5+i)*1024}')
        if li == 36 + 8:
            assert not side
            Sx.lwait_all(0)
            for q in range(20): side.append(f'v_add_f32 v{acc(1,0)+q}, v{acc(1,0)+q}, v{acc(2,0)+q}')
            for q in range(10): side.append(f'v_add_f32 v{acc(1,0)+q}, v{acc(1,0)+q}, v{acc(3,0)+q}')
    assert not side
    for q in range(10, 20): t(f'v_add_f32 v{acc(1,0)+q}, v{acc(1,0)+q}, v{acc(3,0)+q}')
    stamp(a, 6, stamps)
    if verbose: print('ffn2 done', Sx.clock)
    for i in range(5):
        for h in range(2):
            t(f'v_pk_add_f32 {vr(acc(0,i)+2*h,2)}, {vr(acc(0,i)+2*h,2)}, {vr(acc(1,i)+2*h,2)}')
        for h in range(2):
            t(f'v_cvt_pk_bf16_f32 v{B2+2*i+h}, v{acc(0,i)+2*h}, v{acc(0,i)+2*h+1}')
        t(f'ds_write_b64 v18, {vr(B2+2*i,2)} offset:{32*i}')
    for q in range(3): t(f'ds_read_b128 {vr(RF+4*q,4)}, v{24+q}')
    for q in range(3):
        a(f's_waitcnt lgkmcnt({2-q})')
        a(f'buffer_store_dwordx4 {vr(RF+4*q,4)}, v{27+q}, s[84:87], s50 offen {oflag}')
    if stamps:
        write_stamps(a, 8, 1, 26)
    a.label(f'{name}_end')
    a('s_endpgm')
    return dict(vgpr=512, sgpr=96, accum=256, lds=LDS_CD, threads=256)
```

```python
import build2, kCD4, kA2
from build2 import *
build2.gen_kCD = kCD4.gen_kCD
build2.gen_kA = kA2.gen_kA
DOC = """;
"""
OUT = 'sequential_preLN__spectral_fnet__dense_activation_squared_relu__prompt.s'
build(OUT, akw=dict(stflag='sc1'), ckw=dict(DEPTH=9, R2=72))
s = open(OUT).read()
s = s.replace('.amdgcn_target', DOC + '.amdgcn_target', 1)
open(OUT, 'w').write(s)
```

```python
import common, build2, kCD4, kA2
from common import *
DIAG = [None]
def ws_diag(a, n, kidx, s_w):
    if kidx != 1: return
    i, j = DIAG[0]
    a('s_cmp_lg_u32 s2, 37')
    a('s_cbranch_scc1 fnet_cd_kernel_end')
    a('s_waitcnt vmcnt(0) lgkmcnt(0)')
    a(f's_memrealtime s[{60+2*(n-1)}:{61+2*(n-1)}]')
    a('s_waitcnt lgkmcnt(0)')
    a(f's_sub_u32 s40, s{60+2*j}, s{60+2*i}')
    a('s_min_u32 s40, s40, 3000')
    a('s_lshl_b32 s40, s40, 3')
    a.label('diag_spin')
    a('s_memrealtime s[42:43]')
    a('s_waitcnt lgkmcnt(0)')
    a(f's_sub_u32 s41, s42, s{60+2*(n-1)}')
    a('s_cmp_lt_u32 s41, s40')
    a('s_cbranch_scc1 diag_spin')
kCD4.write_stamps = ws_diag
build2.gen_kCD = lambda a, name, stamps, **kw: kCD4.gen_kCD(a, name, stamps=True, **kw)
build2.gen_kA = lambda a, name, stamps, **kw: kA2.gen_kA(a, name, stamps=False, **kw)
for k, (i, j) in enumerate([(0,1),(1,2),(2,3),(3,4),(4,5),(5,7)]):
    DIAG[0] = (i, j)
    build2.build(f'dg{k}.s', akw=dict(stflag='sc1'), ckw=dict(DEPTH=8))
```

```python
from common import *
from sched import Sched

ST_OFF = 81920
RED_OFF = ST_OFF + 4096
LDS_CD = RED_OFF + 61440

def gen_kCD(a, name, mapping='B', stamps=False, R=80, LAT=600, DEPTH=9, oflag='', pollpos=50, pause=0, verbose=False, R2=None, R3=None, D3=None, s2mode=0, strict=0, smode=0, pretouch=0):
    def stamp(a_, idx, on, mode=0):
        if on and mode == smode: a_(f's_memrealtime s[{60+2*idx}:{61+2*idx}]')

    a.raw(f'.globl {name}\n.p2align 8\n.type {name},@function\n{name}:')
    a.reset_hist()
    a('s_cmp_ge_u32 s2, 256')
    a(f's_cbranch_scc1 {name}_end')
    stamp(a, 0, stamps)
    a('s_load_dwordx2 s[8:9], s[0:1], 0')
    a('s_load_dwordx2 s[12:13], s[0:1], 96')
    a('s_load_dwordx2 s[16:17], s[0:1], 56')
    a('s_load_dwordx4 s[4:7], s[0:1], 72')
    a('v_lshrrev_b32 v1, 6, v0')
    a('v_and_b32 v2, 63, v0')
    a('v_readfirstlane_b32 s26, v1')
    emit_map(a, mapping, 22, 23)
    emit_rho_t1(a, 22, 24, 25)
    a('v_lshrrev_b32 v6, 3, v2')
    a('v_xor_b32 v7, v6, v2')
    a('v_and_b32 v7, 7, v7')
    a('v_mul_u32_u24 v6, 0xa000, v6')
    a('v_lshl_add_u32 v6, v7, 4, v6')
    a('s_lshl_b32 s32, s26, 9'); a('s_add_u32 s32, s32, s24'); a('s_mul_i32 s32, s32, 1280')
    a(f's_add_u32 s33, s32, {256*1280}')
    a('s_lshl_b32 s27, s26, 11')
    a('s_sub_u32 s25, 32, s24'); a('s_and_b32 s25, s25, 31')
    a('s_mul_i32 s34, s26, 2560')
    a(f's_add_u32 s35, s34, {U_OFF - 16}')
    a(f's_sub_u32 s34, {U_OFF + (639-15)*16}, s34')
    a('s_cmp_lt_u32 s26, 2')
    a('s_cselect_b64 vcc, -1, 0')
    a('s_cselect_b32 s28, 1, -1')
    a('s_cselect_b32 s30, s24, s25')
    a('s_cselect_b32 s38, 0, 0x80000000')
    a('s_cselect_b32 s39, 0, 1')
    a('s_cselect_b32 s35, s35, s34')
    a('s_lshl_b32 s28, s28, 8')
    a(f's_or_b32 s38, s38, {fbits(1/2048)}')
    a('s_cmp_eq_u32 s24, 0'); a('s_cselect_b32 s39, 0, s39')
    a(f's_mul_i32 s31, s30, {U_T1}'); a('s_add_u32 s31, s31, s35')
    a('s_lshl_b32 s36, s23, 2'); a('s_add_u32 s36, s36, s26')
    a(f's_mul_i32 s37, s36, {60*1024}'); a(f's_add_u32 s58, s37, {W2P_OFF}'); a(f's_add_u32 s37, s37, {W1P_OFF}'); a('s_add_u32 s29, s37, 40960')
    a('s_waitcnt lgkmcnt(0)')
    srd(a, 8, 8, 9, S*D*2)
    Sx = Sched(a, R=R, LAT=LAT, DEPTH=DEPTH)
    t = Sx
    for ap in range(10):
        for o in range(2):
            Sx.q([f's_add_u32 m0, s27, {ap*8192 + o*1024 - 128*ap}', f'buffer_load_dwordx4 v6, s[8:11], s{32+o} offen offset:{128*ap} lds'], 'x')
    def UA(tl, ks2): return (tl*2+ks2)*4
    for tl in range(10):
        for ks2 in range(2):
            vo = (12 if tl == 0 else 10) + ks2
            L = [f'buffer_load_dwordx4 {ar(UA(tl,ks2),4)}, v{vo}, s[12:15], s31 offen']
            if ks2 == 1 and tl < 9: L.append('s_add_u32 s31, s31, s28')
            Sx.q(L, ('u', tl//2), gate='addr')
    def WA(fr): return 80 + fr*4 if fr < 44 else (fr-44)*4
    for fr in range(60):
        ks_, i_ = divmod(fr, 3)
        if i_ < 2:
            m = 2*ks_ + i_
            L = [f'buffer_load_dwordx4 {ar(WA(fr),4)}, v5, s[12:15], s37 offen offset:{1024*(m%4)}']
            if m % 4 == 3: L.append('s_add_u32 s37, s37, 4096')
        else:
            L = [f'buffer_load_dwordx4 {ar(WA(fr),4)}, v5, s[12:15], s29 offen offset:{1024*(ks_%4)}']
            if ks_ % 4 == 3: L.append('s_add_u32 s29, s29, 4096')
        Sx.q(L, ('w', fr//3), gate='s2done' if fr >= 44 else None)
    for _ in range(4): Sx.pop()
    for l in (f's_mov_b32 s14, {ws_size(stamps)}', 's_mov_b32 s15, 0x20000', f's_mov_b32 s18, {F*2}', 's_mov_b32 s19, 0x20000',
              's_mov_b32 s80, s4', 's_mov_b32 s81, s5', f's_mov_b32 s82, {D*2}', 's_mov_b32 s83, 0x20000',
              's_mov_b32 s84, s6', 's_mov_b32 s85, s7', f's_mov_b32 s86, {S*D*2}', 's_mov_b32 s87, 0x20000'): t(l)
    t('v_and_b32 v3, 15, v2')
    t('v_lshrrev_b32 v4, 4, v2')
    t('v_lshlrev_b32 v5, 4, v2')
    t('v_sub_u32 v11, 15, v3')
    t('v_cndmask_b32 v10, v11, v3, vcc')
    t('v_mul_u32_u24 v11, 5120, v4')
    t('v_lshl_add_u32 v10, v10, 4, v11')
    t('v_add_u32 v11, 0x5000, v10')
    t('v_and_b32 v12, 0xcf, v0')
    t('v_cmp_eq_u32 vcc, 0, v12')
    t('v_mov_b32 v14, 0x7ff00000')
    t('v_cndmask_b32 v12, v10, v14, vcc')
    t('v_cndmask_b32 v13, v11, v14, vcc')
    Sx.gate('addr')
    t('v_xor_b32 v7, v4, v3'); t('v_and_b32 v7, 7, v7'); t('v_lshlrev_b32 v7, 4, v7'); t('v_lshl_add_u32 v7, v3, 7, v7')
    t('v_xor_b32 v8, 64, v7')
    t('v_add_u32 v24, 0xa000, v7'); t('v_add_u32 v25, 0xa000, v8')
    t('s_mul_i32 s40, s26, 5'); t('s_lshr_b32 s41, s40, 1'); t('s_lshl_b32 s41, s41, 13')
    t('s_and_b32 s42, s26, 1'); t('s_lshl_b32 s43, s42, 6'); t('s_lshl_b32 s42, s42, 13'); t('s_add_u32 s42, s42, s41')
    t('v_xor_b32 v26, s43, v7'); t('v_add_u32 v26, s41, v26')
    t('v_xor_b32 v27, s43, v8'); t('v_add_u32 v27, s42, v27')
    def own(kk, tt): return (26 + (kk & 1), (kk//2)*8192 + tt*2048)
    t('v_and_b32 v28, 1, v3'); t('v_lshlrev_b32 v28, 4, v28'); t('v_mov_b32 v29, 0x3f80'); t('v_lshlrev_b32 v28, v28, v29')
    t('v_lshrrev_b32 v29, 1, v3')
    t('v_lshlrev_b32 v30, 2, v4'); t('v_sub_u32 v29, v29, v30')
    for q in range(4):
        t(f'v_cmp_eq_u32 vcc, {q}, v29'); t(f'v_cmp_eq_u32 s[44:45], {q-8}, v29')
        t(f'v_cndmask_b32 v{16+q}, 0, v28, vcc'); t(f'v_cndmask_b32 v{20+q}, 0, v28, s[44:45]')
    M = 32; T = 64
    t('v_lshlrev_b32 v14, 5, v3'); t('v_add_u32 v14, s24, v14')
    t('v_lshlrev_b32 v15, 1, v4'); t('v_cvt_f32_u32 v15, v15')
    t('v_xor_b32 v28, s39, v3'); t('v_lshlrev_b32 v28, 31, v28'); t('v_or_b32 v28, 0x38003800, v28')
    t('v_cmp_eq_u32 vcc, 0, v4')
    for tt in range(4):
        t(f'v_add_u32 v29, {512*tt}, v14')
        t('v_cvt_f32_u32 v29, v29')
        t('v_mul_f32 v29, s38, v29')
        t(f'v_mul_f32 v{T}, v29, v15')
        t(f'v_sub_f32 v30, 0, v{T}')
        for ks2 in range(2):
            for j in range(4):
                if ks2 == 0 and j == 0: continue
                c = [8*ks2, 32-8*ks2, 8*ks2+1, 31-8*ks2][j]
                t(f'v_fmamk_f32 v{T+ks2*4+j}, v29, {fbits(float(c))}, v{T if j%2==0 else 30}')
        t(f'v_mul_f32 v31, {fbits(16.0)}, v29')
        t(f'v_cndmask_b32 v{T+1}, v{T+1}, v31, vcc')
        for j in range(8): t(f'v_sin_f32 v{T+8+j}, v{T+j}')
        for j in range(8): t(f'v_cos_f32 v{T+j}, v{T+j}')
        for j in range(8): t(f'v_cvt_pk_f16_f32 v{M+tt*8+j}, v{T+j}, v{T+8+j}')
        t(f'v_cndmask_b32 v{M+tt*8}, v{M+tt*8}, v28, vcc')
    if verbose: print('Mgen done', Sx.clock)
    Sx.vwait('x', 20)
    a('s_barrier')
    stamp(a, 1, stamps)
    if verbose: print('x barrier', Sx.clock)
    Y = 64; XF = 224
    def YG(kk, tt): return Y + (kk*4+tt)*8
    def xread(kk):
        for tt in range(4):
            va, off = own(kk, tt)
            Sx.ds(f'ds_read_b128 {vr(XF+(kk&1)*16+tt*4,4)}, v{va} offset:{off}', ('xr', kk))
    def xadd(kk, pend=None):
        if kk + 1 < 5: xread(kk+1)
        Sx.lwait(('xr', kk), 100 if kk == 0 else 0)
        c = 0
        for tt in range(4):
            for i in range(2):
                t(f'v_mfma_f32_16x16x32_bf16 {vr(YG(kk,tt)+4*i,4)}, {vr(16+4*i,4)}, {vr(XF+(kk&1)*16+tt*4,4)}, 0')
                c += 1
                if pend and c >= 3:
                    x = pend.pop(0)
                    (Sx.ds(x, 'hw') if x.startswith('ds_') else t(x))
    xread(0)
    nx = {0: 5, 1: 1, 2: 2}[s2mode]
    for kk in range(nx): xadd(kk)
    def packlist(kk):
        L = []
        for tt in range(4):
            b = YG(kk, tt)
            for j in range(4): L.append(f'v_cvt_pk_bf16_f32 v{b+j}, v{b+2*j}, v{b+2*j+1}')
            va, off = own(kk, tt)
            L.append(f'ds_write_b128 v{va}, {vr(b,4)} offset:{off}')
        return L
    pend = []
    def emitp(x): (Sx.ds(x, 'hw') if x.startswith('ds_') else t(x))
    for kk in range(5):
        Sx.vwait(('u', kk), 4)
        c = 0
        order = [(ks2, tt, i) for ks2 in range(2) for tt in range(4) for i in range(2)]
        if kk == 4: order = [(ks2, tt, i) for tt in range(4) for ks2 in range(2) for i in range(2)]
        for ks2, tt, i in order:
            d = vr(YG(kk,tt)+4*i, 4)
            t(f'v_mfma_f32_16x16x32_f16 {d}, {ar(UA(2*kk+i,ks2),4)}, {vr(M+tt*8+ks2*4,4)}, {d}')
            c += 1
            if c >= 3 or s2mode:
                for _ in range(2 if not s2mode else 1):
                    if pend: emitp(pend.pop(0))
        while pend: emitp(pend.pop(0))
        pend = packlist(kk)
        if nx < 5: xadd(nx, pend); nx += 1
    Sx.gate('s2done')
    while pend: emitp(pend.pop(0))
    Sx.lwait_all()
    a('s_barrier')
    stamp(a, 2, stamps)
    if verbose: print('h barrier', Sx.clock)
    if R2: Sx.R = R2
    BF = 32
    def bread(ks, tts=range(4)):
        for tt in tts:
            off = (ks//2)*8192 + tt*2048
            va = 7 + (ks & 1)
            if off >= 40960: va = 24 + (ks & 1); off -= 40960
            Sx.ds(f'ds_read_b128 {vr(BF+(ks&1)*16+tt*4,4)}, v{va} offset:{off}', ('b', ks))
    def UP(gi): return YG(gi//4, gi%4) + 4
    def AC(i, tt): return UP(i*4+tt)
    bread(0)
    for j in range(4): t(f'v_mov_b32 v{16+j}, 0x3f803f80')
    SS = 224; SG = 240
    stat = []
    for kk in range(5):
        for tt in range(4):
            h = vr(YG(kk,tt), 4)
            stat.append(f'v_mfma_f32_16x16x32_bf16 {vr(SS+4*tt,4)}, v[16:19], {h}, {"0" if kk == 0 else vr(SS+4*tt,4)}')
            stat.append(f'v_mfma_f32_16x16x32_bf16 {vr(SG+4*tt,4)}, {h}, {h}, {"0" if kk == 0 else vr(SG+4*tt,4)}')
    def CSR(p, i): return UP(12 + p*3 + i)
    def B1R(i): return UP(18) + 2*i if i < 2 else UP(19)
    t('s_mul_i32 s42, s23, 12'); t('s_lshl_b32 s43, s26, 1'); t('s_add_u32 s43, s43, s42')
    t('s_add_u32 s44, s42, 8'); t('s_add_u32 s44, s44, s26')
    t('s_lshl_b32 s45, s43, 5'); t('s_lshl_b32 s46, s44, 5')
    t('s_lshl_b32 s47, s43, 6'); t(f's_add_u32 s47, s47, {CS_OFF}')
    t('s_lshl_b32 s48, s44, 6'); t(f's_add_u32 s48, s48, {CS_OFF}')
    t('s_add_u32 s49, s47, 6144'); t('s_add_u32 s50, s48, 6144')
    t('v_lshlrev_b32 v20, 3, v4')
    t('v_lshlrev_b32 v21, 4, v4')
    for _ in range(6): t(stat.pop(0))
    if pretouch:
        for l in ['s_mul_i32 s88, s22, 48', 's_mul_i32 s89, s23, 6', 's_add_u32 s88, s88, s89', 's_add_u32 s89, s88, s26', 's_lshl_b32 s89, s89, 12', f's_add_u32 s89, s89, {R_OFF}',
                  's_lshr_b32 s90, s26, 1', 's_add_u32 s90, s90, s88', 's_add_u32 s90, s90, 4', 's_lshl_b32 s90, s90, 12', 's_and_b32 s91, s26, 1', 's_lshl_b32 s91, s91, 11', 's_add_u32 s90, s90, s91', f's_add_u32 s90, s90, {R_OFF}',
                  'v_lshlrev_b32 v10, 6, v2']: t(l)
        pt = [([f'buffer_load_dword v11, v10, s[12:15], s89 offen sc1'], 'pt', None, 2.0 if pretouch == 2 else 0.3)]
        if pretouch == 1: t('v_mov_b32 v10, 0')
        if pretouch == 2:
            t('v_lshlrev_b32 v12, 5, v2')
            pt.append(([f'buffer_load_dword v13, v12, s[12:15], s90 offen sc1'], 'pt', None, 1.0))
        Sx.Q[0:0] = pt
    extra = []
    for i in range(3):
        so, off = (45, 32*i) if i < 2 else (46, 0)
        extra.append(([f'buffer_load_dwordx2 {vr(B1R(i),2)}, v20, s[16:19], s{so} offen offset:{off}'], 'bc', None, 0.3))
    for p in range(2):
        for i in range(3):
            so, off = (47+2*p, 64*i) if i < 2 else (48+2*p, 0)
            extra.append(([f'buffer_load_dwordx4 {vr(CSR(p,i),4)}, v21, s[12:15], s{so} offen offset:{off}'], 'bc', None, 0.3))
    pos = max(0, len(Sx.Q) - 15)
    Sx.Q[pos:pos] = extra
    def W2A(q): return 64 + 4*q if q < 4 else WA(q-4)
    POLL = 22
    for q in range(60):
        if q == pollpos:
            Sx.q([f'buffer_load_dwordx2 {vr(POLL,2)}, v9, s[12:15], s59 offen sc1'], 'poll', gate='signalled', cost=0.3)
        L = [f'buffer_load_dwordx4 {ar(W2A(q),4)}, v5, s[12:15], s58 offen offset:{1024*(q%4)}']
        if q % 4 == 3: L.append('s_add_u32 s58, s58, 4096')
        Sx.q(L, 'w2', gate=None if q < 4 else ('ks', (q-4)//3))
    SA = 224
    side = []
    for ks in range(20):
        Sx.vwait(('w', ks), 3)
        Sx.lwait(('b', ks))
        c = 0
        for i in range(3):
            for tt in range(4):
                d = vr(AC(i,tt), 4)
                t(f'v_mfma_f32_16x16x32_bf16 {d}, {ar(WA(ks*3+i),4)}, {vr(BF+(ks&1)*16+tt*4,4)}, {"0" if ks == 0 else d}')
                c += 1
                if c in (1, 2, 3, 4) and ks + 1 < 20: bread(ks + 1, [c-1])
                if c in (6, 9, 12) and stat: t(stat.pop(0))
                for _ in range(2):
                    if side: t(side.pop(0))
        Sx.gate(('ks', ks))
        if pause and ks == 19 - pause: Sx.hold += 1
        if ks == 12:
            assert not stat
            side += ['v_and_b32 v22, 3, v3', 'v_cmp_eq_u32 s[52:53], 1, v22', 'v_cmp_eq_u32 s[54:55], 2, v22', 'v_cmp_eq_u32 s[56:57], 3, v22',
                     'v_lshlrev_b32 v30, 3, v3', 's_lshl_b32 s40, s26, 9', f's_add_u32 s40, s40, {ST_OFF}', 'v_add_u32 v30, s40, v30']
            for tt in range(4):
                g = SG + 4*tt
                side += [f'v_cndmask_b32 v{SS+4*tt+1}, v{g}, v{g+1}, s[52:53]',
                         f'v_cndmask_b32 v{SS+4*tt+1}, v{SS+4*tt+1}, v{g+2}, s[54:55]',
                         f'v_cndmask_b32 v{SS+4*tt+1}, v{SS+4*tt+1}, v{g+3}, s[56:57]']
            side += ['v_lshlrev_b32 v29, 3, v2', f'v_add_u32 v29, {ST_OFF}, v29']
        if ks == 13:
            assert not side
            Sx.hold += 1
            t('s_mov_b32 exec_lo, 0x00f0000f'); t('s_mov_b32 exec_hi, 0xf0000f00')
            for tt in range(4): Sx.ds(f'ds_write_b64 v30, {vr(SS+4*tt,2)} offset:{128*tt}', 'stw')
            t('s_mov_b64 exec, -1')
            Sx.hold -= 1
        if ks == 14:
            Sx.lwait('stw')
            a('s_barrier')
            for w in range(4): Sx.ds(f'ds_read_b64 {vr(SA+2*w,2)}, v29 offset:{512*w}', 'str')
        if ks == 15:
            Sx.lwait('str')
            side += [f'v_add_f32 v{SA}, v{SA}, v{SA+2}', f'v_add_f32 v{SA+1}, v{SA+1}, v{SA+3}',
                     f'v_add_f32 v{SA+4}, v{SA+4}, v{SA+6}', f'v_add_f32 v{SA+5}, v{SA+5}, v{SA+7}',
                     f'v_add_f32 v{SA}, v{SA}, v{SA+4}', f'v_add_f32 v{SA+1}, v{SA+1}, v{SA+5}',
                     f'v_mul_f32 v{SA}, {fbits(1/640)}, v{SA}', f'v_mul_f32 v{SA+1}, {fbits(1/640)}, v{SA+1}',
                     f'v_fma_f32 v{SA+1}, -v{SA}, v{SA}, v{SA+1}', f'v_max_f32 v{SA+1}, 0, v{SA+1}',
                     f'v_add_f32 v{SA+1}, {fbits(1e-5)}, v{SA+1}', f'v_rsq_f32 v{SA+1}, v{SA+1}',
                     'v_lshlrev_b32 v31, 3, v2', 'v_add_u32 v31, s40, v31',
                     f'v_mul_f32 v{SA}, v{SA}, v{SA+1}']
        if ks == 16:
            assert not side
            Sx.ds(f'ds_write_b64 v31, {vr(SA,2)} offset:2048', 'stw2')
            for tt in range(4): Sx.ds(f'ds_read_b64 {vr(SA+8+2*tt,2)}, v30 offset:{2048+tt*128}', 'str2')
            Sx.vwait('bc', 9)
            for i in range(3):
                for r in range(4): side.append(f'v_add_f32 v{CSR(0,i)+r}, v{CSR(0,i)+r}, v{CSR(1,i)+r}')
            for i in range(3):
                for h in range(2):
                    side.append(f'v_lshlrev_b32 v{CSR(1,i)+2*h}, 16, v{B1R(i)+h}')
                    side.append(f'v_and_b32 v{CSR(1,i)+2*h+1}, 0xffff0000, v{B1R(i)+h}')
        if ks == 17:
            assert not side
            Sx.lwait('str2')
            for tt in range(4):
                for i in range(3):
                    for r in range(4):
                        side.append(f'v_fma_f32 v{AC(i,tt)-4+r}, -v{SA+8+2*tt}, v{CSR(0,i)+r}, v{CSR(1,i)+r}')
    assert not side
    stamp(a, 3, stamps); stamp(a, 0, stamps, 1)
    if verbose: print('ffn1 done', Sx.clock)
    ST = SA + 8
    t('s_mul_i32 s41, s22, 48'); t('s_mul_i32 s42, s23, 6'); t('s_add_u32 s51, s41, s42')
    t('s_add_u32 s42, s51, s26'); t('s_lshl_b32 s42, s42, 12'); t(f's_add_u32 s42, s42, {R_OFF}')
    t('s_lshr_b32 s43, s26, 1'); t('s_lshl_b32 s49, s43, 12'); t(f's_add_u32 s49, s49, {RED_OFF}')
    t('s_add_u32 s43, s43, s51'); t('s_add_u32 s43, s43, 4'); t('s_lshl_b32 s43, s43, 12')
    t('s_and_b32 s44, s26, 1'); t('s_lshl_b32 s50, s44, 3'); t('s_add_u32 s50, s50, s49')
    t('s_lshl_b32 s44, s44, 11'); t('s_add_u32 s43, s43, s44'); t(f's_add_u32 s43, s43, {R_OFF}'); t('s_add_u32 s49, s49, s44')
    t('v_add_u32 v10, s50, v5'); t('v_add_u32 v11, s49, v5')
    def epi(i, tt):
        ac = AC(i, tt); tm = ac - 4
        for h in range(2):
            t(f'v_pk_fma_f32 {vr(ac+2*h,2)}, {vr(ac+2*h,2)}, {vr(ST+2*tt,2)}, {vr(tm+2*h,2)} op_sel:[0,1,0] op_sel_hi:[1,1,1]')
        for r in range(4): t(f'v_max_f32 v{ac+r}, 0, v{ac+r}')
        for h in range(2): t(f'v_pk_mul_f32 {vr(ac+2*h,2)}, {vr(ac+2*h,2)}, {vr(ac+2*h,2)}')
        dst = YG(3, tt) + 2*i if i < 2 else YG(4, tt)
        for h in range(2): t(f'v_cvt_pk_bf16_f32 v{dst+h}, v{ac+2*h}, v{ac+2*h+1}')
    for i in range(2): epi(i, 0)
    Sx.mem(f'buffer_store_dwordx4 {vr(YG(3,0),4)}, v5, s[12:15], s42 offen sc1', 'rst')
    for tt in range(4):
        epi(2, tt)
        Sx.ds(f'ds_write_b64 v10, {vr(YG(4,tt),2)} offset:{1024*tt}', 'xw')
    for tt in range(1, 3):
        for i in range(2): epi(i, tt)
        Sx.mem(f'buffer_store_dwordx4 {vr(YG(3,tt),4)}, v5, s[12:15], s42 offen offset:{1024*tt} sc1', 'rst')
    Sx.lwait('xw')
    a('s_barrier')
    for j in range(2): Sx.ds(f'ds_read_b128 {vr(YG(4,j),4)}, v11 offset:{1024*j}', 'xr2')
    for i in range(2): epi(i, 3)
    Sx.mem(f'buffer_store_dwordx4 {vr(YG(3,3),4)}, v5, s[12:15], s42 offen offset:3072 sc1', 'rst')
    Sx.lwait('xr2')
    for j in range(2): Sx.mem(f'buffer_store_dwordx4 {vr(YG(4,j),4)}, v5, s[12:15], s43 offen offset:{1024*j} sc1', 'rst')
    if pause: Sx.hold -= 1
    if strict == 1: Sx.hold += 1
    stamp(a, 1, stamps, 1)
    if verbose: print('r stored', Sx.clock)
    ACC = 32
    def acc(u, i): return ACC + (u*5+i)*4
    B2 = 112
    t('s_mul_i32 s45, s23, 160')
    for i in range(5):
        Sx.mem(f'buffer_load_dwordx2 {vr(B2+2*i,2)}, v20, s[80:83], s45 offen offset:{32*i}', 'b2', 0.3)
    t('s_lshl_b32 s46, s22, 8'); t(f's_add_u32 s46, s46, {FLAG_OFF}')
    t('s_lshl_b32 s59, s26, 6'); t('s_add_u32 s59, s59, s46')
    t('s_lshr_b32 s47, s23, 1'); t('s_lshl_b32 s47, s47, 6'); t('s_add_u32 s46, s46, s47')
    t('s_and_b32 s47, s23, 1'); t('s_lshl_b32 s47, s47, 2'); t('s_add_u32 s46, s46, s47')
    t('v_mov_b32 v9, 0')
    t('v_mov_b32 v28, 1')
    t('s_mul_i32 s47, s23, 5')
    for i in range(5):
        t(f's_add_u32 s48, s47, {i}')
        t('s_lshr_b32 s49, s48, 2'); t('s_lshl_b32 s49, s49, 13'); t('s_add_u32 s49, s49, s27')
        t('s_and_b32 s50, s48, 1'); t('s_lshl_b32 s50, s50, 3'); t('s_add_u32 s49, s49, s50')
        t('s_and_b32 s50, s48, 2'); t('s_lshl_b32 s50, s50, 5')
        t('v_xor_b32 v29, s50, v7'); t('v_add_u32 v29, s49, v29')
        Sx.ds(f'ds_read_b64 {vr(B2+10+2*i,2)}, v29', 'hres')
    for u in range(4):
        t(f'v_add_u32 v{10+u}, {u}, v1'); t(f'v_and_b32 v{10+u}, 3, v{10+u}')
        t(f'v_mul_u32_u24 v{14+u}, 15360, v{10+u}')
        t(f'v_lshl_add_u32 v{10+u}, v{10+u}, 10, v5')
        t(f'v_add_u32 v{14+u}, v{14+u}, v5'); t(f'v_add_u32 v{14+u}, {RED_OFF}, v{14+u}')
    t('s_mul_i32 s48, s26, 12'); t('s_add_u32 s48, s48, s41'); t('s_lshl_b32 s48, s48, 12'); t(f's_add_u32 s48, s48, {R_OFF}')
    stamp(a, 2, stamps, 1)
    if strict:
        Sx.hold += 1; Sx.vwait(Sx.tags[-1]); Sx.hold -= 1
        assert not Sx.vm.q
        if strict == 1: Sx.hold -= 1
    else: Sx.vwait('rst')
    stamp(a, 3, stamps, 1)
    a('s_barrier')
    Sx.hold += 1
    t('s_cmp_lg_u32 s26, 0')
    t(f's_cbranch_scc1 {name}_nosig')
    t('s_mov_b64 exec, 1')
    t('buffer_store_dword v28, v9, s[12:15], s46 offen sc1')
    t('s_mov_b64 exec, -1')
    a.label(f'{name}_nosig')
    Sx.hold -= 1
    Sx.gate('signalled')
    stamp(a, 4, stamps); stamp(a, 4, stamps, 1)
    if verbose: print('signalled', Sx.clock)
    Sx.lwait('hres'); Sx.vwait('b2')
    for q in range(10):
        t(f'v_lshlrev_b32 v{ACC+2*q}, 16, v{B2+q}'); t(f'v_and_b32 v{ACC+2*q+1}, 0xffff0000, v{B2+q}')
        t(f'v_lshlrev_b32 v132, 16, v{B2+10+q}'); t(f'v_and_b32 v133, 0xffff0000, v{B2+10+q}')
        t(f'v_pk_add_f32 {vr(ACC+2*q,2)}, {vr(ACC+2*q,2)}, v[132:133]')
    t('s_lshl_b32 s49, s26, 12')
    t('v_mul_u32_u24 v18, 176, v3'); t('v_add_u32 v18, v18, v20'); t('v_add_u32 v18, s49, v18')
    t('s_lshl_b32 s50, s26, 9'); t('s_add_u32 s50, s50, s24'); t('s_mul_i32 s50, s50, 1280'); t('s_add_u32 s50, s50, s45')
    for q in range(3):
        t(f'v_add_u32 v30, {64*q}, v2')
        t('v_mul_u32_u24 v31, 205, v30'); t('v_lshrrev_b32 v31, 11, v31')
        t('v_mul_u32_u24 v19, 10, v31'); t('v_sub_u32 v30, v30, v19'); t('v_lshlrev_b32 v30, 4, v30')
        t(f'v_mul_u32_u24 v{24+q}, 176, v31'); t(f'v_add_u32 v{24+q}, v{24+q}, v30'); t(f'v_add_u32 v{24+q}, s49, v{24+q}')
        t(f'v_mul_u32_u24 v{27+q}, 0xa000, v31'); t(f'v_add_u32 v{27+q}, v{27+q}, v30')
    t('v_cmp_gt_u32 vcc, 32, v2'); t('v_mov_b32 v30, 0x7ff00000'); t('v_cndmask_b32 v29, v30, v29, vcc')
    Sx.need('poll', 1)
    Sx.flush()
    assert not Sx.Q
    stamp(a, 5, stamps, 1)
    Sx.vwait('poll')
    a('s_mov_b32 s44, 0')
    a.label(f'{name}_chk')
    a(f'v_and_b32 v{POLL}, v{POLL}, v{POLL+1}')
    a(f'v_readfirstlane_b32 s47, v{POLL}')
    a('s_cmp_eq_u32 s47, 1')
    a(f's_cbranch_scc1 {name}_go')
    a('s_add_u32 s44, s44, 1')
    a('s_cmp_gt_u32 s44, 0x100000')
    a(f's_cbranch_scc1 {name}_go')
    a(f'buffer_load_dwordx2 {vr(POLL,2)}, v9, s[12:15], s59 offen sc1')
    a('s_waitcnt vmcnt(0)')
    a(f's_branch {name}_chk')
    a.label(f'{name}_go')
    stamp(a, 5, stamps); stamp(a, 6, stamps, 1)
    if verbose: print('go', Sx.clock)
    RF = 136; NRF = 30
    if R3: Sx.R = R3
    if D3: Sx.DEPTH = D3
    uorder = [1, 2, 3, 0]
    for li in range(48):
        u = uorder[li // 12]; ks = li % 12
        L = [f'buffer_load_dwordx4 {vr(RF+(li%NRF)*4,4)}, v{10+u}, s[12:15], s48 offen sc1']
        L.append('s_add_u32 s48, s48, 4096' if ks < 11 else f's_sub_u32 s48, s48, {11*4096}')
        Sx.q(L, ('r', li), gate=None if li < NRF else ('rc', li - NRF))
    for _ in range(4): Sx.pop()
    Sx.vwait('w2')
    side = []
    for li in range(48):
        u = uorder[li // 12]; ks = li % 12
        Sx.vwait(('r', li), 1)
        for i in range(5):
            d = vr(acc(u,i), 4)
            cc = '0' if (ks == 0 and u != 0) else d
            t(f'v_mfma_f32_16x16x32_bf16 {d}, {ar(W2A(ks*5+i),4)}, {vr(RF+(li%NRF)*4,4)}, {cc}')
            for _ in range(2):
                if side:
                    x = side.pop(0)
                    if x.startswith('ds_'): Sx.ds(x, 'red'); break
                    t(x)
        Sx.gate(('rc', li))
        if ks == 1 and li >= 12:
            up = uorder[li // 12 - 1]
            for i in range(5): side.append(f'ds_write_b128 v{14+up}, {vr(acc(up,i),4)} offset:{((up-1)*5+i)*1024}')
        if li == 36 + 4:
            assert not side
            Sx.lwait_all(0)
            a('s_barrier')
            for s_ in range(3):
                for i in range(5): side.append(f'ds_read_b128 {vr(acc(1+s_,i),4)}, v14 offset:{(s_*5+i)*1024}')
        if li == 36 + 8:
            assert not side
            Sx.lwait_all(0)
            for q in range(20): side.append(f'v_add_f32 v{acc(1,0)+q}, v{acc(1,0)+q}, v{acc(2,0)+q}')
            for q in range(10): side.append(f'v_add_f32 v{acc(1,0)+q}, v{acc(1,0)+q}, v{acc(3,0)+q}')
    assert not side
    for q in range(10, 20): t(f'v_add_f32 v{acc(1,0)+q}, v{acc(1,0)+q}, v{acc(3,0)+q}')
    stamp(a, 6, stamps)
    if verbose: print('ffn2 done', Sx.clock)
    for i in range(5):
        for h in range(2):
            t(f'v_pk_add_f32 {vr(acc(0,i)+2*h,2)}, {vr(acc(0,i)+2*h,2)}, {vr(acc(1,i)+2*h,2)}')
        for h in range(2):
            t(f'v_cvt_pk_bf16_f32 v{B2+2*i+h}, v{acc(0,i)+2*h}, v{acc(0,i)+2*h+1}')
        t(f'ds_write_b64 v18, {vr(B2+2*i,2)} offset:{32*i}')
    for q in range(3): t(f'ds_read_b128 {vr(RF+4*q,4)}, v{24+q}')
    for q in range(3):
        a(f's_waitcnt lgkmcnt({2-q})')
        a(f'buffer_store_dwordx4 {vr(RF+4*q,4)}, v{27+q}, s[84:87], s50 offen {oflag}')
    if stamps:
        write_stamps(a, 8, 1, 26)
    a.label(f'{name}_end')
    a('s_endpgm')
    return dict(vgpr=512, sgpr=96, accum=256, lds=LDS_CD, threads=256)
```

```python
import sys, importlib, build2, kA2
import diag as dg
from common import *
def mk(fn, mod, ij, **kw):
    m = importlib.import_module(mod)
    m.write_stamps = dg.ws_diag
    build2.gen_kCD = lambda a, name, stamps, **k2: m.gen_kCD(a, name, stamps=True, **k2)
    dg.DIAG[0] = ij
    build2.build(fn, akw=dict(stflag='sc1'), ckw=kw)
if __name__ == '__main__':
    mk('e0.s', 'kCD4', (0,7), DEPTH=8)
    mk('e1.s', 'kCD7', (0,7), DEPTH=8)
    mk('e2.s', 'kCD7', (0,7), DEPTH=8, DL=10)
    mk('e3.s', 'kCD7', (0,7), DEPTH=8, holdepi=1)
    mk('e4.s', 'kCD6', (0,7), DEPTH=8, npre=4, npre2=12, pollpos=50)
    mk('e5.s', 'kCD6', (0,7), DEPTH=8, npre=4, npre2=24, pollpos=56)
```

```python
from common import *
from sched import Sched

ST_OFF = 81920
RED_OFF = ST_OFF + 4096
LDS_CD = RED_OFF + 61440

def gen_kCD(a, name, mapping='B', stamps=False, R=80, LAT=600, DEPTH=9, oflag='', pollpos=50, pause=0, verbose=False, R2=None, R3=None, D3=None, s2mode=0, strict=0, smode=0, pretouch=0, pfw=0, pfpos=0):
    def stamp(a_, idx, on, mode=0):
        if on and mode == smode: a_(f's_memrealtime s[{60+2*idx}:{61+2*idx}]')

    a.raw(f'.globl {name}\n.p2align 8\n.type {name},@function\n{name}:')
    a.reset_hist()
    a('s_cmp_ge_u32 s2, 256')
    a(f's_cbranch_scc1 {name}_end')
    stamp(a, 0, stamps)
    a('s_load_dwordx2 s[8:9], s[0:1], 0')
    a('s_load_dwordx2 s[12:13], s[0:1], 96')
    a('s_load_dwordx2 s[16:17], s[0:1], 56')
    a('s_load_dwordx4 s[4:7], s[0:1], 72')
    a('v_lshrrev_b32 v1, 6, v0')
    a('v_and_b32 v2, 63, v0')
    a('v_readfirstlane_b32 s26, v1')
    emit_map(a, mapping, 22, 23)
    emit_rho_t1(a, 22, 24, 25)
    a('v_lshrrev_b32 v6, 3, v2')
    a('v_xor_b32 v7, v6, v2')
    a('v_and_b32 v7, 7, v7')
    a('v_mul_u32_u24 v6, 0xa000, v6')
    a('v_lshl_add_u32 v6, v7, 4, v6')
    a('s_lshl_b32 s32, s26, 9'); a('s_add_u32 s32, s32, s24'); a('s_mul_i32 s32, s32, 1280')
    a(f's_add_u32 s33, s32, {256*1280}')
    a('s_lshl_b32 s27, s26, 11')
    a('s_sub_u32 s25, 32, s24'); a('s_and_b32 s25, s25, 31')
    a('s_mul_i32 s34, s26, 2560')
    a(f's_add_u32 s35, s34, {U_OFF - 16}')
    a(f's_sub_u32 s34, {U_OFF + (639-15)*16}, s34')
    a('s_cmp_lt_u32 s26, 2')
    a('s_cselect_b64 vcc, -1, 0')
    a('s_cselect_b32 s28, 1, -1')
    a('s_cselect_b32 s30, s24, s25')
    a('s_cselect_b32 s38, 0, 0x80000000')
    a('s_cselect_b32 s39, 0, 1')
    a('s_cselect_b32 s35, s35, s34')
    a('s_lshl_b32 s28, s28, 8')
    a(f's_or_b32 s38, s38, {fbits(1/2048)}')
    a('s_cmp_eq_u32 s24, 0'); a('s_cselect_b32 s39, 0, s39')
    a(f's_mul_i32 s31, s30, {U_T1}'); a('s_add_u32 s31, s31, s35')
    a('s_lshl_b32 s36, s23, 2'); a('s_add_u32 s36, s36, s26')
    a(f's_mul_i32 s37, s36, {60*1024}'); a(f's_add_u32 s58, s37, {W2P_OFF}'); a(f's_add_u32 s37, s37, {W1P_OFF}'); a('s_add_u32 s29, s37, 40960')
    a('s_waitcnt lgkmcnt(0)')
    srd(a, 8, 8, 9, S*D*2)
    Sx = Sched(a, R=R, LAT=LAT, DEPTH=DEPTH)
    t = Sx
    for ap in range(10):
        for o in range(2):
            Sx.q([f's_add_u32 m0, s27, {ap*8192 + o*1024 - 128*ap}', f'buffer_load_dwordx4 v6, s[8:11], s{32+o} offen offset:{128*ap} lds'], 'x')
    def UA(tl, ks2): return (tl*2+ks2)*4
    for tl in range(10):
        for ks2 in range(2):
            vo = (12 if tl == 0 else 10) + ks2
            L = [f'buffer_load_dwordx4 {ar(UA(tl,ks2),4)}, v{vo}, s[12:15], s31 offen']
            if ks2 == 1 and tl < 9: L.append('s_add_u32 s31, s31, s28')
            Sx.q(L, ('u', tl//2), gate='addr')
    def WA(fr): return 80 + fr*4 if fr < 44 else (fr-44)*4
    for fr in range(60):
        ks_, i_ = divmod(fr, 3)
        if i_ < 2:
            m = 2*ks_ + i_
            L = [f'buffer_load_dwordx4 {ar(WA(fr),4)}, v5, s[12:15], s37 offen offset:{1024*(m%4)}']
            if m % 4 == 3: L.append('s_add_u32 s37, s37, 4096')
        else:
            L = [f'buffer_load_dwordx4 {ar(WA(fr),4)}, v5, s[12:15], s29 offen offset:{1024*(ks_%4)}']
            if ks_ % 4 == 3: L.append('s_add_u32 s29, s29, 4096')
        Sx.q(L, ('w', fr//3), gate='s2done' if fr >= 44 else None)
    if pfw:
        pf = []
        if pfw & 1: pf.append((['buffer_load_dword v9, v31, s[12:15], s88 offen'], 'pf', 'pfa', 4.0))
        if pfw & 2: pf.append((['buffer_load_dword v9, v31, s[12:15], s89 offen'], 'pf', 'pfa', 4.0))
        Sx.Q[40+pfpos:40+pfpos] = pf
    for _ in range(4): Sx.pop()
    for l in (f's_mov_b32 s14, {ws_size(stamps)}', 's_mov_b32 s15, 0x20000', f's_mov_b32 s18, {F*2}', 's_mov_b32 s19, 0x20000',
              's_mov_b32 s80, s4', 's_mov_b32 s81, s5', f's_mov_b32 s82, {D*2}', 's_mov_b32 s83, 0x20000',
              's_mov_b32 s84, s6', 's_mov_b32 s85, s7', f's_mov_b32 s86, {S*D*2}', 's_mov_b32 s87, 0x20000'): t(l)
    t('v_and_b32 v3, 15, v2')
    t('v_lshrrev_b32 v4, 4, v2')
    t('v_lshlrev_b32 v5, 4, v2')
    t('v_sub_u32 v11, 15, v3')
    t('v_cndmask_b32 v10, v11, v3, vcc')
    t('v_mul_u32_u24 v11, 5120, v4')
    t('v_lshl_add_u32 v10, v10, 4, v11')
    t('v_add_u32 v11, 0x5000, v10')
    t('v_and_b32 v12, 0xcf, v0')
    t('v_cmp_eq_u32 vcc, 0, v12')
    t('v_mov_b32 v14, 0x7ff00000')
    t('v_cndmask_b32 v12, v10, v14, vcc')
    t('v_cndmask_b32 v13, v11, v14, vcc')
    Sx.gate('addr')
    t('v_xor_b32 v7, v4, v3'); t('v_and_b32 v7, 7, v7'); t('v_lshlrev_b32 v7, 4, v7'); t('v_lshl_add_u32 v7, v3, 7, v7')
    t('v_xor_b32 v8, 64, v7')
    t('v_add_u32 v24, 0xa000, v7'); t('v_add_u32 v25, 0xa000, v8')
    t('s_mul_i32 s40, s26, 5'); t('s_lshr_b32 s41, s40, 1'); t('s_lshl_b32 s41, s41, 13')
    t('s_and_b32 s42, s26, 1'); t('s_lshl_b32 s43, s42, 6'); t('s_lshl_b32 s42, s42, 13'); t('s_add_u32 s42, s42, s41')
    t('v_xor_b32 v26, s43, v7'); t('v_add_u32 v26, s41, v26')
    t('v_xor_b32 v27, s43, v8'); t('v_add_u32 v27, s42, v27')
    def own(kk, tt): return (26 + (kk & 1), (kk//2)*8192 + tt*2048)
    t('v_and_b32 v28, 1, v3'); t('v_lshlrev_b32 v28, 4, v28'); t('v_mov_b32 v29, 0x3f80'); t('v_lshlrev_b32 v28, v28, v29')
    t('v_lshrrev_b32 v29, 1, v3')
    t('v_lshlrev_b32 v30, 2, v4'); t('v_sub_u32 v29, v29, v30')
    for q in range(4):
        t(f'v_cmp_eq_u32 vcc, {q}, v29'); t(f'v_cmp_eq_u32 s[44:45], {q-8}, v29')
        t(f'v_cndmask_b32 v{16+q}, 0, v28, vcc'); t(f'v_cndmask_b32 v{20+q}, 0, v28, s[44:45]')
    M = 32; T = 64
    t('v_lshlrev_b32 v14, 5, v3'); t('v_add_u32 v14, s24, v14')
    t('v_lshlrev_b32 v15, 1, v4'); t('v_cvt_f32_u32 v15, v15')
    t('v_xor_b32 v28, s39, v3'); t('v_lshlrev_b32 v28, 31, v28'); t('v_or_b32 v28, 0x38003800, v28')
    t('v_cmp_eq_u32 vcc, 0, v4')
    for tt in range(4):
        t(f'v_add_u32 v29, {512*tt}, v14')
        t('v_cvt_f32_u32 v29, v29')
        t('v_mul_f32 v29, s38, v29')
        t(f'v_mul_f32 v{T}, v29, v15')
        t(f'v_sub_f32 v30, 0, v{T}')
        for ks2 in range(2):
            for j in range(4):
                if ks2 == 0 and j == 0: continue
                c = [8*ks2, 32-8*ks2, 8*ks2+1, 31-8*ks2][j]
                t(f'v_fmamk_f32 v{T+ks2*4+j}, v29, {fbits(float(c))}, v{T if j%2==0 else 30}')
        t(f'v_mul_f32 v31, {fbits(16.0)}, v29')
        t(f'v_cndmask_b32 v{T+1}, v{T+1}, v31, vcc')
        for j in range(8): t(f'v_sin_f32 v{T+8+j}, v{T+j}')
        for j in range(8): t(f'v_cos_f32 v{T+j}, v{T+j}')
        for j in range(8): t(f'v_cvt_pk_f16_f32 v{M+tt*8+j}, v{T+j}, v{T+8+j}')
        t(f'v_cndmask_b32 v{M+tt*8}, v{M+tt*8}, v28, vcc')
    if pfw:
        for l in ['s_and_b32 s88, s22, 7', 's_lshl_b32 s88, s88, 2', 's_add_u32 s88, s88, s26', 's_mul_i32 s88, s88, 7680', f's_mul_i32 s89, s23, {240*1024}',
                  's_add_u32 s88, s88, s89', f's_add_u32 s89, s88, {W1P_OFF}', f's_add_u32 s88, s88, {W2P_OFF}', 'v_min_u32 v31, 59, v2', 'v_lshlrev_b32 v31, 7, v31']: t(l)
        Sx.gate('pfa')
    if verbose: print('Mgen done', Sx.clock)
    Sx.vwait('x', 20)
    a('s_barrier')
    stamp(a, 1, stamps)
    if verbose: print('x barrier', Sx.clock)
    Y = 64; XF = 224
    def YG(kk, tt): return Y + (kk*4+tt)*8
    def xread(kk):
        for tt in range(4):
            va, off = own(kk, tt)
            Sx.ds(f'ds_read_b128 {vr(XF+(kk&1)*16+tt*4,4)}, v{va} offset:{off}', ('xr', kk))
    def xadd(kk, pend=None):
        if kk + 1 < 5: xread(kk+1)
        Sx.lwait(('xr', kk), 100 if kk == 0 else 0)
        c = 0
        for tt in range(4):
            for i in range(2):
                t(f'v_mfma_f32_16x16x32_bf16 {vr(YG(kk,tt)+4*i,4)}, {vr(16+4*i,4)}, {vr(XF+(kk&1)*16+tt*4,4)}, 0')
                c += 1
                if pend and c >= 3:
                    x = pend.pop(0)
                    (Sx.ds(x, 'hw') if x.startswith('ds_') else t(x))
    xread(0)
    nx = {0: 5, 1: 1, 2: 2}[s2mode]
    for kk in range(nx): xadd(kk)
    def packlist(kk):
        L = []
        for tt in range(4):
            b = YG(kk, tt)
            for j in range(4): L.append(f'v_cvt_pk_bf16_f32 v{b+j}, v{b+2*j}, v{b+2*j+1}')
            va, off = own(kk, tt)
            L.append(f'ds_write_b128 v{va}, {vr(b,4)} offset:{off}')
        return L
    pend = []
    def emitp(x): (Sx.ds(x, 'hw') if x.startswith('ds_') else t(x))
    for kk in range(5):
        Sx.vwait(('u', kk), 4)
        c = 0
        order = [(ks2, tt, i) for ks2 in range(2) for tt in range(4) for i in range(2)]
        if kk == 4: order = [(ks2, tt, i) for tt in range(4) for ks2 in range(2) for i in range(2)]
        for ks2, tt, i in order:
            d = vr(YG(kk,tt)+4*i, 4)
            t(f'v_mfma_f32_16x16x32_f16 {d}, {ar(UA(2*kk+i,ks2),4)}, {vr(M+tt*8+ks2*4,4)}, {d}')
            c += 1
            if c >= 3 or s2mode:
                for _ in range(2 if not s2mode else 1):
                    if pend: emitp(pend.pop(0))
        while pend: emitp(pend.pop(0))
        pend = packlist(kk)
        if nx < 5: xadd(nx, pend); nx += 1
    Sx.gate('s2done')
    while pend: emitp(pend.pop(0))
    Sx.lwait_all()
    a('s_barrier')
    stamp(a, 2, stamps)
    if verbose: print('h barrier', Sx.clock)
    if R2: Sx.R = R2
    BF = 32
    def bread(ks, tts=range(4)):
        for tt in tts:
            off = (ks//2)*8192 + tt*2048
            va = 7 + (ks & 1)
            if off >= 40960: va = 24 + (ks & 1); off -= 40960
            Sx.ds(f'ds_read_b128 {vr(BF+(ks&1)*16+tt*4,4)}, v{va} offset:{off}', ('b', ks))
    def UP(gi): return YG(gi//4, gi%4) + 4
    def AC(i, tt): return UP(i*4+tt)
    bread(0)
    for j in range(4): t(f'v_mov_b32 v{16+j}, 0x3f803f80')
    SS = 224; SG = 240
    stat = []
    for kk in range(5):
        for tt in range(4):
            h = vr(YG(kk,tt), 4)
            stat.append(f'v_mfma_f32_16x16x32_bf16 {vr(SS+4*tt,4)}, v[16:19], {h}, {"0" if kk == 0 else vr(SS+4*tt,4)}')
            stat.append(f'v_mfma_f32_16x16x32_bf16 {vr(SG+4*tt,4)}, {h}, {h}, {"0" if kk == 0 else vr(SG+4*tt,4)}')
    def CSR(p, i): return UP(12 + p*3 + i)
    def B1R(i): return UP(18) + 2*i if i < 2 else UP(19)
    t('s_mul_i32 s42, s23, 12'); t('s_lshl_b32 s43, s26, 1'); t('s_add_u32 s43, s43, s42')
    t('s_add_u32 s44, s42, 8'); t('s_add_u32 s44, s44, s26')
    t('s_lshl_b32 s45, s43, 5'); t('s_lshl_b32 s46, s44, 5')
    t('s_lshl_b32 s47, s43, 6'); t(f's_add_u32 s47, s47, {CS_OFF}')
    t('s_lshl_b32 s48, s44, 6'); t(f's_add_u32 s48, s48, {CS_OFF}')
    t('s_add_u32 s49, s47, 6144'); t('s_add_u32 s50, s48, 6144')
    t('v_lshlrev_b32 v20, 3, v4')
    t('v_lshlrev_b32 v21, 4, v4')
    for _ in range(6): t(stat.pop(0))
    if pretouch:
        for l in ['s_mul_i32 s88, s22, 48', 's_mul_i32 s89, s23, 6', 's_add_u32 s88, s88, s89', 's_add_u32 s89, s88, s26', 's_lshl_b32 s89, s89, 12', f's_add_u32 s89, s89, {R_OFF}',
                  's_lshr_b32 s90, s26, 1', 's_add_u32 s90, s90, s88', 's_add_u32 s90, s90, 4', 's_lshl_b32 s90, s90, 12', 's_and_b32 s91, s26, 1', 's_lshl_b32 s91, s91, 11', 's_add_u32 s90, s90, s91', f's_add_u32 s90, s90, {R_OFF}',
                  'v_lshlrev_b32 v10, 6, v2']: t(l)
        pt = [([f'buffer_load_dword v11, v10, s[12:15], s89 offen sc1'], 'pt', None, 2.0 if pretouch == 2 else 0.3)]
        if pretouch == 1: t('v_mov_b32 v10, 0')
        if pretouch == 2:
            t('v_lshlrev_b32 v12, 5, v2')
            pt.append(([f'buffer_load_dword v13, v12, s[12:15], s90 offen sc1'], 'pt', None, 1.0))
        Sx.Q[0:0] = pt
    extra = []
    for i in range(3):
        so, off = (45, 32*i) if i < 2 else (46, 0)
        extra.append(([f'buffer_load_dwordx2 {vr(B1R(i),2)}, v20, s[16:19], s{so} offen offset:{off}'], 'bc', None, 0.3))
    for p in range(2):
        for i in range(3):
            so, off = (47+2*p, 64*i) if i < 2 else (48+2*p, 0)
            extra.append(([f'buffer_load_dwordx4 {vr(CSR(p,i),4)}, v21, s[12:15], s{so} offen offset:{off}'], 'bc', None, 0.3))
    pos = max(0, len(Sx.Q) - 15)
    Sx.Q[pos:pos] = extra
    def W2A(q): return 64 + 4*q if q < 4 else WA(q-4)
    POLL = 22
    for q in range(60):
        if q == pollpos:
            Sx.q([f'buffer_load_dwordx2 {vr(POLL,2)}, v9, s[12:15], s59 offen sc1'], 'poll', gate='signalled', cost=0.3)
        L = [f'buffer_load_dwordx4 {ar(W2A(q),4)}, v5, s[12:15], s58 offen offset:{1024*(q%4)}']
        if q % 4 == 3: L.append('s_add_u32 s58, s58, 4096')
        Sx.q(L, 'w2', gate=None if q < 4 else ('ks', (q-4)//3))
    SA = 224
    side = []
    for ks in range(20):
        Sx.vwait(('w', ks), 3)
        Sx.lwait(('b', ks))
        c = 0
        for i in range(3):
            for tt in range(4):
                d = vr(AC(i,tt), 4)
                t(f'v_mfma_f32_16x16x32_bf16 {d}, {ar(WA(ks*3+i),4)}, {vr(BF+(ks&1)*16+tt*4,4)}, {"0" if ks == 0 else d}')
                c += 1
                if c in (1, 2, 3, 4) and ks + 1 < 20: bread(ks + 1, [c-1])
                if c in (6, 9, 12) and stat: t(stat.pop(0))
                for _ in range(2):
                    if side: t(side.pop(0))
        Sx.gate(('ks', ks))
        if pause and ks == 19 - pause: Sx.hold += 1
        if ks == 12:
            assert not stat
            side += ['v_and_b32 v22, 3, v3', 'v_cmp_eq_u32 s[52:53], 1, v22', 'v_cmp_eq_u32 s[54:55], 2, v22', 'v_cmp_eq_u32 s[56:57], 3, v22',
                     'v_lshlrev_b32 v30, 3, v3', 's_lshl_b32 s40, s26, 9', f's_add_u32 s40, s40, {ST_OFF}', 'v_add_u32 v30, s40, v30']
            for tt in range(4):
                g = SG + 4*tt
                side += [f'v_cndmask_b32 v{SS+4*tt+1}, v{g}, v{g+1}, s[52:53]',
                         f'v_cndmask_b32 v{SS+4*tt+1}, v{SS+4*tt+1}, v{g+2}, s[54:55]',
                         f'v_cndmask_b32 v{SS+4*tt+1}, v{SS+4*tt+1}, v{g+3}, s[56:57]']
            side += ['v_lshlrev_b32 v29, 3, v2', f'v_add_u32 v29, {ST_OFF}, v29']
        if ks == 13:
            assert not side
            Sx.hold += 1
            t('s_mov_b32 exec_lo, 0x00f0000f'); t('s_mov_b32 exec_hi, 0xf0000f00')
            for tt in range(4): Sx.ds(f'ds_write_b64 v30, {vr(SS+4*tt,2)} offset:{128*tt}', 'stw')
            t('s_mov_b64 exec, -1')
            Sx.hold -= 1
        if ks == 14:
            Sx.lwait('stw')
            a('s_barrier')
            for w in range(4): Sx.ds(f'ds_read_b64 {vr(SA+2*w,2)}, v29 offset:{512*w}', 'str')
        if ks == 15:
            Sx.lwait('str')
            side += [f'v_add_f32 v{SA}, v{SA}, v{SA+2}', f'v_add_f32 v{SA+1}, v{SA+1}, v{SA+3}',
                     f'v_add_f32 v{SA+4}, v{SA+4}, v{SA+6}', f'v_add_f32 v{SA+5}, v{SA+5}, v{SA+7}',
                     f'v_add_f32 v{SA}, v{SA}, v{SA+4}', f'v_add_f32 v{SA+1}, v{SA+1}, v{SA+5}',
                     f'v_mul_f32 v{SA}, {fbits(1/640)}, v{SA}', f'v_mul_f32 v{SA+1}, {fbits(1/640)}, v{SA+1}',
                     f'v_fma_f32 v{SA+1}, -v{SA}, v{SA}, v{SA+1}', f'v_max_f32 v{SA+1}, 0, v{SA+1}',
                     f'v_add_f32 v{SA+1}, {fbits(1e-5)}, v{SA+1}', f'v_rsq_f32 v{SA+1}, v{SA+1}',
                     'v_lshlrev_b32 v31, 3, v2', 'v_add_u32 v31, s40, v31',
                     f'v_mul_f32 v{SA}, v{SA}, v{SA+1}']
        if ks == 16:
            assert not side
            Sx.ds(f'ds_write_b64 v31, {vr(SA,2)} offset:2048', 'stw2')
            for tt in range(4): Sx.ds(f'ds_read_b64 {vr(SA+8+2*tt,2)}, v30 offset:{2048+tt*128}', 'str2')
            Sx.vwait('bc', 9)
            for i in range(3):
                for r in range(4): side.append(f'v_add_f32 v{CSR(0,i)+r}, v{CSR(0,i)+r}, v{CSR(1,i)+r}')
            for i in range(3):
                for h in range(2):
                    side.append(f'v_lshlrev_b32 v{CSR(1,i)+2*h}, 16, v{B1R(i)+h}')
                    side.append(f'v_and_b32 v{CSR(1,i)+2*h+1}, 0xffff0000, v{B1R(i)+h}')
        if ks == 17:
            assert not side
            Sx.lwait('str2')
            for tt in range(4):
                for i in range(3):
                    for r in range(4):
                        side.append(f'v_fma_f32 v{AC(i,tt)-4+r}, -v{SA+8+2*tt}, v{CSR(0,i)+r}, v{CSR(1,i)+r}')
    assert not side
    stamp(a, 3, stamps); stamp(a, 0, stamps, 1)
    if verbose: print('ffn1 done', Sx.clock)
    ST = SA + 8
    t('s_mul_i32 s41, s22, 48'); t('s_mul_i32 s42, s23, 6'); t('s_add_u32 s51, s41, s42')
    t('s_add_u32 s42, s51, s26'); t('s_lshl_b32 s42, s42, 12'); t(f's_add_u32 s42, s42, {R_OFF}')
    t('s_lshr_b32 s43, s26, 1'); t('s_lshl_b32 s49, s43, 12'); t(f's_add_u32 s49, s49, {RED_OFF}')
    t('s_add_u32 s43, s43, s51'); t('s_add_u32 s43, s43, 4'); t('s_lshl_b32 s43, s43, 12')
    t('s_and_b32 s44, s26, 1'); t('s_lshl_b32 s50, s44, 3'); t('s_add_u32 s50, s50, s49')
    t('s_lshl_b32 s44, s44, 11'); t('s_add_u32 s43, s43, s44'); t(f's_add_u32 s43, s43, {R_OFF}'); t('s_add_u32 s49, s49, s44')
    t('v_add_u32 v10, s50, v5'); t('v_add_u32 v11, s49, v5')
    def epi(i, tt):
        ac = AC(i, tt); tm = ac - 4
        for h in range(2):
            t(f'v_pk_fma_f32 {vr(ac+2*h,2)}, {vr(ac+2*h,2)}, {vr(ST+2*tt,2)}, {vr(tm+2*h,2)} op_sel:[0,1,0] op_sel_hi:[1,1,1]')
        for r in range(4): t(f'v_max_f32 v{ac+r}, 0, v{ac+r}')
        for h in range(2): t(f'v_pk_mul_f32 {vr(ac+2*h,2)}, {vr(ac+2*h,2)}, {vr(ac+2*h,2)}')
        dst = YG(3, tt) + 2*i if i < 2 else YG(4, tt)
        for h in range(2): t(f'v_cvt_pk_bf16_f32 v{dst+h}, v{ac+2*h}, v{ac+2*h+1}')
    for i in range(2): epi(i, 0)
    Sx.mem(f'buffer_store_dwordx4 {vr(YG(3,0),4)}, v5, s[12:15], s42 offen sc1', 'rst')
    for tt in range(4):
        epi(2, tt)
        Sx.ds(f'ds_write_b64 v10, {vr(YG(4,tt),2)} offset:{1024*tt}', 'xw')
    for tt in range(1, 3):
        for i in range(2): epi(i, tt)
        Sx.mem(f'buffer_store_dwordx4 {vr(YG(3,tt),4)}, v5, s[12:15], s42 offen offset:{1024*tt} sc1', 'rst')
    Sx.lwait('xw')
    a('s_barrier')
    for j in range(2): Sx.ds(f'ds_read_b128 {vr(YG(4,j),4)}, v11 offset:{1024*j}', 'xr2')
    for i in range(2): epi(i, 3)
    Sx.mem(f'buffer_store_dwordx4 {vr(YG(3,3),4)}, v5, s[12:15], s42 offen offset:3072 sc1', 'rst')
    Sx.lwait('xr2')
    for j in range(2): Sx.mem(f'buffer_store_dwordx4 {vr(YG(4,j),4)}, v5, s[12:15], s43 offen offset:{1024*j} sc1', 'rst')
    if pause: Sx.hold -= 1
    if strict == 1: Sx.hold += 1
    stamp(a, 1, stamps, 1)
    if verbose: print('r stored', Sx.clock)
    ACC = 32
    def acc(u, i): return ACC + (u*5+i)*4
    B2 = 112
    t('s_mul_i32 s45, s23, 160')
    for i in range(5):
        Sx.mem(f'buffer_load_dwordx2 {vr(B2+2*i,2)}, v20, s[80:83], s45 offen offset:{32*i}', 'b2', 0.3)
    t('s_lshl_b32 s46, s22, 8'); t(f's_add_u32 s46, s46, {FLAG_OFF}')
    t('s_lshl_b32 s59, s26, 6'); t('s_add_u32 s59, s59, s46')
    t('s_lshr_b32 s47, s23, 1'); t('s_lshl_b32 s47, s47, 6'); t('s_add_u32 s46, s46, s47')
    t('s_and_b32 s47, s23, 1'); t('s_lshl_b32 s47, s47, 2'); t('s_add_u32 s46, s46, s47')
    t('v_mov_b32 v9, 0')
    t('v_mov_b32 v28, 1')
    t('s_mul_i32 s47, s23, 5')
    for i in range(5):
        t(f's_add_u32 s48, s47, {i}')
        t('s_lshr_b32 s49, s48, 2'); t('s_lshl_b32 s49, s49, 13'); t('s_add_u32 s49, s49, s27')
        t('s_and_b32 s50, s48, 1'); t('s_lshl_b32 s50, s50, 3'); t('s_add_u32 s49, s49, s50')
        t('s_and_b32 s50, s48, 2'); t('s_lshl_b32 s50, s50, 5')
        t('v_xor_b32 v29, s50, v7'); t('v_add_u32 v29, s49, v29')
        Sx.ds(f'ds_read_b64 {vr(B2+10+2*i,2)}, v29', 'hres')
    for u in range(4):
        t(f'v_add_u32 v{10+u}, {u}, v1'); t(f'v_and_b32 v{10+u}, 3, v{10+u}')
        t(f'v_mul_u32_u24 v{14+u}, 15360, v{10+u}')
        t(f'v_lshl_add_u32 v{10+u}, v{10+u}, 10, v5')
        t(f'v_add_u32 v{14+u}, v{14+u}, v5'); t(f'v_add_u32 v{14+u}, {RED_OFF}, v{14+u}')
    t('s_mul_i32 s48, s26, 12'); t('s_add_u32 s48, s48, s41'); t('s_lshl_b32 s48, s48, 12'); t(f's_add_u32 s48, s48, {R_OFF}')
    stamp(a, 2, stamps, 1)
    if strict:
        Sx.hold += 1; Sx.vwait(Sx.tags[-1]); Sx.hold -= 1
        assert not Sx.vm.q
        if strict == 1: Sx.hold -= 1
    else: Sx.vwait('rst')
    stamp(a, 3, stamps, 1)
    a('s_barrier')
    Sx.hold += 1
    t('s_cmp_lg_u32 s26, 0')
    t(f's_cbranch_scc1 {name}_nosig')
    t('s_mov_b64 exec, 1')
    t('buffer_store_dword v28, v9, s[12:15], s46 offen sc1')
    t('s_mov_b64 exec, -1')
    a.label(f'{name}_nosig')
    Sx.hold -= 1
    Sx.gate('signalled')
    stamp(a, 4, stamps); stamp(a, 4, stamps, 1)
    if verbose: print('signalled', Sx.clock)
    Sx.lwait('hres'); Sx.vwait('b2')
    for q in range(10):
        t(f'v_lshlrev_b32 v{ACC+2*q}, 16, v{B2+q}'); t(f'v_and_b32 v{ACC+2*q+1}, 0xffff0000, v{B2+q}')
        t(f'v_lshlrev_b32 v132, 16, v{B2+10+q}'); t(f'v_and_b32 v133, 0xffff0000, v{B2+10+q}')
        t(f'v_pk_add_f32 {vr(ACC+2*q,2)}, {vr(ACC+2*q,2)}, v[132:133]')
    t('s_lshl_b32 s49, s26, 12')
    t('v_mul_u32_u24 v18, 176, v3'); t('v_add_u32 v18, v18, v20'); t('v_add_u32 v18, s49, v18')
    t('s_lshl_b32 s50, s26, 9'); t('s_add_u32 s50, s50, s24'); t('s_mul_i32 s50, s50, 1280'); t('s_add_u32 s50, s50, s45')
    for q in range(3):
        t(f'v_add_u32 v30, {64*q}, v2')
        t('v_mul_u32_u24 v31, 205, v30'); t('v_lshrrev_b32 v31, 11, v31')
        t('v_mul_u32_u24 v19, 10, v31'); t('v_sub_u32 v30, v30, v19'); t('v_lshlrev_b32 v30, 4, v30')
        t(f'v_mul_u32_u24 v{24+q}, 176, v31'); t(f'v_add_u32 v{24+q}, v{24+q}, v30'); t(f'v_add_u32 v{24+q}, s49, v{24+q}')
        t(f'v_mul_u32_u24 v{27+q}, 0xa000, v31'); t(f'v_add_u32 v{27+q}, v{27+q}, v30')
    t('v_cmp_gt_u32 vcc, 32, v2'); t('v_mov_b32 v30, 0x7ff00000'); t('v_cndmask_b32 v29, v30, v29, vcc')
    Sx.need('poll', 1)
    Sx.flush()
    assert not Sx.Q
    stamp(a, 5, stamps, 1)
    Sx.vwait('poll')
    a('s_mov_b32 s44, 0')
    a.label(f'{name}_chk')
    a(f'v_and_b32 v{POLL}, v{POLL}, v{POLL+1}')
    a(f'v_readfirstlane_b32 s47, v{POLL}')
    a('s_cmp_eq_u32 s47, 1')
    a(f's_cbranch_scc1 {name}_go')
    a('s_add_u32 s44, s44, 1')
    a('s_cmp_gt_u32 s44, 0x100000')
    a(f's_cbranch_scc1 {name}_go')
    a(f'buffer_load_dwordx2 {vr(POLL,2)}, v9, s[12:15], s59 offen sc1')
    a('s_waitcnt vmcnt(0)')
    a(f's_branch {name}_chk')
    a.label(f'{name}_go')
    stamp(a, 5, stamps); stamp(a, 6, stamps, 1)
    if verbose: print('go', Sx.clock)
    RF = 136; NRF = 30
    if R3: Sx.R = R3
    if D3: Sx.DEPTH = D3
    uorder = [1, 2, 3, 0]
    for li in range(48):
        u = uorder[li // 12]; ks = li % 12
        L = [f'buffer_load_dwordx4 {vr(RF+(li%NRF)*4,4)}, v{10+u}, s[12:15], s48 offen sc1']
        L.append('s_add_u32 s48, s48, 4096' if ks < 11 else f's_sub_u32 s48, s48, {11*4096}')
        Sx.q(L, ('r', li), gate=None if li < NRF else ('rc', li - NRF))
    for _ in range(4): Sx.pop()
    Sx.vwait('w2')
    side = []
    for li in range(48):
        u = uorder[li // 12]; ks = li % 12
        Sx.vwait(('r', li), 1)
        for i in range(5):
            d = vr(acc(u,i), 4)
            cc = '0' if (ks == 0 and u != 0) else d
            t(f'v_mfma_f32_16x16x32_bf16 {d}, {ar(W2A(ks*5+i),4)}, {vr(RF+(li%NRF)*4,4)}, {cc}')
            for _ in range(2):
                if side:
                    x = side.pop(0)
                    if x.startswith('ds_'): Sx.ds(x, 'red'); break
                    t(x)
        Sx.gate(('rc', li))
        if ks == 1 and li >= 12:
            up = uorder[li // 12 - 1]
            for i in range(5): side.append(f'ds_write_b128 v{14+up}, {vr(acc(up,i),4)} offset:{((up-1)*5+i)*1024}')
        if li == 36 + 4:
            assert not side
            Sx.lwait_all(0)
            a('s_barrier')
            for s_ in range(3):
                for i in range(5): side.append(f'ds_read_b128 {vr(acc(1+s_,i),4)}, v14 offset:{(s_*5+i)*1024}')
        if li == 36 + 8:
            assert not side
            Sx.lwait_all(0)
            for q in range(20): side.append(f'v_add_f32 v{acc(1,0)+q}, v{acc(1,0)+q}, v{acc(2,0)+q}')
            for q in range(10): side.append(f'v_add_f32 v{acc(1,0)+q}, v{acc(1,0)+q}, v{acc(3,0)+q}')
    assert not side
    for q in range(10, 20): t(f'v_add_f32 v{acc(1,0)+q}, v{acc(1,0)+q}, v{acc(3,0)+q}')
    stamp(a, 6, stamps)
    if verbose: print('ffn2 done', Sx.clock)
    for i in range(5):
        for h in range(2):
            t(f'v_pk_add_f32 {vr(acc(0,i)+2*h,2)}, {vr(acc(0,i)+2*h,2)}, {vr(acc(1,i)+2*h,2)}')
        for h in range(2):
            t(f'v_cvt_pk_bf16_f32 v{B2+2*i+h}, v{acc(0,i)+2*h}, v{acc(0,i)+2*h+1}')
        t(f'ds_write_b64 v18, {vr(B2+2*i,2)} offset:{32*i}')
    for q in range(3): t(f'ds_read_b128 {vr(RF+4*q,4)}, v{24+q}')
    for q in range(3):
        a(f's_waitcnt lgkmcnt({2-q})')
        a(f'buffer_store_dwordx4 {vr(RF+4*q,4)}, v{27+q}, s[84:87], s50 offen {oflag}')
    if stamps:
        write_stamps(a, 8, 1, 26)
    a.label(f'{name}_end')
    a('s_endpgm')
    return dict(vgpr=512, sgpr=96, accum=256, lds=LDS_CD, threads=256)
```

```python
import sys, importlib, build2, kA2
import diag as dg
from common import *
def mk(fn, mod, ij, **kw):
    m = importlib.import_module(mod)
    m.write_stamps = dg.ws_diag
    build2.gen_kCD = lambda a, name, stamps, **k2: m.gen_kCD(a, name, stamps=True, **k2)
    dg.DIAG[0] = ij
    build2.build(fn, akw=dict(stflag='sc1'), ckw=kw)
if __name__ == '__main__':
    mk('e0.s', 'kCD4', (0,7), DEPTH=8)
    mk('e1.s', 'kCD4', (0,7), DEPTH=8, pfw=1)
    mk('e2.s', 'kCD4', (0,7), DEPTH=8, pfw=3)
    mk('e3.s', 'kCD4', (0,7), DEPTH=8, pfw=1, pfpos=12)
    mk('e4.s', 'kCD4', (0,7), DEPTH=8, mapping='A')
    build2.gen_kA = lambda a, name, stamps, **kw: kA2.gen_kA(a, name, stamps=False)
    mk('e5.s', 'kCD4', (0,7), DEPTH=8)
```

```python
from common import *
from sched import Sched

ST_OFF = 81920
RED_OFF = ST_OFF + 4096
LDS_CD = RED_OFF + 61440

def gen_kCD(a, name, mapping='B', stamps=False, R=80, LAT=600, DEPTH=9, oflag='', pollpos=50, pause=0, verbose=False, R2=None, R3=None, D3=None, s2mode=0, strict=0, smode=0, pretouch=0, pfw=0, pfpos=0, compact=1):
    def stamp(a_, idx, on, mode=0):
        if on and mode == smode: a_(f's_memrealtime s[{60+2*idx}:{61+2*idx}]')

    a.raw(f'.globl {name}\n.p2align 8\n.type {name},@function\n{name}:')
    a.reset_hist()
    a('s_cmp_ge_u32 s2, 256')
    a(f's_cbranch_scc1 {name}_end')
    stamp(a, 0, stamps)
    a('s_load_dwordx2 s[8:9], s[0:1], 0')
    a('s_load_dwordx2 s[12:13], s[0:1], 96')
    a('s_load_dwordx2 s[16:17], s[0:1], 56')
    a('s_load_dwordx4 s[4:7], s[0:1], 72')
    a('v_lshrrev_b32 v1, 6, v0')
    a('v_and_b32 v2, 63, v0')
    a('v_readfirstlane_b32 s26, v1')
    emit_map(a, mapping, 22, 23)
    emit_rho_t1(a, 22, 24, 25)
    a('v_lshrrev_b32 v6, 3, v2')
    a('v_xor_b32 v7, v6, v2')
    a('v_and_b32 v7, 7, v7')
    a('v_mul_u32_u24 v6, 0xa000, v6')
    a('v_lshl_add_u32 v6, v7, 4, v6')
    a('s_lshl_b32 s32, s26, 9'); a('s_add_u32 s32, s32, s24'); a('s_mul_i32 s32, s32, 1280')
    a(f's_add_u32 s33, s32, {256*1280}')
    a('s_lshl_b32 s27, s26, 11')
    a('s_sub_u32 s25, 32, s24'); a('s_and_b32 s25, s25, 31')
    a('s_mul_i32 s34, s26, 2560')
    a(f's_add_u32 s35, s34, {U_OFF - 16}')
    a(f's_sub_u32 s34, {U_OFF + (639-15)*16}, s34')
    a('s_cmp_lt_u32 s26, 2')
    a('s_cselect_b64 vcc, -1, 0')
    a('s_cselect_b32 s28, 1, -1')
    a('s_cselect_b32 s30, s24, s25')
    a('s_cselect_b32 s38, 0, 0x80000000')
    a('s_cselect_b32 s39, 0, 1')
    a('s_cselect_b32 s35, s35, s34')
    a('s_lshl_b32 s28, s28, 8')
    a(f's_or_b32 s38, s38, {fbits(1/2048)}')
    a('s_cmp_eq_u32 s24, 0'); a('s_cselect_b32 s39, 0, s39')
    a(f's_mul_i32 s31, s30, {U_T1}'); a('s_add_u32 s31, s31, s35')
    a('s_lshl_b32 s36, s23, 2'); a('s_add_u32 s36, s36, s26')
    a(f's_mul_i32 s37, s36, {60*1024}'); a(f's_add_u32 s58, s37, {W2P_OFF}'); a(f's_add_u32 s37, s37, {W1P_OFF}'); a('s_add_u32 s29, s37, 40960')
    a('s_waitcnt lgkmcnt(0)')
    srd(a, 8, 8, 9, S*D*2)
    Sx = Sched(a, R=R, LAT=LAT, DEPTH=DEPTH)
    t = Sx
    for ap in range(10):
        for o in range(2):
            Sx.q([f's_add_u32 m0, s27, {ap*8192 + o*1024 - 128*ap}', f'buffer_load_dwordx4 v6, s[8:11], s{32+o} offen offset:{128*ap} lds'], 'x')
    def UA(tl, ks2): return (tl*2+ks2)*4
    for tl in range(10):
        for ks2 in range(2):
            vo = (12 if tl == 0 else 10) + ks2
            L = [f'buffer_load_dwordx4 {ar(UA(tl,ks2),4)}, v{vo}, s[12:15], s31 offen']
            if ks2 == 1 and tl < 9: L.append('s_add_u32 s31, s31, s28')
            Sx.q(L, ('u', tl//2), gate='addr')
    def WA(fr): return 80 + fr*4 if fr < 44 else (fr-44)*4
    for fr in range(60):
        ks_, i_ = divmod(fr, 3)
        if i_ < 2:
            m = 2*ks_ + i_
            L = [f'buffer_load_dwordx4 {ar(WA(fr),4)}, v5, s[12:15], s37 offen offset:{1024*(m%4)}']
            if m % 4 == 3: L.append('s_add_u32 s37, s37, 4096')
        else:
            L = [f'buffer_load_dwordx4 {ar(WA(fr),4)}, v5, s[12:15], s29 offen offset:{1024*(ks_%4)}']
            if ks_ % 4 == 3: L.append('s_add_u32 s29, s29, 4096')
        Sx.q(L, ('w', fr//3), gate='s2done' if fr >= 44 else None)
    if pfw:
        pf = []
        if pfw & 1: pf.append((['buffer_load_dword v9, v31, s[12:15], s88 offen'], 'pf', 'pfa', 4.0))
        if pfw & 2: pf.append((['buffer_load_dword v9, v31, s[12:15], s89 offen'], 'pf', 'pfa', 4.0))
        Sx.Q[40+pfpos:40+pfpos] = pf
    for _ in range(4): Sx.pop()
    for l in (f's_mov_b32 s14, {ws_size(stamps)}', 's_mov_b32 s15, 0x20000', f's_mov_b32 s18, {F*2}', 's_mov_b32 s19, 0x20000',
              's_mov_b32 s80, s4', 's_mov_b32 s81, s5', f's_mov_b32 s82, {D*2}', 's_mov_b32 s83, 0x20000',
              's_mov_b32 s84, s6', 's_mov_b32 s85, s7', f's_mov_b32 s86, {S*D*2}', 's_mov_b32 s87, 0x20000'): t(l)
    t('v_and_b32 v3, 15, v2')
    t('v_lshrrev_b32 v4, 4, v2')
    t('v_lshlrev_b32 v5, 4, v2')
    t('v_sub_u32 v11, 15, v3')
    t('v_cndmask_b32 v10, v11, v3, vcc')
    t('v_mul_u32_u24 v11, 5120, v4')
    t('v_lshl_add_u32 v10, v10, 4, v11')
    t('v_add_u32 v11, 0x5000, v10')
    t('v_and_b32 v12, 0xcf, v0')
    t('v_cmp_eq_u32 vcc, 0, v12')
    t('v_mov_b32 v14, 0x7ff00000')
    t('v_cndmask_b32 v12, v10, v14, vcc')
    t('v_cndmask_b32 v13, v11, v14, vcc')
    Sx.gate('addr')
    t('v_xor_b32 v7, v4, v3'); t('v_and_b32 v7, 7, v7'); t('v_lshlrev_b32 v7, 4, v7'); t('v_lshl_add_u32 v7, v3, 7, v7')
    t('v_xor_b32 v8, 64, v7')
    t('v_add_u32 v24, 0xa000, v7'); t('v_add_u32 v25, 0xa000, v8')
    t('s_mul_i32 s40, s26, 5'); t('s_lshr_b32 s41, s40, 1'); t('s_lshl_b32 s41, s41, 13')
    t('s_and_b32 s42, s26, 1'); t('s_lshl_b32 s43, s42, 6'); t('s_lshl_b32 s42, s42, 13'); t('s_add_u32 s42, s42, s41')
    t('v_xor_b32 v26, s43, v7'); t('v_add_u32 v26, s41, v26')
    t('v_xor_b32 v27, s43, v8'); t('v_add_u32 v27, s42, v27')
    def own(kk, tt): return (26 + (kk & 1), (kk//2)*8192 + tt*2048)
    t('v_and_b32 v28, 1, v3'); t('v_lshlrev_b32 v28, 4, v28'); t('v_mov_b32 v29, 0x3f80'); t('v_lshlrev_b32 v28, v28, v29')
    t('v_lshrrev_b32 v29, 1, v3')
    t('v_lshlrev_b32 v30, 2, v4'); t('v_sub_u32 v29, v29, v30')
    for q in range(4):
        t(f'v_cmp_eq_u32 vcc, {q}, v29'); t(f'v_cmp_eq_u32 s[44:45], {q-8}, v29')
        t(f'v_cndmask_b32 v{16+q}, 0, v28, vcc'); t(f'v_cndmask_b32 v{20+q}, 0, v28, s[44:45]')
    M = 32; T = 64
    t('v_lshlrev_b32 v14, 5, v3'); t('v_add_u32 v14, s24, v14')
    t('v_lshlrev_b32 v15, 1, v4'); t('v_cvt_f32_u32 v15, v15')
    t('v_xor_b32 v28, s39, v3'); t('v_lshlrev_b32 v28, 31, v28'); t('v_or_b32 v28, 0x38003800, v28')
    t('v_cmp_eq_u32 vcc, 0, v4')
    for tt in range(4):
        t(f'v_add_u32 v29, {512*tt}, v14')
        t('v_cvt_f32_u32 v29, v29')
        t('v_mul_f32 v29, s38, v29')
        t(f'v_mul_f32 v{T}, v29, v15')
        t(f'v_sub_f32 v30, 0, v{T}')
        for ks2 in range(2):
            for j in range(4):
                if ks2 == 0 and j == 0: continue
                c = [8*ks2, 32-8*ks2, 8*ks2+1, 31-8*ks2][j]
                t(f'v_fmamk_f32 v{T+ks2*4+j}, v29, {fbits(float(c))}, v{T if j%2==0 else 30}')
        t(f'v_mul_f32 v31, {fbits(16.0)}, v29')
        t(f'v_cndmask_b32 v{T+1}, v{T+1}, v31, vcc')
        for j in range(8): t(f'v_sin_f32 v{T+8+j}, v{T+j}')
        for j in range(8): t(f'v_cos_f32 v{T+j}, v{T+j}')
        for j in range(8): t(f'v_cvt_pk_f16_f32 v{M+tt*8+j}, v{T+j}, v{T+8+j}')
        t(f'v_cndmask_b32 v{M+tt*8}, v{M+tt*8}, v28, vcc')
    if pfw:
        for l in ['s_and_b32 s88, s22, 7', 's_lshl_b32 s88, s88, 2', 's_add_u32 s88, s88, s26', 's_mul_i32 s88, s88, 7680', f's_mul_i32 s89, s23, {240*1024}',
                  's_add_u32 s88, s88, s89', f's_add_u32 s89, s88, {W1P_OFF}', f's_add_u32 s88, s88, {W2P_OFF}', 'v_min_u32 v31, 59, v2', 'v_lshlrev_b32 v31, 7, v31']: t(l)
        Sx.gate('pfa')
    if verbose: print('Mgen done', Sx.clock)
    Sx.vwait('x', 20)
    a('s_barrier')
    stamp(a, 1, stamps)
    if verbose: print('x barrier', Sx.clock)
    Y = 64; XF = 224
    def YG(kk, tt): return Y + (kk*4+tt)*8
    def xread(kk):
        for tt in range(4):
            va, off = own(kk, tt)
            Sx.ds(f'ds_read_b128 {vr(XF+(kk&1)*16+tt*4,4)}, v{va} offset:{off}', ('xr', kk))
    def xadd(kk, pend=None):
        if kk + 1 < 5: xread(kk+1)
        Sx.lwait(('xr', kk), 100 if kk == 0 else 0)
        c = 0
        for tt in range(4):
            for i in range(2):
                t(f'v_mfma_f32_16x16x32_bf16 {vr(YG(kk,tt)+4*i,4)}, {vr(16+4*i,4)}, {vr(XF+(kk&1)*16+tt*4,4)}, 0')
                c += 1
                if pend and c >= 3:
                    x = pend.pop(0)
                    (Sx.ds(x, 'hw') if x.startswith('ds_') else t(x))
    xread(0)
    nx = {0: 5, 1: 1, 2: 2}[s2mode]
    for kk in range(nx): xadd(kk)
    def packlist(kk):
        L = []
        for tt in range(4):
            b = YG(kk, tt)
            for j in range(4): L.append(f'v_cvt_pk_bf16_f32 v{b+j}, v{b+2*j}, v{b+2*j+1}')
            va, off = own(kk, tt)
            L.append(f'ds_write_b128 v{va}, {vr(b,4)} offset:{off}')
        return L
    pend = []
    def emitp(x): (Sx.ds(x, 'hw') if x.startswith('ds_') else t(x))
    for kk in range(5):
        Sx.vwait(('u', kk), 4)
        c = 0
        order = [(ks2, tt, i) for ks2 in range(2) for tt in range(4) for i in range(2)]
        if kk == 4: order = [(ks2, tt, i) for tt in range(4) for ks2 in range(2) for i in range(2)]
        for ks2, tt, i in order:
            d = vr(YG(kk,tt)+4*i, 4)
            t(f'v_mfma_f32_16x16x32_f16 {d}, {ar(UA(2*kk+i,ks2),4)}, {vr(M+tt*8+ks2*4,4)}, {d}')
            c += 1
            if c >= 3 or s2mode:
                for _ in range(2 if not s2mode else 1):
                    if pend: emitp(pend.pop(0))
        while pend: emitp(pend.pop(0))
        pend = packlist(kk)
        if nx < 5: xadd(nx, pend); nx += 1
    Sx.gate('s2done')
    while pend: emitp(pend.pop(0))
    Sx.lwait_all()
    a('s_barrier')
    stamp(a, 2, stamps)
    if verbose: print('h barrier', Sx.clock)
    if R2: Sx.R = R2
    BF = 32
    def bread(ks, tts=range(4)):
        for tt in tts:
            off = (ks//2)*8192 + tt*2048
            va = 7 + (ks & 1)
            if off >= 40960: va = 24 + (ks & 1); off -= 40960
            Sx.ds(f'ds_read_b128 {vr(BF+(ks&1)*16+tt*4,4)}, v{va} offset:{off}', ('b', ks))
    def UP(gi): return YG(gi//4, gi%4) + 4
    def AC(i, tt): return UP(i*4+tt)
    bread(0)
    for j in range(4): t(f'v_mov_b32 v{16+j}, 0x3f803f80')
    SS = 224; SG = 240
    stat = []
    for kk in range(5):
        for tt in range(4):
            h = vr(YG(kk,tt), 4)
            stat.append(f'v_mfma_f32_16x16x32_bf16 {vr(SS+4*tt,4)}, v[16:19], {h}, {"0" if kk == 0 else vr(SS+4*tt,4)}')
            stat.append(f'v_mfma_f32_16x16x32_bf16 {vr(SG+4*tt,4)}, {h}, {h}, {"0" if kk == 0 else vr(SG+4*tt,4)}')
    def CSR(p, i): return UP(12 + p*3 + i)
    def B1R(i): return UP(18) + 2*i if i < 2 else UP(19)
    t('s_mul_i32 s42, s23, 12'); t('s_lshl_b32 s43, s26, 1'); t('s_add_u32 s43, s43, s42')
    t('s_add_u32 s44, s42, 8'); t('s_add_u32 s44, s44, s26')
    t('v_lshlrev_b32 v20, 3, v4')
    t('v_lshlrev_b32 v21, 4, v4')
    if compact:
        t('s_lshl_b32 s45, s43, 4'); t('s_lshl_b32 s46, s44, 4'); t('s_sub_u32 s46, s46, 32')
        t('v_mov_b32 v12, s46'); t('v_mov_b32 v13, s45'); t('v_cmp_gt_u32 vcc, 32, v2')
        t(f's_mov_b32 s47, {CS_OFF}'); t(f's_mov_b32 s48, {CS_OFF+6144}'); t('s_mul_i32 s45, s23, 160')
        t('v_cndmask_b32 v12, v12, v13, vcc'); t('v_add_u32 v12, v12, v2')
        t('v_lshlrev_b32 v13, 1, v12'); t('v_lshlrev_b32 v12, 2, v12')
        t('v_lshlrev_b32 v14, 2, v2')
        t('s_mul_i32 s49, s26, 768'); t(f's_add_u32 s49, s49, {RED_OFF+8192}')
        t('v_add_u32 v15, s49, v14'); t('v_add_u32 v21, s49, v21'); t('v_add_u32 v6, s49, v20')
    else:
        t('s_lshl_b32 s45, s43, 5'); t('s_lshl_b32 s46, s44, 5')
        t('s_lshl_b32 s47, s43, 6'); t(f's_add_u32 s47, s47, {CS_OFF}')
        t('s_lshl_b32 s48, s44, 6'); t(f's_add_u32 s48, s48, {CS_OFF}')
        t('s_add_u32 s49, s47, 6144'); t('s_add_u32 s50, s48, 6144')
    for _ in range(6): t(stat.pop(0))
    if pretouch:
        for l in ['s_mul_i32 s88, s22, 48', 's_mul_i32 s89, s23, 6', 's_add_u32 s88, s88, s89', 's_add_u32 s89, s88, s26', 's_lshl_b32 s89, s89, 12', f's_add_u32 s89, s89, {R_OFF}',
                  's_lshr_b32 s90, s26, 1', 's_add_u32 s90, s90, s88', 's_add_u32 s90, s90, 4', 's_lshl_b32 s90, s90, 12', 's_and_b32 s91, s26, 1', 's_lshl_b32 s91, s91, 11', 's_add_u32 s90, s90, s91', f's_add_u32 s90, s90, {R_OFF}',
                  'v_lshlrev_b32 v10, 6, v2']: t(l)
        pt = [([f'buffer_load_dword v11, v10, s[12:15], s89 offen sc1'], 'pt', None, 2.0 if pretouch == 2 else 0.3)]
        if pretouch == 1: t('v_mov_b32 v10, 0')
        if pretouch == 2:
            t('v_lshlrev_b32 v12, 5, v2')
            pt.append(([f'buffer_load_dword v13, v12, s[12:15], s90 offen sc1'], 'pt', None, 1.0))
        Sx.Q[0:0] = pt
    extra = []
    CB = UP(18)
    if compact:
        extra.append(([f'buffer_load_dword v{CB}, v12, s[12:15], s47 offen'], 'bc', None, 0.3))
        extra.append(([f'buffer_load_dword v{CB+1}, v12, s[12:15], s48 offen'], 'bc', None, 0.3))
        extra.append(([f'buffer_load_ushort v{CB+2}, v13, s[16:19], 0 offen'], 'bc', None, 0.3))
        extra.append(([f'buffer_load_dword v{CB+3}, v14, s[80:83], s45 offen'], 'bc', None, 0.3))
    else:
        for i in range(3):
            so, off = (45, 32*i) if i < 2 else (46, 0)
            extra.append(([f'buffer_load_dwordx2 {vr(B1R(i),2)}, v20, s[16:19], s{so} offen offset:{off}'], 'bc', None, 0.3))
        for p in range(2):
            for i in range(3):
                so, off = (47+2*p, 64*i) if i < 2 else (48+2*p, 0)
                extra.append(([f'buffer_load_dwordx4 {vr(CSR(p,i),4)}, v21, s[12:15], s{so} offen offset:{off}'], 'bc', None, 0.3))
    pos = max(0, len(Sx.Q) - 15)
    Sx.Q[pos:pos] = extra
    def W2A(q): return 64 + 4*q if q < 4 else WA(q-4)
    POLL = 22
    for q in range(60):
        if q == pollpos:
            Sx.q([f'buffer_load_dwordx2 {vr(POLL,2)}, v9, s[12:15], s59 offen sc1'], 'poll', gate='signalled', cost=0.3)
        L = [f'buffer_load_dwordx4 {ar(W2A(q),4)}, v5, s[12:15], s58 offen offset:{1024*(q%4)}']
        if q % 4 == 3: L.append('s_add_u32 s58, s58, 4096')
        Sx.q(L, 'w2', gate=None if q < 4 else ('ks', (q-4)//3))
    SA = 224
    side = []
    for ks in range(20):
        Sx.vwait(('w', ks), 3)
        Sx.lwait(('b', ks))
        c = 0
        for i in range(3):
            for tt in range(4):
                d = vr(AC(i,tt), 4)
                t(f'v_mfma_f32_16x16x32_bf16 {d}, {ar(WA(ks*3+i),4)}, {vr(BF+(ks&1)*16+tt*4,4)}, {"0" if ks == 0 else d}')
                c += 1
                if c in (1, 2, 3, 4) and ks + 1 < 20: bread(ks + 1, [c-1])
                if c in (6, 9, 12) and stat: t(stat.pop(0))
                for _ in range(2):
                    if side: t(side.pop(0))
        Sx.gate(('ks', ks))
        if pause and ks == 19 - pause: Sx.hold += 1
        if ks == 12:
            assert not stat
            side += ['v_and_b32 v22, 3, v3', 'v_cmp_eq_u32 s[52:53], 1, v22', 'v_cmp_eq_u32 s[54:55], 2, v22', 'v_cmp_eq_u32 s[56:57], 3, v22',
                     'v_lshlrev_b32 v30, 3, v3', 's_lshl_b32 s40, s26, 9', f's_add_u32 s40, s40, {ST_OFF}', 'v_add_u32 v30, s40, v30']
            for tt in range(4):
                g = SG + 4*tt
                side += [f'v_cndmask_b32 v{SS+4*tt+1}, v{g}, v{g+1}, s[52:53]',
                         f'v_cndmask_b32 v{SS+4*tt+1}, v{SS+4*tt+1}, v{g+2}, s[54:55]',
                         f'v_cndmask_b32 v{SS+4*tt+1}, v{SS+4*tt+1}, v{g+3}, s[56:57]']
            side += ['v_lshlrev_b32 v29, 3, v2', f'v_add_u32 v29, {ST_OFF}, v29']
        if ks == 13:
            assert not side
            Sx.hold += 1
            t('s_mov_b32 exec_lo, 0x00f0000f'); t('s_mov_b32 exec_hi, 0xf0000f00')
            for tt in range(4): Sx.ds(f'ds_write_b64 v30, {vr(SS+4*tt,2)} offset:{128*tt}', 'stw')
            t('s_mov_b64 exec, -1')
            Sx.hold -= 1
        if ks == 14:
            Sx.lwait('stw')
            a('s_barrier')
            for w in range(4): Sx.ds(f'ds_read_b64 {vr(SA+2*w,2)}, v29 offset:{512*w}', 'str')
        if ks == 15:
            Sx.lwait('str')
            side += [f'v_add_f32 v{SA}, v{SA}, v{SA+2}', f'v_add_f32 v{SA+1}, v{SA+1}, v{SA+3}',
                     f'v_add_f32 v{SA+4}, v{SA+4}, v{SA+6}', f'v_add_f32 v{SA+5}, v{SA+5}, v{SA+7}',
                     f'v_add_f32 v{SA}, v{SA}, v{SA+4}', f'v_add_f32 v{SA+1}, v{SA+1}, v{SA+5}',
                     f'v_mul_f32 v{SA}, {fbits(1/640)}, v{SA}', f'v_mul_f32 v{SA+1}, {fbits(1/640)}, v{SA+1}',
                     f'v_fma_f32 v{SA+1}, -v{SA}, v{SA}, v{SA+1}', f'v_max_f32 v{SA+1}, 0, v{SA+1}',
                     f'v_add_f32 v{SA+1}, {fbits(1e-5)}, v{SA+1}', f'v_rsq_f32 v{SA+1}, v{SA+1}',
                     'v_lshlrev_b32 v31, 3, v2', 'v_add_u32 v31, s40, v31',
                     f'v_mul_f32 v{SA}, v{SA}, v{SA+1}']
        if ks == 16:
            assert not side
            Sx.ds(f'ds_write_b64 v31, {vr(SA,2)} offset:2048', 'stw2')
            for tt in range(4): Sx.ds(f'ds_read_b64 {vr(SA+8+2*tt,2)}, v30 offset:{2048+tt*128}', 'str2')
            if compact:
                Sx.vwait('bc', 4)
                t(f'v_add_f32 v{CB}, v{CB}, v{CB+1}'); t(f'v_lshlrev_b32 v{CB+2}, 16, v{CB+2}')
                Sx.ds(f'ds_write_b32 v15, v{CB}', 'cbw'); Sx.ds(f'ds_write_b32 v15, v{CB+2} offset:256', 'cbw'); Sx.ds(f'ds_write_b32 v15, v{CB+3} offset:512', 'cbw')
                for p in range(2):
                    for i in range(3): Sx.ds(f'ds_read_b128 {vr(CSR(p,i),4)}, v21 offset:{256*p+64*i}', 'str2')
            else:
                Sx.vwait('bc', 9)
                for i in range(3):
                    for r in range(4): side.append(f'v_add_f32 v{CSR(0,i)+r}, v{CSR(0,i)+r}, v{CSR(1,i)+r}')
                for i in range(3):
                    for h in range(2):
                        side.append(f'v_lshlrev_b32 v{CSR(1,i)+2*h}, 16, v{B1R(i)+h}')
                        side.append(f'v_and_b32 v{CSR(1,i)+2*h+1}, 0xffff0000, v{B1R(i)+h}')
        if ks == 17:
            assert not side
            Sx.lwait('str2')
            for tt in range(4):
                for i in range(3):
                    for r in range(4):
                        side.append(f'v_fma_f32 v{AC(i,tt)-4+r}, -v{SA+8+2*tt}, v{CSR(0,i)+r}, v{CSR(1,i)+r}')
    assert not side
    stamp(a, 3, stamps); stamp(a, 0, stamps, 1)
    if verbose: print('ffn1 done', Sx.clock)
    ST = SA + 8
    t('s_mul_i32 s41, s22, 48'); t('s_mul_i32 s42, s23, 6'); t('s_add_u32 s51, s41, s42')
    t('s_add_u32 s42, s51, s26'); t('s_lshl_b32 s42, s42, 12'); t(f's_add_u32 s42, s42, {R_OFF}')
    t('s_lshr_b32 s43, s26, 1'); t('s_lshl_b32 s49, s43, 12'); t(f's_add_u32 s49, s49, {RED_OFF}')
    t('s_add_u32 s43, s43, s51'); t('s_add_u32 s43, s43, 4'); t('s_lshl_b32 s43, s43, 12')
    t('s_and_b32 s44, s26, 1'); t('s_lshl_b32 s50, s44, 3'); t('s_add_u32 s50, s50, s49')
    t('s_lshl_b32 s44, s44, 11'); t('s_add_u32 s43, s43, s44'); t(f's_add_u32 s43, s43, {R_OFF}'); t('s_add_u32 s49, s49, s44')
    t('v_add_u32 v10, s50, v5'); t('v_add_u32 v11, s49, v5')
    def epi(i, tt):
        ac = AC(i, tt); tm = ac - 4
        for h in range(2):
            t(f'v_pk_fma_f32 {vr(ac+2*h,2)}, {vr(ac+2*h,2)}, {vr(ST+2*tt,2)}, {vr(tm+2*h,2)} op_sel:[0,1,0] op_sel_hi:[1,1,1]')
        for r in range(4): t(f'v_max_f32 v{ac+r}, 0, v{ac+r}')
        for h in range(2): t(f'v_pk_mul_f32 {vr(ac+2*h,2)}, {vr(ac+2*h,2)}, {vr(ac+2*h,2)}')
        dst = YG(3, tt) + 2*i if i < 2 else YG(4, tt)
        for h in range(2): t(f'v_cvt_pk_bf16_f32 v{dst+h}, v{ac+2*h}, v{ac+2*h+1}')
    for i in range(2): epi(i, 0)
    Sx.mem(f'buffer_store_dwordx4 {vr(YG(3,0),4)}, v5, s[12:15], s42 offen sc1', 'rst')
    for tt in range(4):
        epi(2, tt)
        Sx.ds(f'ds_write_b64 v10, {vr(YG(4,tt),2)} offset:{1024*tt}', 'xw')
    for tt in range(1, 3):
        for i in range(2): epi(i, tt)
        Sx.mem(f'buffer_store_dwordx4 {vr(YG(3,tt),4)}, v5, s[12:15], s42 offen offset:{1024*tt} sc1', 'rst')
    Sx.lwait('xw')
    a('s_barrier')
    for j in range(2): Sx.ds(f'ds_read_b128 {vr(YG(4,j),4)}, v11 offset:{1024*j}', 'xr2')
    for i in range(2): epi(i, 3)
    Sx.mem(f'buffer_store_dwordx4 {vr(YG(3,3),4)}, v5, s[12:15], s42 offen offset:3072 sc1', 'rst')
    Sx.lwait('xr2')
    for j in range(2): Sx.mem(f'buffer_store_dwordx4 {vr(YG(4,j),4)}, v5, s[12:15], s43 offen offset:{1024*j} sc1', 'rst')
    if pause: Sx.hold -= 1
    if strict == 1: Sx.hold += 1
    stamp(a, 1, stamps, 1)
    if verbose: print('r stored', Sx.clock)
    ACC = 32
    def acc(u, i): return ACC + (u*5+i)*4
    B2 = 112
    t('s_mul_i32 s45, s23, 160')
    for i in range(5):
        if compact: Sx.ds(f'ds_read_b64 {vr(B2+2*i,2)}, v6 offset:{512+32*i}', 'hres')
        else: Sx.mem(f'buffer_load_dwordx2 {vr(B2+2*i,2)}, v20, s[80:83], s45 offen offset:{32*i}', 'b2', 0.3)
    t('s_lshl_b32 s46, s22, 8'); t(f's_add_u32 s46, s46, {FLAG_OFF}')
    t('s_lshl_b32 s59, s26, 6'); t('s_add_u32 s59, s59, s46')
    t('s_lshr_b32 s47, s23, 1'); t('s_lshl_b32 s47, s47, 6'); t('s_add_u32 s46, s46, s47')
    t('s_and_b32 s47, s23, 1'); t('s_lshl_b32 s47, s47, 2'); t('s_add_u32 s46, s46, s47')
    t('v_mov_b32 v9, 0')
    t('v_mov_b32 v28, 1')
    t('s_mul_i32 s47, s23, 5')
    for i in range(5):
        t(f's_add_u32 s48, s47, {i}')
        t('s_lshr_b32 s49, s48, 2'); t('s_lshl_b32 s49, s49, 13'); t('s_add_u32 s49, s49, s27')
        t('s_and_b32 s50, s48, 1'); t('s_lshl_b32 s50, s50, 3'); t('s_add_u32 s49, s49, s50')
        t('s_and_b32 s50, s48, 2'); t('s_lshl_b32 s50, s50, 5')
        t('v_xor_b32 v29, s50, v7'); t('v_add_u32 v29, s49, v29')
        Sx.ds(f'ds_read_b64 {vr(B2+10+2*i,2)}, v29', 'hres')
    for u in range(4):
        t(f'v_add_u32 v{10+u}, {u}, v1'); t(f'v_and_b32 v{10+u}, 3, v{10+u}')
        t(f'v_mul_u32_u24 v{14+u}, 15360, v{10+u}')
        t(f'v_lshl_add_u32 v{10+u}, v{10+u}, 10, v5')
        t(f'v_add_u32 v{14+u}, v{14+u}, v5'); t(f'v_add_u32 v{14+u}, {RED_OFF}, v{14+u}')
    t('s_mul_i32 s48, s26, 12'); t('s_add_u32 s48, s48, s41'); t('s_lshl_b32 s48, s48, 12'); t(f's_add_u32 s48, s48, {R_OFF}')
    stamp(a, 2, stamps, 1)
    if strict:
        Sx.hold += 1; Sx.vwait(Sx.tags[-1]); Sx.hold -= 1
        assert not Sx.vm.q
        if strict == 1: Sx.hold -= 1
    else: Sx.vwait('rst')
    stamp(a, 3, stamps, 1)
    a('s_barrier')
    Sx.hold += 1
    t('s_cmp_lg_u32 s26, 0')
    t(f's_cbranch_scc1 {name}_nosig')
    t('s_mov_b64 exec, 1')
    t('buffer_store_dword v28, v9, s[12:15], s46 offen sc1')
    t('s_mov_b64 exec, -1')
    a.label(f'{name}_nosig')
    Sx.hold -= 1
    Sx.gate('signalled')
    stamp(a, 4, stamps); stamp(a, 4, stamps, 1)
    if verbose: print('signalled', Sx.clock)
    Sx.lwait('hres')
    if not compact: Sx.vwait('b2')
    for q in range(10):
        t(f'v_lshlrev_b32 v{ACC+2*q}, 16, v{B2+q}'); t(f'v_and_b32 v{ACC+2*q+1}, 0xffff0000, v{B2+q}')
        t(f'v_lshlrev_b32 v132, 16, v{B2+10+q}'); t(f'v_and_b32 v133, 0xffff0000, v{B2+10+q}')
        t(f'v_pk_add_f32 {vr(ACC+2*q,2)}, {vr(ACC+2*q,2)}, v[132:133]')
    t('s_lshl_b32 s49, s26, 12')
    t('v_mul_u32_u24 v18, 176, v3'); t('v_add_u32 v18, v18, v20'); t('v_add_u32 v18, s49, v18')
    t('s_lshl_b32 s50, s26, 9'); t('s_add_u32 s50, s50, s24'); t('s_mul_i32 s50, s50, 1280'); t('s_add_u32 s50, s50, s45')
    for q in range(3):
        t(f'v_add_u32 v30, {64*q}, v2')
        t('v_mul_u32_u24 v31, 205, v30'); t('v_lshrrev_b32 v31, 11, v31')
        t('v_mul_u32_u24 v19, 10, v31'); t('v_sub_u32 v30, v30, v19'); t('v_lshlrev_b32 v30, 4, v30')
        t(f'v_mul_u32_u24 v{24+q}, 176, v31'); t(f'v_add_u32 v{24+q}, v{24+q}, v30'); t(f'v_add_u32 v{24+q}, s49, v{24+q}')
        t(f'v_mul_u32_u24 v{27+q}, 0xa000, v31'); t(f'v_add_u32 v{27+q}, v{27+q}, v30')
    t('v_cmp_gt_u32 vcc, 32, v2'); t('v_mov_b32 v30, 0x7ff00000'); t('v_cndmask_b32 v29, v30, v29, vcc')
    Sx.need('poll', 1)
    Sx.flush()
    assert not Sx.Q
    stamp(a, 5, stamps, 1)
    Sx.vwait('poll')
    a('s_mov_b32 s44, 0')
    a.label(f'{name}_chk')
    a(f'v_and_b32 v{POLL}, v{POLL}, v{POLL+1}')
    a(f'v_readfirstlane_b32 s47, v{POLL}')
    a('s_cmp_eq_u32 s47, 1')
    a(f's_cbranch_scc1 {name}_go')
    a('s_add_u32 s44, s44, 1')
    a('s_cmp_gt_u32 s44, 0x100000')
    a(f's_cbranch_scc1 {name}_go')
    a(f'buffer_load_dwordx2 {vr(POLL,2)}, v9, s[12:15], s59 offen sc1')
    a('s_waitcnt vmcnt(0)')
    a(f's_branch {name}_chk')
    a.label(f'{name}_go')
    stamp(a, 5, stamps); stamp(a, 6, stamps, 1)
    if verbose: print('go', Sx.clock)
    RF = 136; NRF = 30
    if R3: Sx.R = R3
    if D3: Sx.DEPTH = D3
    uorder = [1, 2, 3, 0]
    for li in range(48):
        u = uorder[li // 12]; ks = li % 12
        L = [f'buffer_load_dwordx4 {vr(RF+(li%NRF)*4,4)}, v{10+u}, s[12:15], s48 offen sc1']
        L.append('s_add_u32 s48, s48, 4096' if ks < 11 else f's_sub_u32 s48, s48, {11*4096}')
        Sx.q(L, ('r', li), gate=None if li < NRF else ('rc', li - NRF))
    for _ in range(4): Sx.pop()
    Sx.vwait('w2')
    side = []
    for li in range(48):
        u = uorder[li // 12]; ks = li % 12
        Sx.vwait(('r', li), 1)
        for i in range(5):
            d = vr(acc(u,i), 4)
            cc = '0' if (ks == 0 and u != 0) else d
            t(f'v_mfma_f32_16x16x32_bf16 {d}, {ar(W2A(ks*5+i),4)}, {vr(RF+(li%NRF)*4,4)}, {cc}')
            for _ in range(2):
                if side:
                    x = side.pop(0)
                    if x.startswith('ds_'): Sx.ds(x, 'red'); break
                    t(x)
        Sx.gate(('rc', li))
        if ks == 1 and li >= 12:
            up = uorder[li // 12 - 1]
            for i in range(5): side.append(f'ds_write_b128 v{14+up}, {vr(acc(up,i),4)} offset:{((up-1)*5+i)*1024}')
        if li == 36 + 4:
            assert not side
            Sx.lwait_all(0)
            a('s_barrier')
            for s_ in range(3):
                for i in range(5): side.append(f'ds_read_b128 {vr(acc(1+s_,i),4)}, v14 offset:{(s_*5+i)*1024}')
        if li == 36 + 8:
            assert not side
            Sx.lwait_all(0)
            for q in range(20): side.append(f'v_add_f32 v{acc(1,0)+q}, v{acc(1,0)+q}, v{acc(2,0)+q}')
            for q in range(10): side.append(f'v_add_f32 v{acc(1,0)+q}, v{acc(1,0)+q}, v{acc(3,0)+q}')
    assert not side
    for q in range(10, 20): t(f'v_add_f32 v{acc(1,0)+q}, v{acc(1,0)+q}, v{acc(3,0)+q}')
    stamp(a, 6, stamps)
    if verbose: print('ffn2 done', Sx.clock)
    for i in range(5):
        for h in range(2):
            t(f'v_pk_add_f32 {vr(acc(0,i)+2*h,2)}, {vr(acc(0,i)+2*h,2)}, {vr(acc(1,i)+2*h,2)}')
        for h in range(2):
            t(f'v_cvt_pk_bf16_f32 v{B2+2*i+h}, v{acc(0,i)+2*h}, v{acc(0,i)+2*h+1}')
        t(f'ds_write_b64 v18, {vr(B2+2*i,2)} offset:{32*i}')
    for q in range(3): t(f'ds_read_b128 {vr(RF+4*q,4)}, v{24+q}')
    for q in range(3):
        a(f's_waitcnt lgkmcnt({2-q})')
        a(f'buffer_store_dwordx4 {vr(RF+4*q,4)}, v{27+q}, s[84:87], s50 offen {oflag}')
    if stamps:
        write_stamps(a, 8, 1, 26)
    a.label(f'{name}_end')
    a('s_endpgm')
    return dict(vgpr=512, sgpr=96, accum=256, lds=LDS_CD, threads=256)
```

```python
import sys, importlib, build2, kA2
import diag as dg
from common import *
def mk(fn, mod, ij, **kw):
    m = importlib.import_module(mod)
    m.write_stamps = dg.ws_diag
    build2.gen_kCD = lambda a, name, stamps, **k2: m.gen_kCD(a, name, stamps=True, **k2)
    dg.DIAG[0] = ij
    build2.build(fn, akw=dict(stflag='sc1'), ckw=kw)
if __name__ == '__main__':
    mk('e0.s', 'kCD4', (0,7), DEPTH=8, compact=0)
    mk('e1.s', 'kCD4', (0,7), DEPTH=8, compact=1)
    mk('e2.s', 'kCD4', (0,7), DEPTH=8, compact=1, R2=72)
    mk('e3.s', 'kCD4', (0,7), DEPTH=9, compact=1)
    mk('e4.s', 'kCD4', (0,7), DEPTH=7, compact=1)
    mk('e5.s', 'kCD4', (0,7), DEPTH=8, compact=1, R=90)
```

```python
import sys
sys.path.insert(0, 'gen')
from layout import *
src = open(sys.argv[1]).read()
TS = CS_OFF + 0x7000
def patch(mode):
    s = src
    s = s.replace("    s_cbranch_scc1 fnet_a_kernel_end\n", "    s_cbranch_scc1 fnet_a_kernel_end\n    s_memrealtime s[60:61]\n", 1)
    i = s.index("    s_mov_b32 s15, 0x20000\n") + len("    s_mov_b32 s15, 0x20000\n")
    s = s[:i] + f"""    s_cmp_eq_u32 s2, 0
    s_mov_b32 s63, 0x7ff00000
    s_cselect_b32 s62, {TS}, s63
    v_mov_b32 v118, s60
    v_mov_b32 v119, 0
    buffer_store_dword v118, v119, s[12:15], s62 offen
""" + s[i:]
    s = s.replace("    s_cbranch_scc1 fnet_cd_kernel_end\n", "    s_cbranch_scc1 fnet_cd_kernel_end\n    s_memrealtime s[60:61]\n", 1)
    tail = f"""    s_cmp_lg_u32 s2, 0
    s_cbranch_scc1 fnet_cd_kernel_end
    s_waitcnt vmcnt(0)
    s_memrealtime s[62:63]
    v_mov_b32 v1, 0
    s_mov_b32 s66, {TS}
    buffer_load_dword v2, v1, s[12:15], s66 offen
    s_waitcnt vmcnt(0) lgkmcnt(0)
    v_readfirstlane_b32 s64, v2
    s_nop 3
"""
    if mode == 1: tail += "    s_sub_u32 s65, s60, s64\n"
    elif mode == 2: tail += "    s_sub_u32 s65, s62, s60\n"
    else: tail += "    s_mov_b32 s65, 0\n"
    tail += """    s_min_u32 s65, s65, 3000
    s_lshl_b32 s65, s65, 3
diag_spin:
    s_memrealtime s[68:69]
    s_waitcnt lgkmcnt(0)
    s_sub_u32 s67, s68, s62
    s_cmp_lt_u32 s67, s65
    s_cbranch_scc1 diag_spin
fnet_cd_kernel_end:
"""
    s = s.replace("fnet_cd_kernel_end:\n", tail, 1)
    open(sys.argv[1].replace('.s', '_d.s'), 'w').write(s)
patch(1)
```

```python
import sys
sys.path.insert(0, 'gen')
from layout import *
src = open(sys.argv[1]).read()
TS = CS_OFF + 0x7000
def patch(mode):
    s = src
    s = s.replace("    s_cbranch_scc1 fnet_a_kernel_end\n", "    s_cbranch_scc1 fnet_a_kernel_end\n    s_memrealtime s[60:61]\n", 1)
    s = s.replace("    s_memrealtime s[60:61]\n", "    s_memrealtime s[60:61]\n    s_mov_b32 s59, s2\n", 1)
    j = s.index("fnet_cd_kernel:")
    ins = f"""    s_mov_b32 s15, 0x20000
    s_cmp_eq_u32 s59, 255
    s_mov_b32 s63, 0x7ff00000
    s_cselect_b32 s62, {TS}, s63
    v_mov_b32 v118, s60
    v_mov_b32 v119, 0
    buffer_store_dword v118, v119, s[12:15], s62 offen
"""
    s = s[:j].replace("    s_mov_b32 s15, 0x20000\n", ins) + s[j:]
    s = s.replace("    s_cbranch_scc1 fnet_cd_kernel_end\n", "    s_cbranch_scc1 fnet_cd_kernel_end\n    s_memrealtime s[60:61]\n", 1)
    tail = f"""    s_cmp_lg_u32 s2, 0
    s_cbranch_scc1 fnet_cd_kernel_end
    s_waitcnt vmcnt(0)
    s_memrealtime s[62:63]
    v_mov_b32 v1, 0
    s_mov_b32 s66, {TS}
    buffer_load_dword v2, v1, s[12:15], s66 offen
    s_waitcnt vmcnt(0) lgkmcnt(0)
    v_readfirstlane_b32 s64, v2
    s_nop 3
"""
    if mode == 1: tail += "    s_sub_u32 s65, s60, s64\n"
    elif mode == 2: tail += "    s_sub_u32 s65, s62, s60\n"
    else: tail += "    s_mov_b32 s65, 0\n"
    tail += """    s_min_u32 s65, s65, 3000
    s_lshl_b32 s65, s65, 3
diag_spin:
    s_memrealtime s[68:69]
    s_waitcnt lgkmcnt(0)
    s_sub_u32 s67, s68, s62
    s_cmp_lt_u32 s67, s65
    s_cbranch_scc1 diag_spin
fnet_cd_kernel_end:
"""
    s = s.replace("fnet_cd_kernel_end:\n", tail, 1)
    open(sys.argv[1].replace('.s', '_d.s'), 'w').write(s)
patch(1)
```

```python
from common import *

XP = 1280
G_OFF = 64 * XP
G_E1 = 4112
T_OFF = 0
TP = 260
LDS_A = G_OFF + 8 * G_E1
NW_A = 16

def gen_kA(a, name, stamps=False, stflag='', uflag='', roles=7, w2flag=None, w2n=12, qrot=0, pack_w2=True, pf=None):
    a.raw(f'.globl {name}\n.p2align 8\n.type {name},@function\n{name}:')
    a.reset_hist()
    a('s_cmp_ge_u32 s2, 256')
    a(f's_cbranch_scc1 {name}_end')
    stamp(a, 0, stamps)
    a('s_load_dwordx2 s[8:9], s[0:1], 0')
    a('s_load_dwordx2 s[12:13], s[0:1], 96')
    a('s_load_dwordx2 s[16:17], s[0:1], 48')
    a('s_load_dwordx2 s[18:19], s[0:1], 64')
    a('v_lshrrev_b32 v1, 6, v0')
    a('v_and_b32 v2, 63, v0')
    a('v_readfirstlane_b32 s22, v1')
    a('v_and_b32 v7, 15, v2')
    a('v_lshrrev_b32 v8, 4, v2')
    if qrot:
        a(f's_add_u32 s2, s2, {8*qrot}'); a('s_and_b32 s2, s2, 255')
    a('s_and_b32 s24, s2, 7')
    a('s_lshr_b32 s25, s2, 3')
    a('s_cmp_lt_u32 s25, 20')
    a(f's_cbranch_scc1 {name}_fft_norm')
    a('s_cmp_ge_u32 s25, 25')
    a(f's_cbranch_scc1 {name}_pack_hi')
    a('s_cmp_eq_u32 s24, 0')
    a(f's_cbranch_scc0 {name}_pack_lo')
    a('s_mov_b32 s20, 32')
    a('s_sub_u32 s21, s25, 20')
    a('s_mov_b32 s23, 2')
    a(f's_branch {name}_fft')
    a.label(f'{name}_fft_norm')
    a('s_mul_i32 s26, s25, 52')
    a('s_lshr_b32 s26, s26, 8')
    a('s_mul_i32 s27, s26, 5')
    a('s_sub_u32 s21, s25, s27')
    a('s_lshl_b32 s27, s24, 2')
    a('s_add_u32 s27, s27, s26')
    emit_rho_t1(a, 27, 20, 28)
    a('s_lshl_b32 s23, s26, 2')
    a.label(f'{name}_fft')
    a.reset_hist()
    if not roles & 1: a(f's_branch {name}_end')
    vm = Cnt(a, 'vmcnt', 63); lg = Cnt(a, 'lgkmcnt', 15)
    a('v_lshl_add_u32 v3, v1, 2, v8')
    a('v_and_b32 v5, 31, v3')
    a('v_lshlrev_b32 v5, 6, v5')
    a('v_add_u32 v5, s20, v5')
    a('v_sub_u32 v6, 0x800, v5')
    a('v_and_b32 v6, 0x7ff, v6')
    a('v_cmp_gt_u32 vcc, 32, v3')
    a('v_lshlrev_b32 v4, 4, v7')
    a('v_cndmask_b32 v5, v6, v5, vcc')
    a('v_mul_u32_u24 v5, 1280, v5')
    a('v_add_u32 v5, v5, v4')
    a(f'v_mul_u32_u24 v6, {XP}, v3')
    a('v_add_u32 v6, v6, v4')
    a('s_waitcnt lgkmcnt(0)')
    srd(a, 8, 8, 9, S*D*2)
    X = 64
    for jj in range(5):
        a(f'buffer_load_dwordx4 {vr(X+4*jj,4)}, v5, s[8:11], 0 offen offset:{256*jj}')
        vm.issue(('x', jj))
    srd(a, 12, 12, 13, ws_size(stamps))
    a('v_lshlrev_b32 v9, 2, v8')
    a('v_cvt_f32_u32 v9, v9')
    BA = 20; BA2 = 24; CSUM = 26; BB = 28; BM = 32; BCc = 36; BCs = 40; T = 44
    a('s_lshl_b32 s26, s21, 3')
    a('s_add_u32 s26, s26, 1')
    a('v_and_b32 v10, 7, v7')
    a('v_add_u32 v10, s26, v10')
    a('v_cvt_f32_u32 v10, v10')
    a(f'v_mul_f32 v10, {fbits(1/40)}, v10')
    a('v_lshrrev_b32 v11, 3, v7')
    a('v_cvt_f32_u32 v11, v11')
    a(f'v_mul_f32 v11, {fbits(0.25)}, v11')
    a('v_fma_f32 v11, v10, v9, v11')
    cj = [0,1,2,3,16,17,18,19,32,33,34,35]
    for j, c in enumerate(cj):
        a(f'v_fmamk_f32 v{T+j}, v10, {fbits(float(c))}, v11')
    for j in range(12):
        a(f'v_cos_f32 v{T+j}, v{T+j}')
    for j in range(6):
        a(f'v_cvt_pk_bf16_f32 v{BA+j}, v{T+2*j}, v{T+2*j+1}')
    a('v_cmp_gt_u32 vcc, 2, v8')
    ONES = 60
    for j in range(4): a(f'v_mov_b32 v{ONES+j}, 0x3f803f80')
    a(f'v_cndmask_b32 v{BA2}, 0, v{BA2}, vcc')
    a(f'v_cndmask_b32 v{BA2+1}, 0, v{BA2+1}, vcc')
    a(f'v_mfma_f32_16x16x32_bf16 v[84:87], {vr(ONES,4)}, {vr(BA,4)}, 0')
    a(f'v_mfma_f32_16x16x16_bf16 v[88:91], {vr(ONES,2)}, {vr(BA2,2)}, 0')
    a('s_and_b32 s27, s22, 7')
    a('s_add_u32 s28, s27, s26')
    a('v_lshrrev_b32 v10, 1, v7')
    a('v_mul_u32_u24 v10, 40, v10')
    a('v_add_u32 v10, s28, v10')
    a('v_and_b32 v11, 1, v7')
    a('v_cvt_f32_u32 v12, v11')
    a(f'v_mul_f32 v12, {fbits(0.25)}, v12')
    a('v_mov_b32 v13, 0x80008000')
    a('v_mul_lo_u32 v13, v13, v11')
    a('v_cvt_f32_u32 v14, v10')
    a(f'v_mul_f32 v14, {fbits(1/640)}, v14')
    a(f'v_fma_f32 v{T}, v14, v9, v12')
    for r in range(1, 4): a(f'v_fmamk_f32 v{T+r}, v14, {fbits(float(r))}, v{T}')
    a(f'v_add_f32 v{CSUM}, v84, v88')
    for r in range(4): a(f'v_sin_f32 v{T+4+r}, v{T+r}')
    for r in range(4): a(f'v_cos_f32 v{T+r}, v{T+r}')
    for j in range(4): a(f'v_cvt_pk_f16_f32 v{BB+j}, v{T+2*j}, v{T+2*j+1}')
    for j in range(4): a(f'v_xor_b32 v{BM+j}, v13, v{BB+j}')
    a('s_lshr_b32 s29, s22, 3')
    a('s_lshl_b32 s30, s29, 4')
    a('v_add_u32 v15, s30, v7')
    a('v_cvt_f32_u32 v10, v15')
    a(f'v_mul_f32 v10, {fbits(1/32)}, v10')
    a('s_cmp_eq_u32 s20, 32')
    a(f's_cselect_b32 s31, {fbits(0.5)}, 0')
    a('v_add_f32 v11, s31, v9')
    a('v_mul_f32 v11, v10, v11')
    for j, c in enumerate(cj[:8]):
        a(f'v_fmamk_f32 v{T+j}, v10, {fbits(float(c))}, v11')
    for j in range(8): a(f'v_sin_f32 v{T+8+j}, v{T+j}')
    for j in range(8): a(f'v_cos_f32 v{T+j}, v{T+j}')
    for j in range(4):
        a(f'v_cvt_pk_f16_f32 v{BCc+j}, v{T+2*j}, v{T+2*j+1}')
        a(f'v_cvt_pk_f16_f32 v{BCs+j}, v{T+8+2*j}, v{T+8+2*j+1}')
    a(f's_mul_i32 s32, s22, {4*XP}')
    a('v_lshlrev_b32 v10, 3, v2')
    a('v_add_u32 v10, s32, v10')
    a('v_and_b32 v11, 31, v2')
    a('v_lshlrev_b32 v11, 3, v11')
    a('v_add_u32 v11, s32, v11')
    a('v_and_b32 v12, 7, v7')
    a(f'v_mul_u32_u24 v12, {G_E1}, v12')
    a('v_lshl_add_u32 v12, v8, 8, v12')
    a('v_lshrrev_b32 v13, 3, v7')
    a('v_lshl_add_u32 v12, v13, 3, v12')
    a('s_lshr_b32 s33, s22, 2'); a('s_lshl_b32 s33, s33, 10'); a('s_and_b32 s34, s22, 3'); a('s_lshl_b32 s34, s34, 6'); a('s_add_u32 s33, s33, s34'); a(f's_add_u32 s33, s33, {G_OFF}')
    a('v_add_u32 v12, s33, v12')
    a(f's_mul_i32 s34, s27, {G_E1}'); a(f's_add_u32 s34, s34, {G_OFF}')
    a('v_lshlrev_b32 v13, 4, v2')
    a('v_add_u32 v13, s34, v13')
    a(f'v_mul_u32_u24 v14, {TP}, v15')
    a('v_lshl_add_u32 v14, v8, 6, v14')
    a('s_lshl_b32 s34, s27, 2')
    a('v_add_u32 v14, s34, v14')
    a(f's_mul_i32 s34, s22, {2*TP}')
    a('v_lshlrev_b32 v15, 2, v2')
    a('v_add_u32 v15, s34, v15')
    a('v_lshrrev_b32 v16, 3, v2')
    a('v_mul_u32_u24 v16, 40, v16')
    a('v_and_b32 v17, 7, v2')
    a('v_add_lshl_u32 v16, v16, v17, 4')
    a(f's_mul_i32 s36, s22, {2*U_T1}')
    a('s_mul_i32 s37, s24, 5120'); a('s_add_u32 s36, s36, s37')
    a('s_lshl_b32 s37, s21, 7'); a('s_add_u32 s36, s36, s37')
    a('s_add_u32 s36, s36, s23'); a(f's_add_u32 s36, s36, {U_OFF}')
    a(f's_add_u32 s37, s36, {U_T1}')
    a('s_and_b32 s35, s20, 31')
    SA = 56
    for j in range(4): a(f'v_mov_b32 v{SA+j}, 0')
    stamp(a, 1, stamps)
    for jj in range(5):
        vm.wait(('x', jj))
        a(f'ds_write_b128 v6, {vr(X+4*jj,4)} offset:{256*jj}')
        lg.issue('xw')
        if jj == 4:
            FR = 96
            for rho in range(4):
                b = FR + rho * 6
                a(f'ds_read_b64_tr_b16 {vr(b,2)}, v10 offset:{rho*XP}')
                a(f'ds_read_b64_tr_b16 {vr(b+2,2)}, v10 offset:{rho*XP+512}')
                a(f'ds_read_b64_tr_b16 {vr(b+4,2)}, v11 offset:{rho*XP+1024}')
                lg.issue(('tr', rho), 3)
        for r in range(4):
            a(f'v_dot2c_f32_bf16 v{SA+(r&1)}, v{X+4*jj+r}, v{ONES}')
            a(f'v_dot2c_f32_bf16 v{SA+2+(r&1)}, v{X+4*jj+r}, v{X+4*jj+r}')
    stamp(a, 2, stamps)
    a(f'v_add_f32 v{SA}, v{SA}, v{SA+1}')
    a(f'v_add_f32 v{SA+2}, v{SA+2}, v{SA+3}')
    D1 = 44
    D1r = [84, 88, 92, 44]
    for rho in range(4):
        lg.wait(('tr', rho))
        a(f'v_mfma_f32_16x16x32_bf16 {vr(D1r[rho],4)}, {vr(FR+rho*6,4)}, {vr(BA,4)}, 0')
        rot = [8, 4, 2, 1][rho]
        a(f'v_add_f32_dpp v{SA}, v{SA}, v{SA} row_ror:{rot} row_mask:0xf bank_mask:0xf')
        a(f'v_add_f32_dpp v{SA+2}, v{SA+2}, v{SA+2} row_ror:{rot} row_mask:0xf bank_mask:0xf')
    sts = [f'v_mul_f32 v{SA}, {fbits(1/640)}, v{SA}',
           f'v_mul_f32 v{SA+2}, {fbits(1/640)}, v{SA+2}',
           f'v_fma_f32 v{SA+2}, -v{SA}, v{SA}, v{SA+2}',
           f'v_max_f32 v{SA+2}, 0, v{SA+2}',
           f'v_add_f32 v{SA+2}, {fbits(1e-5)}, v{SA+2}',
           f'v_rsq_f32 v{SA+2}, v{SA+2}',
           's_nop 0',
           f'v_mul_f32 v{SA}, v{SA}, v{SA+2}']
    for rho in range(4):
        a(f'v_mfma_f32_16x16x16_bf16 {vr(D1r[rho],4)}, {vr(FR+rho*6+4,2)}, {vr(BA2,2)}, {vr(D1r[rho],4)}')
        a(sts[2*rho]); a(sts[2*rho+1])
    for rho in range(4):
        a(f'v_readlane_b32 s{44+2*rho}, v{SA+2}, {16*rho}')
        a(f'v_readlane_b32 s{45+2*rho}, v{SA}, {16*rho}')
    for rho in range(4):
        a(f'v_mul_f32 v{48+2*rho}, s{45+2*rho}, v{CSUM}')
    for rho in range(4):
        d = D1r[rho]; sp = 44 + 2*rho; tb = 48 + 2*rho
        a(f'v_pk_fma_f32 {vr(d,2)}, {vr(d,2)}, {sr(sp,2)}, {vr(tb,2)} op_sel_hi:[1,0,0] neg_lo:[0,0,1] neg_hi:[0,0,1]')
        a(f'v_pk_fma_f32 {vr(d+2,2)}, {vr(d+2,2)}, {sr(sp,2)}, {vr(tb,2)} op_sel_hi:[1,0,0] neg_lo:[0,0,1] neg_hi:[0,0,1]')
    for rho in range(4):
        d = D1r[rho]
        a(f'v_cvt_pk_f16_f32 v{d}, v{d}, v{d+1}')
        a(f'v_cvt_pk_f16_f32 v{d+1}, v{d+2}, v{d+3}')
        a(f'ds_write_b64 v12, {vr(d,2)} offset:{16*rho}')
    lg.wait_all()
    stamp(a, 3, stamps)
    a('s_barrier')
    AF = 64
    for rt in (0, 2, 1, 3):
        a(f'ds_read_b128 {vr(AF+rt*4,4)}, v13 offset:{rt*1024}')
    D2 = 96
    for h in range(2):
        a(f's_waitcnt lgkmcnt({3-2*h})')
        a(f'v_mfma_f32_16x16x32_f16 {vr(D2+h*4,4)}, {vr(AF+h*4,4)}, {vr(BB,4)}, 0')
        a(f's_waitcnt lgkmcnt({2-2*h})')
        a(f'v_mfma_f32_16x16x32_f16 {vr(D2+h*4,4)}, {vr(AF+(2+h)*4,4)}, {vr(BM,4)}, {vr(D2+h*4,4)}')
    ZF = 104
    for j in range(4): a(f'v_cvt_pk_f16_f32 v{ZF+j}, v{D2+2*j}, v{D2+2*j+1}')
    D3 = 108
    a(f'v_mfma_f32_16x16x32_f16 {vr(D3,4)}, {vr(ZF,4)}, {vr(BCc,4)}, 0')
    a(f'v_mfma_f32_16x16x32_f16 {vr(D3+4,4)}, {vr(ZF,4)}, {vr(BCs,4)}, 0')
    c = D3; s_ = D3 + 4
    for e in range(2):
        a(f'v_add_f32 v{c+2*e}, v{c+2*e}, v{s_+2*e+1}')
        a(f'v_sub_f32 v{c+2*e+1}, v{c+2*e+1}, v{s_+2*e}')
    for e in range(2):
        a(f'v_cvt_pk_f16_f32 v{116+e}, v{c+2*e}, v{c+2*e+1}')
    a('ds_write2_b32 v14, v116, v117 offset0:0 offset1:8')
    a('s_waitcnt lgkmcnt(0)')
    a('s_barrier')
    a(f'ds_read_b32 v118, v15')
    a(f'ds_read_b32 v119, v15 offset:{TP}')
    stamp(a, 4, stamps)
    a('s_cmp_eq_u32 s35, 0')
    a(f's_cbranch_scc1 {name}_short')
    a('s_waitcnt lgkmcnt(0)')
    a(f'buffer_store_dword v118, v16, s[12:15], s36 offen {uflag}')
    a(f'buffer_store_dword v119, v16, s[12:15], s37 offen {uflag}')
    a(f's_branch {name}_fin')
    a.label(f'{name}_short')
    a('s_waitcnt lgkmcnt(0)')
    a(f'buffer_store_short v118, v16, s[12:15], s36 offen {uflag}')
    a(f'buffer_store_short v119, v16, s[12:15], s37 offen {uflag}')
    a(f's_branch {name}_fin')

    a.label(f'{name}_pack_lo')
    a.reset_hist()
    a('s_sub_u32 s26, s25, 20'); a('s_mul_i32 s26, s26, 7'); a('s_add_u32 s26, s26, s24'); a('s_sub_u32 s26, s26, 1')
    a(f's_branch {name}_pack')
    a.label(f'{name}_pack_hi')
    a('s_sub_u32 s26, s2, 165')
    a.label(f'{name}_pack')
    if w2flag is None: w2flag = stflag
    nw2 = (384 + w2n - 1) // w2n
    a('s_cmp_eq_u32 s26, 90')
    a(f's_cbranch_scc1 {name}_zero')
    if pf:
        a('s_cmp_gt_u32 s26, 80')
        a(f's_cbranch_scc1 {name}_pf')
    a(f's_cmp_ge_u32 s26, {48 + nw2}')
    a(f's_cbranch_scc1 {name}_end')
    a('v_lshrrev_b32 v9, 2, v7')
    a('v_and_b32 v4, 3, v2')
    a('v_lshlrev_b32 v3, 4, v2')
    a('v_lshl_add_u32 v9, v8, 2, v9')
    a('s_waitcnt lgkmcnt(0)')
    srd(a, 12, 12, 13, ws_size(stamps))
    if pack_w2:
        a('s_cmp_ge_u32 s26, 48')
        a(f's_cbranch_scc1 {name}_pack_w2')
    if not roles & 2: a(f's_branch {name}_end')
    a('s_cmp_ge_u32 s22, 10')
    a(f's_cbranch_scc1 {name}_end')
    srd(a, 8, 16, 17, D*F*2)
    a('v_lshrrev_b32 v5, 3, v2')
    a('v_mul_u32_u24 v5, 3072, v5')
    a('v_and_b32 v6, 7, v2')
    a('v_lshl_add_u32 v5, v6, 4, v5')
    a('s_lshr_b32 s27, s26, 1'); a('s_and_b32 s28, s26, 1')
    a('s_mul_i32 s29, s28, 10'); a('s_add_u32 s29, s29, s22')
    a(f's_mul_i32 s30, s29, {32*3072}'); a('s_lshl_b32 s31, s27, 7'); a('s_add_u32 s30, s30, s31')
    a('s_lshl_b32 s31, s22, 12')
    a('s_mov_b32 m0, s31')
    for i in range(4):
        a('buffer_load_dwordx4 v5, s[8:11], s30 offen lds')
        if i < 3:
            a(f's_add_u32 s30, s30, {8*3072}')
            a('s_add_u32 m0, m0, 1024')
    a('v_lshlrev_b32 v6, 7, v9')
    a('v_lshl_add_u32 v6, v4, 3, v6')
    a('v_add_u32 v6, s31, v6')
    for j in range(4): a(f'v_mov_b32 v{12+j}, 0x3f803f80')
    a('s_mul_i32 s33, s27, 43'); a('s_lshr_b32 s33, s33, 7')
    a('s_mul_i32 s34, s33, 3'); a('s_sub_u32 s34, s27, s34')
    a('s_mul_i32 s33, s33, 240')
    a('s_mul_i32 s35, s34, 120'); a('s_lshl_b32 s37, s29, 1'); a('s_add_u32 s35, s35, s37')
    for tl in range(4):
        a(f's_add_u32 s36, s35, {(tl//2)*60 + tl%2}')
        a(f's_add_u32 s37, s29, {tl*60+40}')
        a('s_cmp_eq_u32 s34, 2')
        a('s_cselect_b32 s36, s37, s36')
        a('s_add_u32 s36, s36, s33'); a('s_lshl_b32 s36, s36, 10'); a(f's_add_u32 s{40+tl}, s36, {W1P_OFF}')
    a('s_waitcnt vmcnt(0)')
    for tl in range(4):
        b = 20 + tl*4
        a(f'ds_read_b64_tr_b16 {vr(b,2)}, v6 offset:{tl*32}')
        a(f'ds_read_b64_tr_b16 {vr(b+2,2)}, v6 offset:{tl*32+2048}')
    for tl in range(4):
        b = 20 + tl*4
        a(f's_waitcnt lgkmcnt({6-2*tl})')
        a(f'buffer_store_dwordx4 {vr(b,4)}, v3, s[12:15], s{40+tl} offen {stflag}')
        a(f'v_mfma_f32_16x16x32_bf16 {vr(40+4*tl,4)}, {vr(b,4)}, v[12:15], 0')
    a('v_lshlrev_b32 v10, 4, v8')
    a('s_lshl_b32 s32, s22, 8'); a('s_add_u32 s32, s32, 40960')
    a('v_add_u32 v10, s32, v10')
    for tl in range(4):
        a(f'ds_write_b128 v10, {vr(40+4*tl,4)} offset:{64*tl}')
    a('s_waitcnt lgkmcnt(0)')
    a('s_barrier')
    a('s_cmp_lg_u32 s22, 0')
    a(f's_cbranch_scc1 {name}_fin')
    a('v_lshlrev_b32 v10, 2, v2')
    for w in range(10): a(f'ds_read_b32 v{20+w}, v10 offset:{40960+256*w}')
    a('s_mul_i32 s32, s28, 6144'); a('s_lshl_b32 s33, s27, 8'); a('s_add_u32 s32, s32, s33'); a(f's_add_u32 s32, s32, {CS_OFF}')
    a('s_waitcnt lgkmcnt(0)')
    for w in range(1, 10): a(f'v_add_f32 v20, v20, v{20+w}')
    a(f'buffer_store_dword v20, v10, s[12:15], s32 offen {stflag}')
    a(f's_branch {name}_fin')
    if pack_w2:
        a.label(f'{name}_pack_w2')
        a.reset_hist()
        if not roles & 4: a(f's_branch {name}_end')
        a(f's_cmp_ge_u32 s22, {w2n}')
        a(f's_cbranch_scc1 {name}_end')
        srd(a, 8, 18, 19, D*F*2)
        a('s_sub_u32 s27, s26, 48'); a(f's_mul_i32 s27, s27, {w2n}'); a('s_add_u32 s32, s27, s22')
        a('s_cmp_ge_u32 s32, 384')
        a(f's_cbranch_scc1 {name}_end')
        a('s_lshr_b32 s33, s32, 3'); a('s_and_b32 s34, s32, 7')
        a(f's_mul_i32 s35, s33, {32*1280}'); a('s_mul_i32 s36, s34, 160'); a('s_add_u32 s35, s35, s36')
        a('s_mul_i32 s36, s34, 48'); a('s_add_u32 s36, s36, s33'); a('s_mul_i32 s36, s36, 5120'); a(f's_add_u32 s40, s36, {W2P_OFF}')
        a('s_mul_i32 s29, s22, 5120')
        a('s_mov_b32 m0, s29')
        for i in range(5):
            a(f'v_add_u32 v10, {64*i}, v2')
            a('v_mul_u32_u24 v11, 205, v10'); a('v_lshrrev_b32 v11, 11, v11')
            a('v_mul_u32_u24 v12, 10, v11'); a('v_sub_u32 v12, v10, v12')
            a('v_mul_u32_u24 v11, 1280, v11')
            a(f'v_lshl_add_u32 v{14+i}, v12, 4, v11')
            a(f'buffer_load_dwordx4 v{14+i}, s[8:11], s35 offen lds')
            if i < 4: a('s_add_u32 m0, m0, 1024')
        a('v_mul_u32_u24 v5, 160, v9')
        a('v_add_u32 v5, s29, v5')
        a('v_lshl_add_u32 v5, v4, 3, v5')
        a('v_add_u32 v13, 0x1000, v3')
        a('s_waitcnt vmcnt(0)')
        for i in range(5):
            b = 20 + i*4
            a(f'ds_read_b64_tr_b16 {vr(b,2)}, v5 offset:{32*i}')
            a(f'ds_read_b64_tr_b16 {vr(b+2,2)}, v5 offset:{32*i+16*160}')
        for i in range(5):
            b = 20 + i*4
            a(f's_waitcnt lgkmcnt({8-2*i})')
            if i < 4: a(f'buffer_store_dwordx4 {vr(b,4)}, v3, s[12:15], s40 offen offset:{1024*i} {w2flag}')
            else: a(f'buffer_store_dwordx4 {vr(b,4)}, v13, s[12:15], s40 offen {w2flag}')
    a(f's_branch {name}_fin')
    a.label(f'{name}_zero')
    a.reset_hist()
    a('s_cmp_ge_u32 s22, 8')
    a(f's_cbranch_scc1 {name}_end')
    a('s_waitcnt lgkmcnt(0)')
    srd(a, 12, 12, 13, ws_size(stamps))
    a('v_lshlrev_b32 v3, 4, v0')
    for j in range(4): a(f'v_mov_b32 v{4+j}, 0')
    a(f's_mov_b32 s30, {FLAG_OFF}')
    a('buffer_store_dwordx4 v[4:7], v3, s[12:15], s30 offen')
    if pf:
        a(f's_branch {name}_fin')
        a.label(f'{name}_pf')
        a.reset_hist()
        a('s_load_dwordx2 s[32:33], s[0:1], 80')
        a('s_load_dwordx2 s[36:37], s[0:1], 56')
        a('s_load_dwordx2 s[40:41], s[0:1], 72')
        a('v_lshlrev_b32 v3, 14, v0')
        a('v_lshlrev_b32 v4, 12, v0')
        a('s_waitcnt lgkmcnt(0)')
        srd(a, 12, 12, 13, ws_size(stamps))
        srd(a, 32, 32, 33, S*D*2)
        srd(a, 36, 36, 37, F*2)
        srd(a, 40, 40, 41, D*2)
        a('buffer_load_dword v8, v3, s[12:15], 0 offen')
        a('buffer_load_dword v9, v4, s[32:35], 0 offen')
        a('buffer_load_dword v10, v4, s[36:39], 0 offen')
        a('buffer_load_dword v11, v4, s[40:43], 0 offen')
        a('s_waitcnt vmcnt(0)')
        a(f's_branch {name}_end')
    a.label(f'{name}_fin')
    if stamps:
        a.reset_hist()
        a('s_nop 7')
        write_stamps(a, 6, 0, 22)
    a.label(f'{name}_end')
    a('s_endpgm')
    return dict(vgpr=120, sgpr=80, accum=120, lds=LDS_A, threads=1024)

if __name__ == '__main__':
    a = Asm()
    a.raw(f'; @launch kernel=ka_kernel grid=(256,1,1) block=(1024,1,1) lds={LDS_A}')
    a.raw('.amdgcn_target "amdgcn-amd-amdhsa--gfx950"\n.text')
    info = gen_kA(a, 'ka_kernel', stamps=True)
    a.raw('.section .rodata,"a"\n.p2align 6')
    a.raw(kernel_desc('ka_kernel', info['vgpr'], info['sgpr'], info['accum']))
    open('ka.s', 'w').write(a.text())
    print('instrs', a.count, 'nops', a.nops)
```

```python
from common import *
import kA2, kCD4, build2
def build(out, pre_roles, a_roles):
    a = Asm(); infos = {}
    infos['fnet_a_kernel'] = kA2.gen_kA(a, 'fnet_a_kernel', stflag='sc1', roles=a_roles)
    infos['fnet_cd_kernel'] = kCD4.gen_kCD(a, 'fnet_cd_kernel', DEPTH=9, R2=72)
    infos['fnet_p_kernel'] = kA2.gen_kA(a, 'fnet_p_kernel', stflag='sc1', roles=pre_roles)
    head = [build2.HDR.rstrip()]
    for n in ('fnet_p_kernel', 'fnet_a_kernel', 'fnet_cd_kernel'):
        i = infos[n]; head.append(f'; @launch kernel={n} grid=(256,1,1) block=({i["threads"]},1,1) lds={i["lds"]}')
    head.append('.amdgcn_target "amdgcn-amd-amdhsa--gfx950"\n.text')
    a.lines = head + a.lines
    a.raw('.section .rodata,"a"')
    for n, i in infos.items(): a.raw('.p2align 6\n' + kernel_desc(n, i['vgpr'], i['sgpr'], i['accum']))
    open(out, 'w').write(a.text())
build('p0.s', 0, 7); build('p1.s', 4, 3); build('p2.s', 6, 1); build('p3.s', 1, 6)
```

```python
from common import *

XP = 1280
G_OFF = 64 * XP
G_E1 = 4112
T_OFF = 0
TP = 260
LDS_A = G_OFF + 8 * G_E1
NW_A = 16

def gen_kA(a, name, stamps=False, stflag='', uflag='', w2flag=None, w2n=12, qrot=0, pack_w2=True, pf=None):
    a.raw(f'.globl {name}\n.p2align 8\n.type {name},@function\n{name}:')
    a.reset_hist()
    a('s_cmp_ge_u32 s2, 256')
    a(f's_cbranch_scc1 {name}_end')
    stamp(a, 0, stamps)
    a('s_load_dwordx2 s[8:9], s[0:1], 0')
    a('s_load_dwordx2 s[12:13], s[0:1], 96')
    a('s_load_dwordx2 s[16:17], s[0:1], 48')
    a('s_load_dwordx2 s[18:19], s[0:1], 64')
    a('v_lshrrev_b32 v1, 6, v0')
    a('v_and_b32 v2, 63, v0')
    a('v_readfirstlane_b32 s22, v1')
    a('v_and_b32 v7, 15, v2')
    a('v_lshrrev_b32 v8, 4, v2')
    if qrot:
        a(f's_add_u32 s2, s2, {8*qrot}'); a('s_and_b32 s2, s2, 255')
    a('s_and_b32 s24, s2, 7')
    a('s_lshr_b32 s25, s2, 3')
    a('s_cmp_lt_u32 s25, 20')
    a(f's_cbranch_scc1 {name}_fft_norm')
    a('s_cmp_ge_u32 s25, 25')
    a(f's_cbranch_scc1 {name}_pack_hi')
    a('s_cmp_eq_u32 s24, 0')
    a(f's_cbranch_scc0 {name}_pack_lo')
    a('s_mov_b32 s20, 32')
    a('s_sub_u32 s21, s25, 20')
    a('s_mov_b32 s23, 2')
    a(f's_branch {name}_fft')
    a.label(f'{name}_fft_norm')
    a('s_mul_i32 s26, s25, 52')
    a('s_lshr_b32 s26, s26, 8')
    a('s_mul_i32 s27, s26, 5')
    a('s_sub_u32 s21, s25, s27')
    a('s_lshl_b32 s27, s24, 2')
    a('s_add_u32 s27, s27, s26')
    emit_rho_t1(a, 27, 20, 28)
    a('s_lshl_b32 s23, s26, 2')
    a.label(f'{name}_fft')
    a.reset_hist()
    vm = Cnt(a, 'vmcnt', 63); lg = Cnt(a, 'lgkmcnt', 15)
    a('v_lshl_add_u32 v3, v1, 2, v8')
    a('v_and_b32 v5, 31, v3')
    a('v_lshlrev_b32 v5, 6, v5')
    a('v_add_u32 v5, s20, v5')
    a('v_sub_u32 v6, 0x800, v5')
    a('v_and_b32 v6, 0x7ff, v6')
    a('v_cmp_gt_u32 vcc, 32, v3')
    a('v_lshlrev_b32 v4, 4, v7')
    a('v_cndmask_b32 v5, v6, v5, vcc')
    a('v_mul_u32_u24 v5, 1280, v5')
    a('v_add_u32 v5, v5, v4')
    a(f'v_mul_u32_u24 v6, {XP}, v3')
    a('v_add_u32 v6, v6, v4')
    a('s_waitcnt lgkmcnt(0)')
    srd(a, 8, 8, 9, S*D*2)
    X = 64
    for jj in range(5):
        a(f'buffer_load_dwordx4 {vr(X+4*jj,4)}, v5, s[8:11], 0 offen offset:{256*jj}')
        vm.issue(('x', jj))
    srd(a, 12, 12, 13, ws_size(stamps))
    a('v_lshlrev_b32 v9, 2, v8')
    a('v_cvt_f32_u32 v9, v9')
    BA = 20; BA2 = 24; CSUM = 26; BB = 28; BM = 32; BCc = 36; BCs = 40; T = 44
    a('s_lshl_b32 s26, s21, 3')
    a('s_add_u32 s26, s26, 1')
    a('v_and_b32 v10, 7, v7')
    a('v_add_u32 v10, s26, v10')
    a('v_cvt_f32_u32 v10, v10')
    a(f'v_mul_f32 v10, {fbits(1/40)}, v10')
    a('v_lshrrev_b32 v11, 3, v7')
    a('v_cvt_f32_u32 v11, v11')
    a(f'v_mul_f32 v11, {fbits(0.25)}, v11')
    a('v_fma_f32 v11, v10, v9, v11')
    cj = [0,1,2,3,16,17,18,19,32,33,34,35]
    for j, c in enumerate(cj):
        a(f'v_fmamk_f32 v{T+j}, v10, {fbits(float(c))}, v11')
    for j in range(12):
        a(f'v_cos_f32 v{T+j}, v{T+j}')
    for j in range(6):
        a(f'v_cvt_pk_bf16_f32 v{BA+j}, v{T+2*j}, v{T+2*j+1}')
    a('v_cmp_gt_u32 vcc, 2, v8')
    ONES = 60
    for j in range(4): a(f'v_mov_b32 v{ONES+j}, 0x3f803f80')
    a(f'v_cndmask_b32 v{BA2}, 0, v{BA2}, vcc')
    a(f'v_cndmask_b32 v{BA2+1}, 0, v{BA2+1}, vcc')
    a(f'v_mfma_f32_16x16x32_bf16 v[84:87], {vr(ONES,4)}, {vr(BA,4)}, 0')
    a(f'v_mfma_f32_16x16x16_bf16 v[88:91], {vr(ONES,2)}, {vr(BA2,2)}, 0')
    a('s_and_b32 s27, s22, 7')
    a('s_add_u32 s28, s27, s26')
    a('v_lshrrev_b32 v10, 1, v7')
    a('v_mul_u32_u24 v10, 40, v10')
    a('v_add_u32 v10, s28, v10')
    a('v_and_b32 v11, 1, v7')
    a('v_cvt_f32_u32 v12, v11')
    a(f'v_mul_f32 v12, {fbits(0.25)}, v12')
    a('v_mov_b32 v13, 0x80008000')
    a('v_mul_lo_u32 v13, v13, v11')
    a('v_cvt_f32_u32 v14, v10')
    a(f'v_mul_f32 v14, {fbits(1/640)}, v14')
    a(f'v_fma_f32 v{T}, v14, v9, v12')
    for r in range(1, 4): a(f'v_fmamk_f32 v{T+r}, v14, {fbits(float(r))}, v{T}')
    a(f'v_add_f32 v{CSUM}, v84, v88')
    for r in range(4): a(f'v_sin_f32 v{T+4+r}, v{T+r}')
    for r in range(4): a(f'v_cos_f32 v{T+r}, v{T+r}')
    for j in range(4): a(f'v_cvt_pk_f16_f32 v{BB+j}, v{T+2*j}, v{T+2*j+1}')
    for j in range(4): a(f'v_xor_b32 v{BM+j}, v13, v{BB+j}')
    a('s_lshr_b32 s29, s22, 3')
    a('s_lshl_b32 s30, s29, 4')
    a('v_add_u32 v15, s30, v7')
    a('v_cvt_f32_u32 v10, v15')
    a(f'v_mul_f32 v10, {fbits(1/32)}, v10')
    a('s_cmp_eq_u32 s20, 32')
    a(f's_cselect_b32 s31, {fbits(0.5)}, 0')
    a('v_add_f32 v11, s31, v9')
    a('v_mul_f32 v11, v10, v11')
    for j, c in enumerate(cj[:8]):
        a(f'v_fmamk_f32 v{T+j}, v10, {fbits(float(c))}, v11')
    for j in range(8): a(f'v_sin_f32 v{T+8+j}, v{T+j}')
    for j in range(8): a(f'v_cos_f32 v{T+j}, v{T+j}')
    for j in range(4):
        a(f'v_cvt_pk_f16_f32 v{BCc+j}, v{T+2*j}, v{T+2*j+1}')
        a(f'v_cvt_pk_f16_f32 v{BCs+j}, v{T+8+2*j}, v{T+8+2*j+1}')
    a(f's_mul_i32 s32, s22, {4*XP}')
    a('v_lshlrev_b32 v10, 3, v2')
    a('v_add_u32 v10, s32, v10')
    a('v_and_b32 v11, 31, v2')
    a('v_lshlrev_b32 v11, 3, v11')
    a('v_add_u32 v11, s32, v11')
    a('v_and_b32 v12, 7, v7')
    a(f'v_mul_u32_u24 v12, {G_E1}, v12')
    a('v_lshl_add_u32 v12, v8, 8, v12')
    a('v_lshrrev_b32 v13, 3, v7')
    a('v_lshl_add_u32 v12, v13, 3, v12')
    a('s_lshr_b32 s33, s22, 2'); a('s_lshl_b32 s33, s33, 10'); a('s_and_b32 s34, s22, 3'); a('s_lshl_b32 s34, s34, 6'); a('s_add_u32 s33, s33, s34'); a(f's_add_u32 s33, s33, {G_OFF}')
    a('v_add_u32 v12, s33, v12')
    a(f's_mul_i32 s34, s27, {G_E1}'); a(f's_add_u32 s34, s34, {G_OFF}')
    a('v_lshlrev_b32 v13, 4, v2')
    a('v_add_u32 v13, s34, v13')
    a(f'v_mul_u32_u24 v14, {TP}, v15')
    a('v_lshl_add_u32 v14, v8, 6, v14')
    a('s_lshl_b32 s34, s27, 2')
    a('v_add_u32 v14, s34, v14')
    a(f's_mul_i32 s34, s22, {2*TP}')
    a('v_lshlrev_b32 v15, 2, v2')
    a('v_add_u32 v15, s34, v15')
    a('v_lshrrev_b32 v16, 3, v2')
    a('v_mul_u32_u24 v16, 40, v16')
    a('v_and_b32 v17, 7, v2')
    a('v_add_lshl_u32 v16, v16, v17, 4')
    a(f's_mul_i32 s36, s22, {2*U_T1}')
    a('s_mul_i32 s37, s24, 5120'); a('s_add_u32 s36, s36, s37')
    a('s_lshl_b32 s37, s21, 7'); a('s_add_u32 s36, s36, s37')
    a('s_add_u32 s36, s36, s23'); a(f's_add_u32 s36, s36, {U_OFF}')
    a(f's_add_u32 s37, s36, {U_T1}')
    a('s_and_b32 s35, s20, 31')
    SA = 56
    for j in range(4): a(f'v_mov_b32 v{SA+j}, 0')
    stamp(a, 1, stamps)
    for jj in range(5):
        vm.wait(('x', jj))
        a(f'ds_write_b128 v6, {vr(X+4*jj,4)} offset:{256*jj}')
        lg.issue('xw')
        if jj == 4:
            FR = 96
            for rho in range(4):
                b = FR + rho * 6
                a(f'ds_read_b64_tr_b16 {vr(b,2)}, v10 offset:{rho*XP}')
                a(f'ds_read_b64_tr_b16 {vr(b+2,2)}, v10 offset:{rho*XP+512}')
                a(f'ds_read_b64_tr_b16 {vr(b+4,2)}, v11 offset:{rho*XP+1024}')
                lg.issue(('tr', rho), 3)
        for r in range(4):
            a(f'v_dot2c_f32_bf16 v{SA+(r&1)}, v{X+4*jj+r}, v{ONES}')
            a(f'v_dot2c_f32_bf16 v{SA+2+(r&1)}, v{X+4*jj+r}, v{X+4*jj+r}')
    stamp(a, 2, stamps)
    a(f'v_add_f32 v{SA}, v{SA}, v{SA+1}')
    a(f'v_add_f32 v{SA+2}, v{SA+2}, v{SA+3}')
    D1 = 44
    D1r = [84, 88, 92, 44]
    for rho in range(4):
        lg.wait(('tr', rho))
        a(f'v_mfma_f32_16x16x32_bf16 {vr(D1r[rho],4)}, {vr(FR+rho*6,4)}, {vr(BA,4)}, 0')
        rot = [8, 4, 2, 1][rho]
        a(f'v_add_f32_dpp v{SA}, v{SA}, v{SA} row_ror:{rot} row_mask:0xf bank_mask:0xf')
        a(f'v_add_f32_dpp v{SA+2}, v{SA+2}, v{SA+2} row_ror:{rot} row_mask:0xf bank_mask:0xf')
    sts = [f'v_mul_f32 v{SA}, {fbits(1/640)}, v{SA}',
           f'v_mul_f32 v{SA+2}, {fbits(1/640)}, v{SA+2}',
           f'v_fma_f32 v{SA+2}, -v{SA}, v{SA}, v{SA+2}',
           f'v_max_f32 v{SA+2}, 0, v{SA+2}',
           f'v_add_f32 v{SA+2}, {fbits(1e-5)}, v{SA+2}',
           f'v_rsq_f32 v{SA+2}, v{SA+2}',
           's_nop 0',
           f'v_mul_f32 v{SA}, v{SA}, v{SA+2}']
    for rho in range(4):
        a(f'v_mfma_f32_16x16x16_bf16 {vr(D1r[rho],4)}, {vr(FR+rho*6+4,2)}, {vr(BA2,2)}, {vr(D1r[rho],4)}')
        a(sts[2*rho]); a(sts[2*rho+1])
    for rho in range(4):
        a(f'v_readlane_b32 s{44+2*rho}, v{SA+2}, {16*rho}')
        a(f'v_readlane_b32 s{45+2*rho}, v{SA}, {16*rho}')
    for rho in range(4):
        a(f'v_mul_f32 v{48+2*rho}, s{45+2*rho}, v{CSUM}')
    for rho in range(4):
        d = D1r[rho]; sp = 44 + 2*rho; tb = 48 + 2*rho
        a(f'v_pk_fma_f32 {vr(d,2)}, {vr(d,2)}, {sr(sp,2)}, {vr(tb,2)} op_sel_hi:[1,0,0] neg_lo:[0,0,1] neg_hi:[0,0,1]')
        a(f'v_pk_fma_f32 {vr(d+2,2)}, {vr(d+2,2)}, {sr(sp,2)}, {vr(tb,2)} op_sel_hi:[1,0,0] neg_lo:[0,0,1] neg_hi:[0,0,1]')
    for rho in range(4):
        d = D1r[rho]
        a(f'v_cvt_pk_f16_f32 v{d}, v{d}, v{d+1}')
        a(f'v_cvt_pk_f16_f32 v{d+1}, v{d+2}, v{d+3}')
        a(f'ds_write_b64 v12, {vr(d,2)} offset:{16*rho}')
    lg.wait_all()
    stamp(a, 3, stamps)
    a('s_barrier')
    AF = 64
    for rt in (0, 2, 1, 3):
        a(f'ds_read_b128 {vr(AF+rt*4,4)}, v13 offset:{rt*1024}')
    D2 = 96
    for h in range(2):
        a(f's_waitcnt lgkmcnt({3-2*h})')
        a(f'v_mfma_f32_16x16x32_f16 {vr(D2+h*4,4)}, {vr(AF+h*4,4)}, {vr(BB,4)}, 0')
        a(f's_waitcnt lgkmcnt({2-2*h})')
        a(f'v_mfma_f32_16x16x32_f16 {vr(D2+h*4,4)}, {vr(AF+(2+h)*4,4)}, {vr(BM,4)}, {vr(D2+h*4,4)}')
    ZF = 104
    for j in range(4): a(f'v_cvt_pk_f16_f32 v{ZF+j}, v{D2+2*j}, v{D2+2*j+1}')
    D3 = 108
    a(f'v_mfma_f32_16x16x32_f16 {vr(D3,4)}, {vr(ZF,4)}, {vr(BCc,4)}, 0')
    a(f'v_mfma_f32_16x16x32_f16 {vr(D3+4,4)}, {vr(ZF,4)}, {vr(BCs,4)}, 0')
    c = D3; s_ = D3 + 4
    for e in range(2):
        a(f'v_add_f32 v{c+2*e}, v{c+2*e}, v{s_+2*e+1}')
        a(f'v_sub_f32 v{c+2*e+1}, v{c+2*e+1}, v{s_+2*e}')
    for e in range(2):
        a(f'v_cvt_pk_f16_f32 v{116+e}, v{c+2*e}, v{c+2*e+1}')
    a('ds_write2_b32 v14, v116, v117 offset0:0 offset1:8')
    a('s_waitcnt lgkmcnt(0)')
    a('s_barrier')
    a(f'ds_read_b32 v118, v15')
    a(f'ds_read_b32 v119, v15 offset:{TP}')
    stamp(a, 4, stamps)
    a('s_cmp_eq_u32 s35, 0')
    a(f's_cbranch_scc1 {name}_short')
    a('s_waitcnt lgkmcnt(0)')
    a(f'buffer_store_dword v118, v16, s[12:15], s36 offen {uflag}')
    a(f'buffer_store_dword v119, v16, s[12:15], s37 offen {uflag}')
    a(f's_branch {name}_fin')
    a.label(f'{name}_short')
    a('s_waitcnt lgkmcnt(0)')
    a(f'buffer_store_short v118, v16, s[12:15], s36 offen {uflag}')
    a(f'buffer_store_short v119, v16, s[12:15], s37 offen {uflag}')
    a(f's_branch {name}_fin')

    a.label(f'{name}_pack_lo')
    a.reset_hist()
    a('s_sub_u32 s26, s25, 20'); a('s_mul_i32 s26, s26, 7'); a('s_add_u32 s26, s26, s24'); a('s_sub_u32 s26, s26, 1')
    a(f's_branch {name}_pack')
    a.label(f'{name}_pack_hi')
    a('s_sub_u32 s26, s2, 165')
    a.label(f'{name}_pack')
    if w2flag is None: w2flag = stflag
    nw2 = (384 + w2n - 1) // w2n
    a('s_cmp_eq_u32 s26, 90')
    a(f's_cbranch_scc1 {name}_zero')
    if pf:
        a('s_cmp_gt_u32 s26, 80')
        a(f's_cbranch_scc1 {name}_pf')
    a(f's_cmp_ge_u32 s26, {48 + nw2}')
    a(f's_cbranch_scc1 {name}_end')
    a('v_lshrrev_b32 v9, 2, v7')
    a('v_and_b32 v4, 3, v2')
    a('v_lshlrev_b32 v3, 4, v2')
    a('v_lshl_add_u32 v9, v8, 2, v9')
    a('s_waitcnt lgkmcnt(0)')
    srd(a, 12, 12, 13, ws_size(stamps))
    if pack_w2:
        a('s_cmp_ge_u32 s26, 48')
        a(f's_cbranch_scc1 {name}_pack_w2')
    a('s_cmp_ge_u32 s22, 10')
    a(f's_cbranch_scc1 {name}_end')
    srd(a, 8, 16, 17, D*F*2)
    a('v_lshrrev_b32 v5, 3, v2')
    a('v_mul_u32_u24 v5, 3072, v5')
    a('v_and_b32 v6, 7, v2')
    a('v_lshl_add_u32 v5, v6, 4, v5')
    a('s_lshr_b32 s27, s26, 1'); a('s_and_b32 s28, s26, 1')
    a('s_mul_i32 s29, s28, 10'); a('s_add_u32 s29, s29, s22')
    a(f's_mul_i32 s30, s29, {32*3072}'); a('s_lshl_b32 s31, s27, 7'); a('s_add_u32 s30, s30, s31')
    a('s_lshl_b32 s31, s22, 12')
    a('s_mov_b32 m0, s31')
    for i in range(4):
        a('buffer_load_dwordx4 v5, s[8:11], s30 offen lds')
        if i < 3:
            a(f's_add_u32 s30, s30, {8*3072}')
            a('s_add_u32 m0, m0, 1024')
    a('v_lshlrev_b32 v6, 7, v9')
    a('v_lshl_add_u32 v6, v4, 3, v6')
    a('v_add_u32 v6, s31, v6')
    for j in range(4): a(f'v_mov_b32 v{12+j}, 0x3f803f80')
    a('s_mul_i32 s33, s27, 43'); a('s_lshr_b32 s33, s33, 7')
    a('s_mul_i32 s34, s33, 3'); a('s_sub_u32 s34, s27, s34')
    a('s_mul_i32 s33, s33, 240')
    a('s_mul_i32 s35, s34, 120'); a('s_lshl_b32 s37, s29, 1'); a('s_add_u32 s35, s35, s37')
    for tl in range(4):
        a(f's_add_u32 s36, s35, {(tl//2)*60 + tl%2}')
        a(f's_add_u32 s37, s29, {tl*60+40}')
        a('s_cmp_eq_u32 s34, 2')
        a('s_cselect_b32 s36, s37, s36')
        a('s_add_u32 s36, s36, s33'); a('s_lshl_b32 s36, s36, 10'); a(f's_add_u32 s{40+tl}, s36, {W1P_OFF}')
    a('s_waitcnt vmcnt(0)')
    for tl in range(4):
        b = 20 + tl*4
        a(f'ds_read_b64_tr_b16 {vr(b,2)}, v6 offset:{tl*32}')
        a(f'ds_read_b64_tr_b16 {vr(b+2,2)}, v6 offset:{tl*32+2048}')
    for tl in range(4):
        b = 20 + tl*4
        a(f's_waitcnt lgkmcnt({6-2*tl})')
        a(f'buffer_store_dwordx4 {vr(b,4)}, v3, s[12:15], s{40+tl} offen {stflag}')
        a(f'v_mfma_f32_16x16x32_bf16 {vr(40+4*tl,4)}, {vr(b,4)}, v[12:15], 0')
    a('v_lshlrev_b32 v10, 4, v8')
    a('s_lshl_b32 s32, s22, 8'); a('s_add_u32 s32, s32, 40960')
    a('v_add_u32 v10, s32, v10')
    for tl in range(4):
        a(f'ds_write_b128 v10, {vr(40+4*tl,4)} offset:{64*tl}')
    a('s_waitcnt lgkmcnt(0)')
    a('s_barrier')
    a('s_cmp_lg_u32 s22, 0')
    a(f's_cbranch_scc1 {name}_fin')
    a('v_lshlrev_b32 v10, 2, v2')
    for w in range(10): a(f'ds_read_b32 v{20+w}, v10 offset:{40960+256*w}')
    a('s_mul_i32 s32, s28, 6144'); a('s_lshl_b32 s33, s27, 8'); a('s_add_u32 s32, s32, s33'); a(f's_add_u32 s32, s32, {CS_OFF}')
    a('s_waitcnt lgkmcnt(0)')
    for w in range(1, 10): a(f'v_add_f32 v20, v20, v{20+w}')
    a(f'buffer_store_dword v20, v10, s[12:15], s32 offen {stflag}')
    a(f's_branch {name}_fin')
    if pack_w2:
        a.label(f'{name}_pack_w2')
        a.reset_hist()
        a(f's_cmp_ge_u32 s22, {w2n}')
        a(f's_cbranch_scc1 {name}_end')
        srd(a, 8, 18, 19, D*F*2)
        a('s_sub_u32 s27, s26, 48'); a(f's_mul_i32 s27, s27, {w2n}'); a('s_add_u32 s32, s27, s22')
        a('s_cmp_ge_u32 s32, 384')
        a(f's_cbranch_scc1 {name}_end')
        a('s_lshr_b32 s33, s32, 3'); a('s_and_b32 s34, s32, 7')
        a(f's_mul_i32 s35, s33, {32*1280}'); a('s_mul_i32 s36, s34, 160'); a('s_add_u32 s35, s35, s36')
        a('s_mul_i32 s36, s34, 48'); a('s_add_u32 s36, s36, s33'); a('s_mul_i32 s36, s36, 5120'); a(f's_add_u32 s40, s36, {W2P_OFF}')
        a('s_mul_i32 s29, s22, 5120')
        a('s_mov_b32 m0, s29')
        for i in range(5):
            a(f'v_add_u32 v10, {64*i}, v2')
            a('v_mul_u32_u24 v11, 205, v10'); a('v_lshrrev_b32 v11, 11, v11')
            a('v_mul_u32_u24 v12, 10, v11'); a('v_sub_u32 v12, v10, v12')
            a('v_mul_u32_u24 v11, 1280, v11')
            a(f'v_lshl_add_u32 v{14+i}, v12, 4, v11')
            a(f'buffer_load_dwordx4 v{14+i}, s[8:11], s35 offen lds')
            if i < 4: a('s_add_u32 m0, m0, 1024')
        a('v_mul_u32_u24 v5, 160, v9')
        a('v_add_u32 v5, s29, v5')
        a('v_lshl_add_u32 v5, v4, 3, v5')
        a('v_add_u32 v13, 0x1000, v3')
        a('s_waitcnt vmcnt(0)')
        for i in range(5):
            b = 20 + i*4
            a(f'ds_read_b64_tr_b16 {vr(b,2)}, v5 offset:{32*i}')
            a(f'ds_read_b64_tr_b16 {vr(b+2,2)}, v5 offset:{32*i+16*160}')
        for i in range(5):
            b = 20 + i*4
            a(f's_waitcnt lgkmcnt({8-2*i})')
            if i < 4: a(f'buffer_store_dwordx4 {vr(b,4)}, v3, s[12:15], s40 offen offset:{1024*i} {w2flag}')
            else: a(f'buffer_store_dwordx4 {vr(b,4)}, v13, s[12:15], s40 offen {w2flag}')
    a(f's_branch {name}_fin')
    a.label(f'{name}_zero')
    a.reset_hist()
    a('s_cmp_ge_u32 s22, 8')
    a(f's_cbranch_scc1 {name}_end')
    a('s_waitcnt lgkmcnt(0)')
    srd(a, 12, 12, 13, ws_size(stamps))
    a('v_lshlrev_b32 v3, 4, v0')
    for j in range(4): a(f'v_mov_b32 v{4+j}, 0')
    a(f's_mov_b32 s30, {FLAG_OFF}')
    a('buffer_store_dwordx4 v[4:7], v3, s[12:15], s30 offen')
    if pf:
        a(f's_branch {name}_fin')
        a.label(f'{name}_pf')
        a.reset_hist()
        a('s_load_dwordx2 s[32:33], s[0:1], 80')
        a('s_load_dwordx2 s[36:37], s[0:1], 56')
        a('s_load_dwordx2 s[40:41], s[0:1], 72')
        a('v_lshlrev_b32 v3, 14, v0')
        a('v_lshlrev_b32 v4, 12, v0')
        a('s_waitcnt lgkmcnt(0)')
        srd(a, 12, 12, 13, ws_size(stamps))
        srd(a, 32, 32, 33, S*D*2)
        srd(a, 36, 36, 37, F*2)
        srd(a, 40, 40, 41, D*2)
        a('buffer_load_dword v8, v3, s[12:15], 0 offen')
        a('buffer_load_dword v9, v4, s[32:35], 0 offen')
        a('buffer_load_dword v10, v4, s[36:39], 0 offen')
        a('buffer_load_dword v11, v4, s[40:43], 0 offen')
        a('s_waitcnt vmcnt(0)')
        a(f's_branch {name}_end')
    a.label(f'{name}_fin')
    if stamps:
        a.reset_hist()
        a('s_nop 7')
        write_stamps(a, 6, 0, 22)
    a.label(f'{name}_end')
    a('s_endpgm')
    return dict(vgpr=120, sgpr=80, accum=120, lds=LDS_A, threads=1024)

if __name__ == '__main__':
    a = Asm()
    a.raw(f'; @launch kernel=ka_kernel grid=(256,1,1) block=(1024,1,1) lds={LDS_A}')
    a.raw('.amdgcn_target "amdgcn-amd-amdhsa--gfx950"\n.text')
    info = gen_kA(a, 'ka_kernel', stamps=True)
    a.raw('.section .rodata,"a"\n.p2align 6')
    a.raw(kernel_desc('ka_kernel', info['vgpr'], info['sgpr'], info['accum']))
    open('ka.s', 'w').write(a.text())
    print('instrs', a.count, 'nops', a.nops)
```

```python
from common import *

XP = 1280
G_OFF = 64 * XP
G_E1 = 4112
T_OFF = 0
TP = 260
LDS_A = G_OFF + 8 * G_E1
NW_A = 16

def gen_kA(a, name, stamps=False, stflag='', uflag='', roles=7, w2flag=None, w2n=12, qrot=0, pack_w2=True, pf=None):
    a.raw(f'.globl {name}\n.p2align 8\n.type {name},@function\n{name}:')
    a.reset_hist()
    a('s_cmp_ge_u32 s2, 256')
    a(f's_cbranch_scc1 {name}_end')
    stamp(a, 0, stamps)
    a('s_load_dwordx2 s[8:9], s[0:1], 0')
    a('s_load_dwordx2 s[12:13], s[0:1], 96')
    a('s_load_dwordx2 s[16:17], s[0:1], 48')
    a('s_load_dwordx2 s[18:19], s[0:1], 64')
    a('v_lshrrev_b32 v1, 6, v0')
    a('v_and_b32 v2, 63, v0')
    a('v_readfirstlane_b32 s22, v1')
    a('v_and_b32 v7, 15, v2')
    a('v_lshrrev_b32 v8, 4, v2')
    if qrot:
        a(f's_add_u32 s2, s2, {8*qrot}'); a('s_and_b32 s2, s2, 255')
    a('s_and_b32 s24, s2, 7')
    a('s_lshr_b32 s25, s2, 3')
    if roles & 8:
        a('s_add_u32 s26, s2, 48'); a('s_cmp_eq_u32 s2, 255'); a(f's_cbranch_scc1 {name}_zero'); a(f's_branch {name}_pack2')
    a('s_cmp_lt_u32 s25, 20')
    a(f's_cbranch_scc1 {name}_fft_norm')
    a('s_cmp_ge_u32 s25, 25')
    a(f's_cbranch_scc1 {name}_pack_hi')
    a('s_cmp_eq_u32 s24, 0')
    a(f's_cbranch_scc0 {name}_pack_lo')
    a('s_mov_b32 s20, 32')
    a('s_sub_u32 s21, s25, 20')
    a('s_mov_b32 s23, 2')
    a(f's_branch {name}_fft')
    a.label(f'{name}_fft_norm')
    a('s_mul_i32 s26, s25, 52')
    a('s_lshr_b32 s26, s26, 8')
    a('s_mul_i32 s27, s26, 5')
    a('s_sub_u32 s21, s25, s27')
    a('s_lshl_b32 s27, s24, 2')
    a('s_add_u32 s27, s27, s26')
    emit_rho_t1(a, 27, 20, 28)
    a('s_lshl_b32 s23, s26, 2')
    a.label(f'{name}_fft')
    a.reset_hist()
    if not roles & 1: a(f's_branch {name}_end')
    vm = Cnt(a, 'vmcnt', 63); lg = Cnt(a, 'lgkmcnt', 15)
    a('v_lshl_add_u32 v3, v1, 2, v8')
    a('v_and_b32 v5, 31, v3')
    a('v_lshlrev_b32 v5, 6, v5')
    a('v_add_u32 v5, s20, v5')
    a('v_sub_u32 v6, 0x800, v5')
    a('v_and_b32 v6, 0x7ff, v6')
    a('v_cmp_gt_u32 vcc, 32, v3')
    a('v_lshlrev_b32 v4, 4, v7')
    a('v_cndmask_b32 v5, v6, v5, vcc')
    a('v_mul_u32_u24 v5, 1280, v5')
    a('v_add_u32 v5, v5, v4')
    a(f'v_mul_u32_u24 v6, {XP}, v3')
    a('v_add_u32 v6, v6, v4')
    a('s_waitcnt lgkmcnt(0)')
    srd(a, 8, 8, 9, S*D*2)
    X = 64
    for jj in range(5):
        a(f'buffer_load_dwordx4 {vr(X+4*jj,4)}, v5, s[8:11], 0 offen offset:{256*jj}')
        vm.issue(('x', jj))
    srd(a, 12, 12, 13, ws_size(stamps))
    a('v_lshlrev_b32 v9, 2, v8')
    a('v_cvt_f32_u32 v9, v9')
    BA = 20; BA2 = 24; CSUM = 26; BB = 28; BM = 32; BCc = 36; BCs = 40; T = 44
    a('s_lshl_b32 s26, s21, 3')
    a('s_add_u32 s26, s26, 1')
    a('v_and_b32 v10, 7, v7')
    a('v_add_u32 v10, s26, v10')
    a('v_cvt_f32_u32 v10, v10')
    a(f'v_mul_f32 v10, {fbits(1/40)}, v10')
    a('v_lshrrev_b32 v11, 3, v7')
    a('v_cvt_f32_u32 v11, v11')
    a(f'v_mul_f32 v11, {fbits(0.25)}, v11')
    a('v_fma_f32 v11, v10, v9, v11')
    cj = [0,1,2,3,16,17,18,19,32,33,34,35]
    for j, c in enumerate(cj):
        a(f'v_fmamk_f32 v{T+j}, v10, {fbits(float(c))}, v11')
    for j in range(12):
        a(f'v_cos_f32 v{T+j}, v{T+j}')
    for j in range(6):
        a(f'v_cvt_pk_bf16_f32 v{BA+j}, v{T+2*j}, v{T+2*j+1}')
    a('v_cmp_gt_u32 vcc, 2, v8')
    ONES = 60
    for j in range(4): a(f'v_mov_b32 v{ONES+j}, 0x3f803f80')
    a(f'v_cndmask_b32 v{BA2}, 0, v{BA2}, vcc')
    a(f'v_cndmask_b32 v{BA2+1}, 0, v{BA2+1}, vcc')
    a(f'v_mfma_f32_16x16x32_bf16 v[84:87], {vr(ONES,4)}, {vr(BA,4)}, 0')
    a(f'v_mfma_f32_16x16x16_bf16 v[88:91], {vr(ONES,2)}, {vr(BA2,2)}, 0')
    a('s_and_b32 s27, s22, 7')
    a('s_add_u32 s28, s27, s26')
    a('v_lshrrev_b32 v10, 1, v7')
    a('v_mul_u32_u24 v10, 40, v10')
    a('v_add_u32 v10, s28, v10')
    a('v_and_b32 v11, 1, v7')
    a('v_cvt_f32_u32 v12, v11')
    a(f'v_mul_f32 v12, {fbits(0.25)}, v12')
    a('v_mov_b32 v13, 0x80008000')
    a('v_mul_lo_u32 v13, v13, v11')
    a('v_cvt_f32_u32 v14, v10')
    a(f'v_mul_f32 v14, {fbits(1/640)}, v14')
    a(f'v_fma_f32 v{T}, v14, v9, v12')
    for r in range(1, 4): a(f'v_fmamk_f32 v{T+r}, v14, {fbits(float(r))}, v{T}')
    a(f'v_add_f32 v{CSUM}, v84, v88')
    for r in range(4): a(f'v_sin_f32 v{T+4+r}, v{T+r}')
    for r in range(4): a(f'v_cos_f32 v{T+r}, v{T+r}')
    for j in range(4): a(f'v_cvt_pk_f16_f32 v{BB+j}, v{T+2*j}, v{T+2*j+1}')
    for j in range(4): a(f'v_xor_b32 v{BM+j}, v13, v{BB+j}')
    a('s_lshr_b32 s29, s22, 3')
    a('s_lshl_b32 s30, s29, 4')
    a('v_add_u32 v15, s30, v7')
    a('v_cvt_f32_u32 v10, v15')
    a(f'v_mul_f32 v10, {fbits(1/32)}, v10')
    a('s_cmp_eq_u32 s20, 32')
    a(f's_cselect_b32 s31, {fbits(0.5)}, 0')
    a('v_add_f32 v11, s31, v9')
    a('v_mul_f32 v11, v10, v11')
    for j, c in enumerate(cj[:8]):
        a(f'v_fmamk_f32 v{T+j}, v10, {fbits(float(c))}, v11')
    for j in range(8): a(f'v_sin_f32 v{T+8+j}, v{T+j}')
    for j in range(8): a(f'v_cos_f32 v{T+j}, v{T+j}')
    for j in range(4):
        a(f'v_cvt_pk_f16_f32 v{BCc+j}, v{T+2*j}, v{T+2*j+1}')
        a(f'v_cvt_pk_f16_f32 v{BCs+j}, v{T+8+2*j}, v{T+8+2*j+1}')
    a(f's_mul_i32 s32, s22, {4*XP}')
    a('v_lshlrev_b32 v10, 3, v2')
    a('v_add_u32 v10, s32, v10')
    a('v_and_b32 v11, 31, v2')
    a('v_lshlrev_b32 v11, 3, v11')
    a('v_add_u32 v11, s32, v11')
    a('v_and_b32 v12, 7, v7')
    a(f'v_mul_u32_u24 v12, {G_E1}, v12')
    a('v_lshl_add_u32 v12, v8, 8, v12')
    a('v_lshrrev_b32 v13, 3, v7')
    a('v_lshl_add_u32 v12, v13, 3, v12')
    a('s_lshr_b32 s33, s22, 2'); a('s_lshl_b32 s33, s33, 10'); a('s_and_b32 s34, s22, 3'); a('s_lshl_b32 s34, s34, 6'); a('s_add_u32 s33, s33, s34'); a(f's_add_u32 s33, s33, {G_OFF}')
    a('v_add_u32 v12, s33, v12')
    a(f's_mul_i32 s34, s27, {G_E1}'); a(f's_add_u32 s34, s34, {G_OFF}')
    a('v_lshlrev_b32 v13, 4, v2')
    a('v_add_u32 v13, s34, v13')
    a(f'v_mul_u32_u24 v14, {TP}, v15')
    a('v_lshl_add_u32 v14, v8, 6, v14')
    a('s_lshl_b32 s34, s27, 2')
    a('v_add_u32 v14, s34, v14')
    a(f's_mul_i32 s34, s22, {2*TP}')
    a('v_lshlrev_b32 v15, 2, v2')
    a('v_add_u32 v15, s34, v15')
    a('v_lshrrev_b32 v16, 3, v2')
    a('v_mul_u32_u24 v16, 40, v16')
    a('v_and_b32 v17, 7, v2')
    a('v_add_lshl_u32 v16, v16, v17, 4')
    a(f's_mul_i32 s36, s22, {2*U_T1}')
    a('s_mul_i32 s37, s24, 5120'); a('s_add_u32 s36, s36, s37')
    a('s_lshl_b32 s37, s21, 7'); a('s_add_u32 s36, s36, s37')
    a('s_add_u32 s36, s36, s23'); a(f's_add_u32 s36, s36, {U_OFF}')
    a(f's_add_u32 s37, s36, {U_T1}')
    a('s_and_b32 s35, s20, 31')
    SA = 56
    for j in range(4): a(f'v_mov_b32 v{SA+j}, 0')
    stamp(a, 1, stamps)
    for jj in range(5):
        vm.wait(('x', jj))
        a(f'ds_write_b128 v6, {vr(X+4*jj,4)} offset:{256*jj}')
        lg.issue('xw')
        if jj == 4:
            FR = 96
            for rho in range(4):
                b = FR + rho * 6
                a(f'ds_read_b64_tr_b16 {vr(b,2)}, v10 offset:{rho*XP}')
                a(f'ds_read_b64_tr_b16 {vr(b+2,2)}, v10 offset:{rho*XP+512}')
                a(f'ds_read_b64_tr_b16 {vr(b+4,2)}, v11 offset:{rho*XP+1024}')
                lg.issue(('tr', rho), 3)
        for r in range(4):
            a(f'v_dot2c_f32_bf16 v{SA+(r&1)}, v{X+4*jj+r}, v{ONES}')
            a(f'v_dot2c_f32_bf16 v{SA+2+(r&1)}, v{X+4*jj+r}, v{X+4*jj+r}')
    stamp(a, 2, stamps)
    a(f'v_add_f32 v{SA}, v{SA}, v{SA+1}')
    a(f'v_add_f32 v{SA+2}, v{SA+2}, v{SA+3}')
    D1 = 44
    D1r = [84, 88, 92, 44]
    for rho in range(4):
        lg.wait(('tr', rho))
        a(f'v_mfma_f32_16x16x32_bf16 {vr(D1r[rho],4)}, {vr(FR+rho*6,4)}, {vr(BA,4)}, 0')
        rot = [8, 4, 2, 1][rho]
        a(f'v_add_f32_dpp v{SA}, v{SA}, v{SA} row_ror:{rot} row_mask:0xf bank_mask:0xf')
        a(f'v_add_f32_dpp v{SA+2}, v{SA+2}, v{SA+2} row_ror:{rot} row_mask:0xf bank_mask:0xf')
    sts = [f'v_mul_f32 v{SA}, {fbits(1/640)}, v{SA}',
           f'v_mul_f32 v{SA+2}, {fbits(1/640)}, v{SA+2}',
           f'v_fma_f32 v{SA+2}, -v{SA}, v{SA}, v{SA+2}',
           f'v_max_f32 v{SA+2}, 0, v{SA+2}',
           f'v_add_f32 v{SA+2}, {fbits(1e-5)}, v{SA+2}',
           f'v_rsq_f32 v{SA+2}, v{SA+2}',
           's_nop 0',
           f'v_mul_f32 v{SA}, v{SA}, v{SA+2}']
    for rho in range(4):
        a(f'v_mfma_f32_16x16x16_bf16 {vr(D1r[rho],4)}, {vr(FR+rho*6+4,2)}, {vr(BA2,2)}, {vr(D1r[rho],4)}')
        a(sts[2*rho]); a(sts[2*rho+1])
    for rho in range(4):
        a(f'v_readlane_b32 s{44+2*rho}, v{SA+2}, {16*rho}')
        a(f'v_readlane_b32 s{45+2*rho}, v{SA}, {16*rho}')
    for rho in range(4):
        a(f'v_mul_f32 v{48+2*rho}, s{45+2*rho}, v{CSUM}')
    for rho in range(4):
        d = D1r[rho]; sp = 44 + 2*rho; tb = 48 + 2*rho
        a(f'v_pk_fma_f32 {vr(d,2)}, {vr(d,2)}, {sr(sp,2)}, {vr(tb,2)} op_sel_hi:[1,0,0] neg_lo:[0,0,1] neg_hi:[0,0,1]')
        a(f'v_pk_fma_f32 {vr(d+2,2)}, {vr(d+2,2)}, {sr(sp,2)}, {vr(tb,2)} op_sel_hi:[1,0,0] neg_lo:[0,0,1] neg_hi:[0,0,1]')
    for rho in range(4):
        d = D1r[rho]
        a(f'v_cvt_pk_f16_f32 v{d}, v{d}, v{d+1}')
        a(f'v_cvt_pk_f16_f32 v{d+1}, v{d+2}, v{d+3}')
        a(f'ds_write_b64 v12, {vr(d,2)} offset:{16*rho}')
    lg.wait_all()
    stamp(a, 3, stamps)
    a('s_barrier')
    AF = 64
    for rt in (0, 2, 1, 3):
        a(f'ds_read_b128 {vr(AF+rt*4,4)}, v13 offset:{rt*1024}')
    D2 = 96
    for h in range(2):
        a(f's_waitcnt lgkmcnt({3-2*h})')
        a(f'v_mfma_f32_16x16x32_f16 {vr(D2+h*4,4)}, {vr(AF+h*4,4)}, {vr(BB,4)}, 0')
        a(f's_waitcnt lgkmcnt({2-2*h})')
        a(f'v_mfma_f32_16x16x32_f16 {vr(D2+h*4,4)}, {vr(AF+(2+h)*4,4)}, {vr(BM,4)}, {vr(D2+h*4,4)}')
    ZF = 104
    for j in range(4): a(f'v_cvt_pk_f16_f32 v{ZF+j}, v{D2+2*j}, v{D2+2*j+1}')
    D3 = 108
    a(f'v_mfma_f32_16x16x32_f16 {vr(D3,4)}, {vr(ZF,4)}, {vr(BCc,4)}, 0')
    a(f'v_mfma_f32_16x16x32_f16 {vr(D3+4,4)}, {vr(ZF,4)}, {vr(BCs,4)}, 0')
    c = D3; s_ = D3 + 4
    for e in range(2):
        a(f'v_add_f32 v{c+2*e}, v{c+2*e}, v{s_+2*e+1}')
        a(f'v_sub_f32 v{c+2*e+1}, v{c+2*e+1}, v{s_+2*e}')
    for e in range(2):
        a(f'v_cvt_pk_f16_f32 v{116+e}, v{c+2*e}, v{c+2*e+1}')
    a('ds_write2_b32 v14, v116, v117 offset0:0 offset1:8')
    a('s_waitcnt lgkmcnt(0)')
    a('s_barrier')
    a(f'ds_read_b32 v118, v15')
    a(f'ds_read_b32 v119, v15 offset:{TP}')
    stamp(a, 4, stamps)
    a('s_cmp_eq_u32 s35, 0')
    a(f's_cbranch_scc1 {name}_short')
    a('s_waitcnt lgkmcnt(0)')
    a(f'buffer_store_dword v118, v16, s[12:15], s36 offen {uflag}')
    a(f'buffer_store_dword v119, v16, s[12:15], s37 offen {uflag}')
    a(f's_branch {name}_fin')
    a.label(f'{name}_short')
    a('s_waitcnt lgkmcnt(0)')
    a(f'buffer_store_short v118, v16, s[12:15], s36 offen {uflag}')
    a(f'buffer_store_short v119, v16, s[12:15], s37 offen {uflag}')
    a(f's_branch {name}_fin')

    a.label(f'{name}_pack_lo')
    a.reset_hist()
    a('s_sub_u32 s26, s25, 20'); a('s_mul_i32 s26, s26, 7'); a('s_add_u32 s26, s26, s24'); a('s_sub_u32 s26, s26, 1')
    a(f's_branch {name}_pack')
    a.label(f'{name}_pack_hi')
    a('s_sub_u32 s26, s2, 165')
    a.label(f'{name}_pack')
    if w2flag is None: w2flag = stflag
    nw2 = (384 + w2n - 1) // w2n
    a('s_cmp_eq_u32 s26, 90')
    a(f's_cbranch_scc1 {name}_zero')
    if pf:
        a('s_cmp_gt_u32 s26, 80')
        a(f's_cbranch_scc1 {name}_pf')
    a.label(f'{name}_pack2')
    a(f's_cmp_ge_u32 s26, {48 + nw2 if pack_w2 else 48}')
    a(f's_cbranch_scc1 {name}_end')
    a('v_lshrrev_b32 v9, 2, v7')
    a('v_and_b32 v4, 3, v2')
    a('v_lshlrev_b32 v3, 4, v2')
    a('v_lshl_add_u32 v9, v8, 2, v9')
    a('s_waitcnt lgkmcnt(0)')
    srd(a, 12, 12, 13, ws_size(stamps))
    if pack_w2:
        a('s_cmp_ge_u32 s26, 48')
        a(f's_cbranch_scc1 {name}_pack_w2')
    if not roles & 2: a(f's_branch {name}_end')
    a('s_cmp_ge_u32 s22, 10')
    a(f's_cbranch_scc1 {name}_end')
    srd(a, 8, 16, 17, D*F*2)
    a('v_lshrrev_b32 v5, 3, v2')
    a('v_mul_u32_u24 v5, 3072, v5')
    a('v_and_b32 v6, 7, v2')
    a('v_lshl_add_u32 v5, v6, 4, v5')
    a('s_lshr_b32 s27, s26, 1'); a('s_and_b32 s28, s26, 1')
    a('s_mul_i32 s29, s28, 10'); a('s_add_u32 s29, s29, s22')
    a(f's_mul_i32 s30, s29, {32*3072}'); a('s_lshl_b32 s31, s27, 7'); a('s_add_u32 s30, s30, s31')
    a('s_lshl_b32 s31, s22, 12')
    a('s_mov_b32 m0, s31')
    for i in range(4):
        a('buffer_load_dwordx4 v5, s[8:11], s30 offen lds')
        if i < 3:
            a(f's_add_u32 s30, s30, {8*3072}')
            a('s_add_u32 m0, m0, 1024')
    a('v_lshlrev_b32 v6, 7, v9')
    a('v_lshl_add_u32 v6, v4, 3, v6')
    a('v_add_u32 v6, s31, v6')
    for j in range(4): a(f'v_mov_b32 v{12+j}, 0x3f803f80')
    a('s_mul_i32 s33, s27, 43'); a('s_lshr_b32 s33, s33, 7')
    a('s_mul_i32 s34, s33, 3'); a('s_sub_u32 s34, s27, s34')
    a('s_mul_i32 s33, s33, 240')
    a('s_mul_i32 s35, s34, 120'); a('s_lshl_b32 s37, s29, 1'); a('s_add_u32 s35, s35, s37')
    for tl in range(4):
        a(f's_add_u32 s36, s35, {(tl//2)*60 + tl%2}')
        a(f's_add_u32 s37, s29, {tl*60+40}')
        a('s_cmp_eq_u32 s34, 2')
        a('s_cselect_b32 s36, s37, s36')
        a('s_add_u32 s36, s36, s33'); a('s_lshl_b32 s36, s36, 10'); a(f's_add_u32 s{40+tl}, s36, {W1P_OFF}')
    a('s_waitcnt vmcnt(0)')
    for tl in range(4):
        b = 20 + tl*4
        a(f'ds_read_b64_tr_b16 {vr(b,2)}, v6 offset:{tl*32}')
        a(f'ds_read_b64_tr_b16 {vr(b+2,2)}, v6 offset:{tl*32+2048}')
    for tl in range(4):
        b = 20 + tl*4
        a(f's_waitcnt lgkmcnt({6-2*tl})')
        a(f'buffer_store_dwordx4 {vr(b,4)}, v3, s[12:15], s{40+tl} offen {stflag}')
        a(f'v_mfma_f32_16x16x32_bf16 {vr(40+4*tl,4)}, {vr(b,4)}, v[12:15], 0')
    a('v_lshlrev_b32 v10, 4, v8')
    a('s_lshl_b32 s32, s22, 8'); a('s_add_u32 s32, s32, 40960')
    a('v_add_u32 v10, s32, v10')
    for tl in range(4):
        a(f'ds_write_b128 v10, {vr(40+4*tl,4)} offset:{64*tl}')
    a('s_waitcnt lgkmcnt(0)')
    a('s_barrier')
    a('s_cmp_lg_u32 s22, 0')
    a(f's_cbranch_scc1 {name}_fin')
    a('v_lshlrev_b32 v10, 2, v2')
    for w in range(10): a(f'ds_read_b32 v{20+w}, v10 offset:{40960+256*w}')
    a('s_mul_i32 s32, s28, 6144'); a('s_lshl_b32 s33, s27, 8'); a('s_add_u32 s32, s32, s33'); a(f's_add_u32 s32, s32, {CS_OFF}')
    a('s_waitcnt lgkmcnt(0)')
    for w in range(1, 10): a(f'v_add_f32 v20, v20, v{20+w}')
    a(f'buffer_store_dword v20, v10, s[12:15], s32 offen {stflag}')
    a(f's_branch {name}_fin')
    if pack_w2:
        a.label(f'{name}_pack_w2')
        a.reset_hist()
        if not roles & 4: a(f's_branch {name}_end')
        a(f's_cmp_ge_u32 s22, {w2n}')
        a(f's_cbranch_scc1 {name}_end')
        srd(a, 8, 18, 19, D*F*2)
        a('s_sub_u32 s27, s26, 48'); a(f's_mul_i32 s27, s27, {w2n}'); a('s_add_u32 s32, s27, s22')
        a('s_cmp_ge_u32 s32, 384')
        a(f's_cbranch_scc1 {name}_end')
        a('s_lshr_b32 s33, s32, 3'); a('s_and_b32 s34, s32, 7')
        a(f's_mul_i32 s35, s33, {32*1280}'); a('s_mul_i32 s36, s34, 160'); a('s_add_u32 s35, s35, s36')
        a('s_mul_i32 s36, s34, 48'); a('s_add_u32 s36, s36, s33'); a('s_mul_i32 s36, s36, 5120'); a(f's_add_u32 s40, s36, {W2P_OFF}')
        a('s_mul_i32 s29, s22, 5120')
        a('s_mov_b32 m0, s29')
        for i in range(5):
            a(f'v_add_u32 v10, {64*i}, v2')
            a('v_mul_u32_u24 v11, 205, v10'); a('v_lshrrev_b32 v11, 11, v11')
            a('v_mul_u32_u24 v12, 10, v11'); a('v_sub_u32 v12, v10, v12')
            a('v_mul_u32_u24 v11, 1280, v11')
            a(f'v_lshl_add_u32 v{14+i}, v12, 4, v11')
            a(f'buffer_load_dwordx4 v{14+i}, s[8:11], s35 offen lds')
            if i < 4: a('s_add_u32 m0, m0, 1024')
        a('v_mul_u32_u24 v5, 160, v9')
        a('v_add_u32 v5, s29, v5')
        a('v_lshl_add_u32 v5, v4, 3, v5')
        a('v_add_u32 v13, 0x1000, v3')
        a('s_waitcnt vmcnt(0)')
        for i in range(5):
            b = 20 + i*4
            a(f'ds_read_b64_tr_b16 {vr(b,2)}, v5 offset:{32*i}')
            a(f'ds_read_b64_tr_b16 {vr(b+2,2)}, v5 offset:{32*i+16*160}')
        for i in range(5):
            b = 20 + i*4
            a(f's_waitcnt lgkmcnt({8-2*i})')
            if i < 4: a(f'buffer_store_dwordx4 {vr(b,4)}, v3, s[12:15], s40 offen offset:{1024*i} {w2flag}')
            else: a(f'buffer_store_dwordx4 {vr(b,4)}, v13, s[12:15], s40 offen {w2flag}')
    a(f's_branch {name}_fin')
    a.label(f'{name}_zero')
    a.reset_hist()
    a('s_cmp_ge_u32 s22, 12')
    a(f's_cbranch_scc1 {name}_end')
    a('s_waitcnt lgkmcnt(0)')
    srd(a, 12, 12, 13, ws_size(stamps))
    a('v_lshlrev_b32 v3, 4, v0')
    for j in range(4): a(f'v_mov_b32 v{4+j}, 0')
    a(f's_mov_b32 s30, {FLAG_OFF}')
    a('buffer_store_dwordx4 v[4:7], v3, s[12:15], s30 offen')
    if pf:
        a(f's_branch {name}_fin')
        a.label(f'{name}_pf')
        a.reset_hist()
        a('s_load_dwordx2 s[32:33], s[0:1], 80')
        a('s_load_dwordx2 s[36:37], s[0:1], 56')
        a('s_load_dwordx2 s[40:41], s[0:1], 72')
        a('v_lshlrev_b32 v3, 14, v0')
        a('v_lshlrev_b32 v4, 12, v0')
        a('s_waitcnt lgkmcnt(0)')
        srd(a, 12, 12, 13, ws_size(stamps))
        srd(a, 32, 32, 33, S*D*2)
        srd(a, 36, 36, 37, F*2)
        srd(a, 40, 40, 41, D*2)
        a('buffer_load_dword v8, v3, s[12:15], 0 offen')
        a('buffer_load_dword v9, v4, s[32:35], 0 offen')
        a('buffer_load_dword v10, v4, s[36:39], 0 offen')
        a('buffer_load_dword v11, v4, s[40:43], 0 offen')
        a('s_waitcnt vmcnt(0)')
        a(f's_branch {name}_end')
    a.label(f'{name}_fin')
    if stamps:
        a.reset_hist()
        a('s_nop 7')
        write_stamps(a, 6, 0, 22)
    a.label(f'{name}_end')
    a('s_endpgm')
    return dict(vgpr=120, sgpr=80, accum=120, lds=LDS_A, threads=1024)

if __name__ == '__main__':
    a = Asm()
    a.raw(f'; @launch kernel=ka_kernel grid=(256,1,1) block=(1024,1,1) lds={LDS_A}')
    a.raw('.amdgcn_target "amdgcn-amd-amdhsa--gfx950"\n.text')
    info = gen_kA(a, 'ka_kernel', stamps=True)
    a.raw('.section .rodata,"a"\n.p2align 6')
    a.raw(kernel_desc('ka_kernel', info['vgpr'], info['sgpr'], info['accum']))
    open('ka.s', 'w').write(a.text())
    print('instrs', a.count, 'nops', a.nops)
```
